```python
import torch

def _softmax(x, axis=-1):
    return torch.softmax(x, dim=axis)
def _gelu(x):
    return torch.nn.functional.gelu(x, approximate="tanh")
def _silu(x):
    return torch.nn.functional.silu(x)
def _sigmoid(x):
    return torch.sigmoid(x)
def _layernorm(x, axis=-1, eps=1e-5):
    m = x.mean(dim=axis, keepdim=True)
    v = x.var(dim=axis, keepdim=True, unbiased=False)
    return (x - m) / torch.sqrt(v + eps)
def _scatter_add(tgt, idx, src, axis=0):
    return tgt.clone().index_add_(axis, idx, src)
def _segment_sum(src, seg, n):
    out = torch.zeros((n,) + src.shape[1:], dtype=src.dtype)
    return out.index_add_(0, seg, src)
def _pad(x, pw):
    flat = tuple(v for pair in reversed(pw) for v in pair)
    return torch.nn.functional.pad(x, flat)

kernel_name = 'concat_heads__linear_kernel_hedgehog__sliding_local_dilated__prompt'

def setup_inputs():

    _w = (lambda a: (lambda t: t.to(torch.bfloat16) if t.is_floating_point() else t)(torch.as_tensor(a)))
    def _A_setup():
        B, S, D, H = 1, 2048, 576, 32
        Dh = D // H
        return {
            "x": _w((lambda *s: torch.randn(*s, dtype=torch.bfloat16) * 0.2)(B, S, D)),
            "wqkv": _w((lambda *s: torch.randn(*s, dtype=torch.bfloat16) * 0.8)(D, 3 * D)),
            "w_phi": _w((lambda *s: torch.randn(*s, dtype=torch.bfloat16) * 0.8)(H, Dh, Dh) * (Dh ** -0.5)),
            "wo": _w((lambda *s: torch.randn(*s, dtype=torch.bfloat16) * 0.2)(D, D)),
        }
    _A_in = _A_setup()

    def _B_setup():
        B, S, D = 1, 2048, 576
        return {
            "x": _w((lambda *s: torch.randn(*s, dtype=torch.bfloat16) * 0.2)(B, S, D)),
            "wqkv": _w((lambda *s: torch.randn(*s, dtype=torch.bfloat16) * 0.2)(D, 3 * D)),
            "wo": _w((lambda *s: torch.randn(*s, dtype=torch.bfloat16) * 0.05)(D, D)),
        }
    _B_in = _B_setup()

    return {
        "A_x": _A_in["x"],
        "A_wqkv": _A_in["wqkv"],
        "A_w_phi": _A_in["w_phi"],
        "A_wo": _A_in["wo"],
        "B_x": _B_in["x"],
        "B_wqkv": _B_in["wqkv"],
        "B_wo": _B_in["wo"],
    }

def reference(A_x, A_wqkv, A_w_phi, A_wo, B_x, B_wqkv, B_wo):
    def _A_ref(x, wqkv, w_phi, wo):
        B, S, D = x.shape
        H = 32; Dh = D // H
        qkv = (lambda x, *d: x.permute(*d))((x @ wqkv).reshape(B, S, 3, H, Dh), 2, 0, 3, 1, 4)
        q, k, v = qkv[0], qkv[1], qkv[2]
        pq = torch.einsum("bhsd,hdf->bhsf", q, w_phi)
        pk = torch.einsum("bhsd,hdf->bhsf", k, w_phi)
        phi_q = torch.concatenate([_softmax(pq, axis=-1), _softmax(-pq, axis=-1)], axis=-1)
        phi_k = torch.concatenate([_softmax(pk, axis=-1), _softmax(-pk, axis=-1)], axis=-1)
        kv = torch.einsum("bhsf,bhsd->bhfd", phi_k, v)
        z  = torch.einsum("bhsf->bhf", phi_k)
        num = torch.einsum("bhqf,bhfd->bhqd", phi_q, kv)
        den = torch.einsum("bhqf,bhf->bhq", phi_q, z)[..., None] + 1e-6
        o = num / den
        return (lambda x, *d: x.permute(*d))(o, 0, 2, 1, 3).reshape(B, S, D) @ wo

    def _B_ref(x, wqkv, wo):
        B, S, D = x.shape
        H = 32; Dh = D // H
        W, dil = 8, 2
        qkv = (lambda x, *d: x.permute(*d))((x @ wqkv).reshape(B, S, 3, H, Dh), 2, 0, 3, 1, 4)
        q, k, v = qkv[0], qkv[1], qkv[2]
        scale = Dh ** -0.5
        pos = torch.arange(S)
        off = torch.arange(W) * dil
        idx = pos[:, None] - off[None, :]
        mask = idx >= 0
        idx_c = torch.where(mask, idx, 0).reshape(-1)
        kg = k[:, :, idx_c, :].reshape(B, H, S, W, Dh)
        vg = v[:, :, idx_c, :].reshape(B, H, S, W, Dh)
        logits = torch.einsum("bhsd,bhswd->bhsw", q, kg) * scale
        logits = torch.where(mask[None, None, :, :], logits, -1e9)
        attn = _softmax(logits, axis=-1)
        o = torch.einsum("bhsw,bhswd->bhsd", attn, vg)
        return (lambda x, *d: x.permute(*d))(o, 0, 2, 1, 3).reshape(B, S, D) @ wo

    a = _A_ref(A_x, A_wqkv, A_w_phi, A_wo)
    b = _B_ref(B_x, B_wqkv, B_wo)
    return torch.concatenate([a, b], axis=-1)
```

```python
import sys

NAME = "concat_heads__linear_kernel_hedgehog__sliding_local_dilated__prompt"
WS_Q = 0x000000
WS_OA = 0x400000
WS_OB = 0x800000
WS_P = 0xC00000
WS_BYTES = 0x1000000
X_BYTES = 2048 * 576 * 2
WQKV_BYTES = 576 * 1728 * 2
WO_BYTES = 576 * 576 * 2
WPHI_BYTES = 32 * 18 * 18 * 2
OUT_BYTES = 2048 * 1152 * 2
OOB = 0x80000000
LOG2E = 0x3FB8AA3B


class Em:
    def __init__(self):
        self.L = []
        self.vn = 0
        self.sn = 0
        self.vmax = 0
        self.smax = 0
        self.lab = 0

    def __call__(self, s):
        self.L.append("  " + s)

    def c(self, s):
        self.L.append("  ; " + s)

    def label(self, s):
        self.L.append(s + ":")

    def newlab(self, p="L"):
        self.lab += 1
        return f"{p}_{self.lab}"

    def v(self, n=1, al=1):
        if n >= 2 and al < 2:
            al = 2
        self.vn = (self.vn + al - 1) // al * al
        r = self.vn
        self.vn += n
        self.vmax = max(self.vmax, self.vn)
        assert self.vn <= 256, "out of vgprs"
        return r

    def s(self, n=1, al=1):
        if n == 2:
            al = max(al, 2)
        if n >= 4:
            al = max(al, 4)
        self.sn = (self.sn + al - 1) // al * al
        r = self.sn
        self.sn += n
        self.smax = max(self.smax, self.sn)
        assert self.sn <= 100, "out of sgprs"
        return r

    def reset(self):
        self.vn = 0
        self.sn = 0
        self.vmax = 0
        self.smax = 0


def vr(a, n):
    return f"v[{a}:{a+n-1}]" if n > 1 else f"v{a}"


def sr(a, n):
    return f"s[{a}:{a+n-1}]" if n > 1 else f"s{a}"


def srd(e, d, base, nbytes):
    e(f"s_mov_b32 s{d}, s{base}")
    e(f"s_and_b32 s{d+1}, s{base+1}, 0xffff")
    e(f"s_mov_b32 s{d+2}, {nbytes}")
    e(f"s_mov_b32 s{d+3}, 0x00020000")


def mfma(e, d, a, b, c=None):
    cs = vr(d, 4) if c is None else c
    e(f"v_mfma_f32_16x16x32_bf16 {vr(d,4)}, {vr(a,4)}, {vr(b,4)}, {cs}")


WB_PITCH = 208
WB_BYTES = 5 * 16 * WB_PITCH


def wb_issue_loads(e, sPhi, sHg, vTid, vE, vD, tmp):
    sB = sHg
    for i in range(3):
        e(f"v_add_u32 v{vE+i}, {512*i}, v{vTid}")
        e(f"v_lshlrev_b32 v{tmp}, 1, v{vE+i}")
        if i == 2:
            e(f"v_cmp_gt_u32 vcc, 1296, v{vE+i}")
            e(f"v_mov_b32 v{tmp+1}, 0x{OOB:x}")
            e("s_nop 1")
            e(f"v_cndmask_b32 v{tmp}, v{tmp+1}, v{tmp}, vcc")
        e(f"buffer_load_ushort v{vD+i}, v{tmp}, {sr(sPhi,4)}, s{sB} offen")


def lds_zero(e, base, nbytes, vTid, tmp4, nthreads=512):
    z = tmp4
    a = tmp4 + 4
    for i in range(4):
        e(f"v_mov_b32 v{z+i}, 0")
    n16 = nbytes // 16
    rounds = (n16 + nthreads - 1) // nthreads
    e(f"v_lshlrev_b32 v{a}, 4, v{vTid}")
    if base:
        e(f"v_add_u32 v{a}, {base}, v{a}")
    for r in range(rounds):
        if (r + 1) * nthreads <= n16:
            e(f"ds_write_b128 v{a}, {vr(z,4)} offset:{r*nthreads*16}")
        else:
            last = (n16 - 1 - r * nthreads) * 16 + base
            e(f"v_min_u32 v{a+1}, {last}, v{a}")
            e(f"ds_write_b128 v{a+1}, {vr(z,4)} offset:{r*nthreads*16}")


def wb_scatter(e, WB0, DUMP, vE, vD, t):
    for i in range(3):
        E = vE + i
        e(f"v_mul_u32_u24 v{t}, 3237, v{E}")
        e(f"v_lshrrev_b32 v{t}, 20, v{t}")
        e(f"v_mul_u32_u24 v{t+1}, 324, v{t}")
        e(f"v_sub_u32 v{t+1}, v{E}, v{t+1}")
        e(f"v_mul_u32_u24 v{t+2}, 3641, v{t+1}")
        e(f"v_lshrrev_b32 v{t+2}, 16, v{t+2}")
        e(f"v_mul_u32_u24 v{t+3}, 18, v{t+2}")
        e(f"v_sub_u32 v{t+3}, v{t+1}, v{t+3}")
        e(f"v_lshrrev_b32 v{t+4}, 2, v{t+3}")
        e(f"v_lshlrev_b32 v{t+4}, 4, v{t+4}")
        e(f"v_lshl_add_u32 v{t+4}, v{t}, 2, v{t+4}")
        e(f"v_and_b32 v{t+3}, 3, v{t+3}")
        e(f"v_add_u32 v{t+4}, v{t+4}, v{t+3}")
        e(f"v_mul_u32_u24 v{t+4}, {WB_PITCH}, v{t+4}")
        e(f"v_mul_u32_u24 v{t}, 18, v{t}")
        e(f"v_add_u32 v{t}, v{t}, v{t+2}")
        e(f"v_lshl_add_u32 v{t+4}, v{t}, 1, v{t+4}")
        if i == 2:
            e(f"v_cmp_gt_u32 vcc, 1296, v{E}")
            e(f"v_mov_b32 v{t}, {DUMP - WB0}")
            e("s_nop 1")
            e(f"v_cndmask_b32 v{t+4}, v{t}, v{t+4}, vcc")
        if WB0:
            e(f"v_add_u32 v{t+4}, {WB0}, v{t+4}")
        e(f"ds_write_b16 v{t+4}, v{vD+i}")


def softmax_pm(e, P, E1, E2, OUT, t, sL):
    mx, mn = t, t + 1
    e(f"v_max3_f32 v{mx}, v{P}, v{P+1}, v{P+2}")
    e(f"v_min3_f32 v{mn}, v{P}, v{P+1}, v{P+2}")
    for i in range(3, 17, 2):
        e(f"v_max3_f32 v{mx}, v{mx}, v{P+i}, v{P+i+1}")
        e(f"v_min3_f32 v{mn}, v{mn}, v{P+i}, v{P+i+1}")
    e(f"v_max_f32 v{mx}, v{mx}, v{P+17}")
    e(f"v_min_f32 v{mn}, v{mn}, v{P+17}")
    cp, cm = t + 2, t + 4
    e(f"v_mul_f32 v{cp}, s{sL}, v{mx}")
    e(f"v_mul_f32 v{cm}, s{sL}, v{mn}")
    for i in range(0, 18, 2):
        e(f"v_pk_fma_f32 {vr(E1+i,2)}, {vr(P+i,2)}, {sr(sL,2)}, {vr(cp,2)} op_sel_hi:[1,1,0] neg_lo:[0,0,1] neg_hi:[0,0,1]")
        e(f"v_pk_fma_f32 {vr(E2+i,2)}, {vr(P+i,2)}, {sr(sL,2)}, {vr(cm,2)} op_sel_hi:[1,1,0] neg_lo:[1,0,0] neg_hi:[1,0,0]")
    for i in range(18):
        e(f"v_exp_f32 v{E1+i}, v{E1+i}")
        e(f"v_exp_f32 v{E2+i}, v{E2+i}")
    s1, s2 = t + 2, t + 4
    e(f"v_pk_add_f32 {vr(s1,2)}, {vr(E1,2)}, {vr(E1+2,2)}")
    e(f"v_pk_add_f32 {vr(s2,2)}, {vr(E2,2)}, {vr(E2+2,2)}")
    for i in range(4, 18, 2):
        e(f"v_pk_add_f32 {vr(s1,2)}, {vr(s1,2)}, {vr(E1+i,2)}")
        e(f"v_pk_add_f32 {vr(s2,2)}, {vr(s2,2)}, {vr(E2+i,2)}")
    e(f"v_add_f32 v{s1}, v{s1}, v{s1+1}")
    e(f"v_add_f32 v{s2}, v{s2}, v{s2+1}")
    e(f"v_rcp_f32 v{s1}, v{s1}")
    e(f"v_rcp_f32 v{s2}, v{s2}")
    e("s_nop 0")
    for i in range(0, 18, 2):
        e(f"v_pk_mul_f32 {vr(E1+i,2)}, {vr(E1+i,2)}, {vr(s1,2)} op_sel_hi:[1,0]")
        e(f"v_pk_mul_f32 {vr(E2+i,2)}, {vr(E2+i,2)}, {vr(s2,2)} op_sel_hi:[1,0]")
    for i in range(0, 18, 2):
        e(f"v_cvt_pk_bf16_f32 v{OUT+i//2}, v{E1+i}, v{E1+i+1}")
        e(f"v_cvt_pk_bf16_f32 v{OUT+9+i//2}, v{E2+i}, v{E2+i+1}")


def chunk_decode(e, sTile, vq, vS, vC):
    e(f"s_lshl_b32 s{sTile+1}, s{sTile}, 2")
    e(f"v_add_u32 v{vC}, s{sTile+1}, v{vq}")
    e(f"v_min_u32 v{vC}, 26, v{vC}")
    e(f"v_mul_u32_u24 v{vS}, 57, v{vC}")
    e(f"v_lshrrev_b32 v{vS}, 9, v{vS}")
    e(f"v_mul_u32_u24 v{vS+1}, 9, v{vS}")
    e(f"v_sub_u32 v{vC}, v{vC}, v{vS+1}")


K1_WB0 = 131072
K1_ONES = K1_WB0 + WB_BYTES
K1_DUMP2 = K1_ONES + 16
K1_LDS = K1_DUMP2 + 16
TA_PITCH = 304
PHI0 = 40960
PHI_PITCH = 336
DUMP = 98304
TB_PITCH = 496


def gen_k1(e):
    e.reset()
    e.s(3)
    e.label("k1_kernel")
    Lend = "k1_end"
    e("s_cmp_ge_u32 s2, 256")
    e(f"s_cbranch_scc1 {Lend}")
    sPA = e.s(4)
    sPB = e.s(4)
    sPP = e.s(2)
    sPW = e.s(2)
    e(f"s_load_dwordx4 {sr(sPA,4)}, s[0:1], 0")
    e(f"s_load_dwordx2 {sr(sPP,2)}, s[0:1], 16")
    e(f"s_load_dwordx4 {sr(sPB,4)}, s[0:1], 32")
    e(f"s_load_dwordx2 {sr(sPW,2)}, s[0:1], 72")
    sJ, sI, sBr, sRb, sHg, sW, sMi, sNi = [e.s() for _ in range(8)]
    sT = e.s(4)
    e(f"s_and_b32 s{sJ}, s2, 7")
    e(f"s_lshr_b32 s{sI}, s2, 3")
    e(f"s_lshr_b32 s{sBr}, s{sJ}, 2")
    e(f"s_lshr_b32 s{sT}, s{sJ}, 1")
    e(f"s_and_b32 s{sT}, s{sT}, 1")
    e(f"s_lshl_b32 s{sT}, s{sT}, 3")
    e(f"s_lshr_b32 s{sRb}, s{sI}, 2")
    e(f"s_add_u32 s{sRb}, s{sRb}, s{sT}")
    e(f"s_and_b32 s{sT}, s{sJ}, 1")
    e(f"s_lshl_b32 s{sT}, s{sT}, 2")
    e(f"s_and_b32 s{sHg}, s{sI}, 3")
    e(f"s_add_u32 s{sHg}, s{sHg}, s{sT}")
    vTid = e.v()
    assert vTid == 0
    vL, vL15, vG, vR4, vC4 = [e.v() for _ in range(5)]
    vt = e.v(8, 2)
    e(f"v_lshrrev_b32 v{vt}, 6, v0")
    e(f"v_and_b32 v{vL}, 63, v0")
    e(f"v_readfirstlane_b32 s{sW}, v{vt}")
    e(f"v_and_b32 v{vL15}, 15, v0")
    e(f"v_lshrrev_b32 v{vG}, 4, v{vL}")
    e(f"v_bfe_u32 v{vR4}, v0, 2, 2")
    e(f"v_and_b32 v{vC4}, 3, v0")
    e(f"s_and_b32 s{sMi}, s{sW}, 3")
    e(f"s_lshr_b32 s{sNi}, s{sW}, 2")
    sX = e.s(4)
    sWq = e.s(4)
    sWs = e.s(4)
    sPhi = e.s(4)
    e("s_waitcnt lgkmcnt(0)")
    e(f"s_cmp_eq_u32 s{sBr}, 0")
    for i in range(4):
        e(f"s_cselect_b32 s{sPA+i}, s{sPA+i}, s{sPB+i}")
    srd(e, sX, sPA, X_BYTES)
    srd(e, sWq, sPA + 2, WQKV_BYTES)
    srd(e, sWs, sPW, WS_BYTES)
    srd(e, sPhi, sPP, WPHI_BYTES)
    vX = e.v(3)
    sRow0 = e.s()
    e(f"s_lshl_b32 s{sRow0}, s{sRb}, 7")
    e(f"s_lshl_b32 s{sT}, s{sMi}, 5")
    e(f"s_add_u32 s{sT}, s{sT}, s{sRow0}")
    e(f"v_add_u32 v{vt}, s{sT}, v{vL15}")
    e(f"v_mul_u32_u24 v{vt}, 1152, v{vt}")
    e(f"v_lshl_add_u32 v{vX}, v{vG}, 4, v{vt}")
    e(f"v_add_u32 v{vX+1}, 18432, v{vX}")
    e(f"s_sub_u32 s{sT}, s{sRow0}, 16")
    e(f"v_add_u32 v{vt}, s{sT}, v{vL15}")
    e(f"v_max_i32 v{vt}, 0, v{vt}")
    e(f"v_mul_u32_u24 v{vt}, 1152, v{vt}")
    e(f"v_lshl_add_u32 v{vX+2}, v{vG}, 4, v{vt}")
    vD = e.v(2)
    e(f"s_and_b32 s{sT}, s{sW}, 1")
    e(f"s_lshl_b32 s{sT}, s{sT}, 3")
    e(f"s_mul_i32 s{sT+1}, s{sHg}, 144")
    for hf in range(2):
        p, r, c, sg = vt, vt + 1, vt + 2, vt + 3
        e(f"s_sub_u32 s{sT+2}, {64*hf}, s{sT}")
        e(f"v_add_u32 v{p}, s{sT+2}, v{vL}")
        e(f"v_and_b32 v{vt+4}, 0xff, v{p}")
        e(f"v_mul_u32_u24 v{r}, 2185, v{vt+4}")
        e(f"v_lshrrev_b32 v{r}, 16, v{r}")
        e(f"v_mul_u32_u24 v{c}, 30, v{r}")
        e(f"v_sub_u32 v{c}, v{vt+4}, v{c}")
        e(f"v_mul_u32_u24 v{sg}, 57, v{c}")
        e(f"v_lshrrev_b32 v{sg}, 9, v{sg}")
        e(f"v_mul_u32_u24 v{vt+4}, 9, v{sg}")
        e(f"v_sub_u32 v{vt+4}, v{c}, v{vt+4}")
        e(f"v_mul_u32_u24 v{r}, 3456, v{r}")
        e(f"v_mul_u32_u24 v{sg}, 1152, v{sg}")
        e(f"v_add3_u32 v{r}, v{r}, v{sg}, s{sT+1}")
        e(f"v_lshl_add_u32 v{r}, v{vt+4}, 4, v{r}")
        e(f"v_cmp_gt_u32 vcc, 120, v{p}")
        e(f"v_cmp_gt_u32 s[{sT+2}:{sT+3}], 27, v{c}")
        e(f"v_mov_b32 v{vt+5}, 0x{OOB:x}")
        e(f"s_and_b64 vcc, vcc, s[{sT+2}:{sT+3}]")
        e("s_nop 1")
        e(f"v_cndmask_b32 v{vD+hf}, v{vt+5}, v{r}, vcc")
    sWoff = e.s()
    sM0 = e.s()
    sKx = e.s()
    sSlot = e.s()
    sTl = e.s(2)
    e(f"s_mul_i32 s{sWoff}, s{sW}, {2*4*3456}")
    e(f"s_lshl_b32 s{sM0}, s{sW}, 12")
    e(f"s_mov_b32 s{sKx}, 0")
    ACC = e.v(64, 4)
    XR = e.v(72, 4)
    F = e.v(56, 4)
    vRB = e.v(7)
    vRA = e.v(7)

    def issue_w():
        for j in range(2):
            for hf in range(2):
                e(f"s_add_u32 m0, s{sM0}, {j*2048 + hf*1024}")
                e(f"s_add_u32 s{sTl}, s{sWoff}, {j*13824}")
                e(f"buffer_load_dwordx4 v{vD+hf}, {sr(sWq,4)}, s{sTl} offen lds")
        e(f"s_add_u32 s{sWoff}, s{sWoff}, {64*3456}")
        e(f"s_add_u32 s{sM0}, s{sM0}, 32768")
        e(f"s_and_b32 s{sM0}, s{sM0}, 0x1ffff")

    def issue_x(ring, nx):
        e(f"s_cmp_lt_u32 s{sKx}, 1152")
        e(f"s_cselect_b32 s{sTl+1}, s{sKx}, 0x{OOB:x}")
        for rt in range(nx):
            e(f"buffer_load_dwordx4 {vr(XR + ring*12 + rt*4, 4)}, v{vX+rt}, {sr(sX,4)}, s{sTl+1} offen")
        e(f"s_add_u32 s{sKx}, s{sKx}, 64")

    def reads(fb, t, ks):
        for h in range(2):
            e(f"ds_read_b64_tr_b16 {vr(F + fb*28 + t*4 + h*2, 2)}, v{vRA+t} offset:{ks*16384 + h*2048}")

    def set_ra():
        for t in range(7):
            e(f"v_add_u32 v{vRA+t}, s{sSlot}, v{vRB+t}")

    def rb_setup(rot_from_mi):
        base = vt + 6
        e(f"v_lshlrev_b32 v{base}, 12, v{vG}")
        e(f"v_and_b32 v{vt}, 1, v{vG}")
        e(f"v_lshl_add_u32 v{base}, v{vt}, 7, v{base}")
        e(f"v_mul_u32_u24 v{vt}, 480, v{vR4}")
        e(f"v_add_u32 v{base}, v{base}, v{vt}")
        e(f"s_mul_i32 s{sT+2}, s{sNi}, 72")
        e(f"v_add_u32 v{base}, s{sT+2}, v{base}")
        for t in range(7):
            tile_scalar(t, rot_from_mi)
            chunk_decode(e, sT, vC4, vt, vt + 2)
            e(f"v_add_u32 v{vt}, 1, v{vt}")
            e(f"v_cmp_eq_u32 vcc, 3, v{vt}")
            e(f"v_mul_u32_u24 v{vt}, 144, v{vt}")
            e(f"v_lshl_add_u32 v{vt+2}, v{vt+2}, 3, v{base}")
            e(f"v_cndmask_b32 v{vt}, v{vt}, 0, vcc")
            e(f"v_add_u32 v{vRB+t}, v{vt}, v{vt+2}")

    def tile_scalar(t, rot_from_mi):
        if rot_from_mi:
            e(f"s_lshl_b32 s{sT}, s{sMi}, 1")
            e(f"s_add_u32 s{sT}, s{sT}, {t}")
            e(f"s_sub_u32 s{sT+1}, s{sT}, 7")
            e(f"s_cmp_ge_u32 s{sT}, 7")
            e(f"s_cselect_b32 s{sT}, s{sT+1}, s{sT}")
        else:
            e(f"s_mov_b32 s{sT}, {t}")

    def mainloop(isB):
        nx = 3 if isB else 2
        tag = "B" if isB else "A"
        issue_w(); issue_x(0, nx); issue_x(1, nx); issue_w(); issue_x(2, nx); issue_x(3, nx); issue_w(); issue_x(4, nx)
        rb_setup(isB)
        for i in range(64 if isB else 56):
            e(f"v_mov_b32 v{ACC+i}, 0")
        if not isB:
            lds_zero(e, K1_WB0, WB_BYTES, 0, F)
            e(f"v_mov_b32 v{F}, 0x3f803f80")
            e(f"v_mov_b32 v{F+1}, 0x3f803f80")
            e(f"v_mov_b32 v{F+2}, {K1_ONES}")
            e(f"ds_write_b64 v{F+2}, {vr(F,2)}")
            e("s_waitcnt lgkmcnt(0)")
            e("s_barrier")
            e(f"s_waitcnt vmcnt({12 + 5*nx})")
            wb_scatter(e, K1_WB0, K1_DUMP2, vWE, vWD, F)
        e(f"s_mov_b32 s{sSlot}, 0")
        set_ra()
        e(f"s_waitcnt vmcnt({8 + 4*nx}) lgkmcnt(0)")
        e("s_barrier")
        for t in range(7):
            reads(0, t, 0)
        sIt = sT + 3
        e(f"s_mov_b32 s{sIt}, 0")
        Lp = f"k1_loop{tag}"
        e.label(Lp)
        for b in range(3):
            issue_x((2 * b + 5) % 6, nx)
            for t in range(7):
                reads(1, t, 1)
                e("s_waitcnt lgkmcnt(14)")
                xr = XR + (2 * b) * 12
                mfma(e, ACC + t * 8, F + t * 4, xr)
                mfma(e, ACC + t * 8 + 4, F + t * 4, xr + 4)
                if isB and t < 2:
                    mfma(e, ACC + 56 + t * 4, F + t * 4, xr + 8)
            e(f"s_waitcnt vmcnt({4 + 3*nx})")
            e("s_barrier")
            e(f"s_add_u32 s{sSlot}, s{sSlot}, 32768")
            e(f"s_and_b32 s{sSlot}, s{sSlot}, 0x1ffff")
            set_ra()
            issue_w()
            issue_x((2 * b) % 6, nx)
            for t in range(7):
                reads(0, t, 0)
                e("s_waitcnt lgkmcnt(14)")
                xr = XR + (2 * b + 1) * 12
                mfma(e, ACC + t * 8, F + 28 + t * 4, xr)
                mfma(e, ACC + t * 8 + 4, F + 28 + t * 4, xr + 4)
                if isB and t < 2:
                    mfma(e, ACC + 56 + t * 4, F + 28 + t * 4, xr + 8)
        e(f"s_add_u32 s{sIt}, s{sIt}, 1")
        e(f"s_cmp_lt_u32 s{sIt}, 3")
        e(f"s_cbranch_scc1 {Lp}")
        e("s_waitcnt vmcnt(0) lgkmcnt(0)")
        e("s_barrier")

    vWE = e.v(3)
    vWD = e.v(3)
    vmark = e.vn
    e(f"s_cmp_eq_u32 s{sBr}, 1")
    e("s_cbranch_scc1 k1_B")
    sHgo = e.s()
    e(f"s_mul_i32 s{sHgo}, s{sHg}, {4*324*2}")
    wb_issue_loads(e, sPhi, sHgo, 0, vWE, vWD, vt)
    mainloop(False)
    PK = XR
    for t in range(7):
        for rt in range(2):
            a = ACC + t * 8 + rt * 4
            d = PK + (t * 2 + rt) * 2
            e(f"v_cvt_pk_bf16_f32 v{d}, v{a}, v{a+1}")
            e(f"v_cvt_pk_bf16_f32 v{d+1}, v{a+2}, v{a+3}")
    vRowL = vt + 6
    vRowG = vt + 7
    e(f"s_lshl_b32 s{sT+2}, s{sMi}, 5")
    e(f"v_add_u32 v{vt}, s{sT+2}, v{vL15}")
    e(f"v_mul_u32_u24 v{vRowL}, {TA_PITCH}, v{vt}")
    e(f"s_mul_i32 s{sT+3}, s{sNi}, 72")
    e(f"v_add_u32 v{vRowL}, s{sT+3}, v{vRowL}")
    e(f"v_add_u32 v{vt}, s{sRow0}, v{vt}")
    e(f"v_mul_u32_u24 v{vRowG}, 1152, v{vt}")
    e(f"s_mul_i32 s{sT+2}, s{sHg}, 144")
    e(f"s_add_u32 s{sT+2}, s{sT+2}, s{sT+3}")
    e(f"v_add_u32 v{vRowG}, s{sT+2}, v{vRowG}")
    for t in range(7):
        e(f"s_mov_b32 s{sT}, {t}")
        chunk_decode(e, sT, vG, vt, vt + 2)
        if t <= 4:
            e(f"v_mul_u32_u24 v{vt+3}, 144, v{vt}")
            e(f"v_lshl_add_u32 v{vt+3}, v{vt+2}, 3, v{vt+3}")
            e(f"v_add_u32 v{vt+3}, v{vt+3}, v{vRowL}")
            if t == 4:
                e(f"v_cmp_eq_u32 vcc, 2, v{vt}")
                e(f"v_mov_b32 v{vt+4}, {DUMP}")
                e("s_nop 1")
                e(f"v_cndmask_b32 v{vt+3}, v{vt+3}, v{vt+4}, vcc")
            for rt in range(2):
                e(f"ds_write_b64 v{vt+3}, {vr(PK + (t*2+rt)*2, 2)} offset:{rt*16*TA_PITCH}")
        if t >= 4:
            e(f"v_lshl_add_u32 v{vt+5}, v{vt+2}, 3, v{vRowG}")
            if t == 4:
                e(f"v_cmp_eq_u32 vcc, 2, v{vt}")
                e(f"v_mov_b32 v{vt+4}, 0x{OOB:x}")
                e("s_nop 1")
                e(f"v_cndmask_b32 v{vt+5}, v{vt+4}, v{vt+5}, vcc")
            if t == 6:
                e(f"v_cmp_gt_u32 vcc, 3, v{vG}")
                e(f"v_mov_b32 v{vt+4}, 0x{OOB:x}")
                e("s_nop 1")
                e(f"v_cndmask_b32 v{vt+5}, v{vt+4}, v{vt+5}, vcc")
            e(f"s_mov_b32 s{sT+1}, {WS_Q}")
            e(f"buffer_store_dwordx2 {vr(PK + (t*2)*2, 2)}, v{vt+5}, {sr(sWs,4)}, s{sT+1} offen")
            e(f"s_mov_b32 s{sT+1}, {WS_Q + 16*1152}")
            e(f"buffer_store_dwordx2 {vr(PK + (t*2+1)*2, 2)}, v{vt+5}, {sr(sWs,4)}, s{sT+1} offen")
    e("s_waitcnt lgkmcnt(0)")
    e("s_barrier")
    BK = F
    AW = ACC
    P = F + 12
    e(f"s_lshl_b32 s{sT}, s{sW}, 4")
    e(f"v_add_u32 v{vt}, s{sT}, v{vL15}")
    e(f"v_mul_u32_u24 v{vt+1}, {TA_PITCH}, v{vt}")
    e(f"v_lshl_add_u32 v{vt+1}, v{vG}, 4, v{vt+1}")
    for st in range(3):
        e(f"ds_read_b128 {vr(BK+st*4,4)}, v{vt+1} offset:{st*64}")
    e(f"v_mul_u32_u24 v{vt+2}, {WB_PITCH}, v{vL15}")
    e(f"v_lshl_add_u32 v{vt+2}, v{vG}, 4, v{vt+2}")
    e(f"v_add_u32 v{vt+3}, {K1_WB0}, v{vt+2}")
    for cf in range(5):
        for st in range(3):
            e(f"ds_read_b128 {vr(AW+(cf*3+st)*4,4)}, v{vt+3} offset:{cf*16*WB_PITCH + st*64}")
    e("s_waitcnt lgkmcnt(0)")
    for cf in range(5):
        for st in range(3):
            mfma(e, P + cf * 4, AW + (cf * 3 + st) * 4, BK + st * 4, "0" if st == 0 else None)
    sL = e.s(2)
    e(f"s_mov_b32 s{sL}, 0x{LOG2E:x}")
    e(f"s_mov_b32 s{sL+1}, 0x{LOG2E:x}")
    e("s_nop 7")
    E1 = XR
    E2 = XR + 18
    PH = XR + 36
    softmax_pm(e, P, E1, E2, PH, XR + 56, sL)
    e(f"v_mul_u32_u24 v{vt+1}, {PHI_PITCH}, v{vt}")
    e(f"v_mul_u32_u24 v{vt+2}, 80, v{vG}")
    e(f"v_add_u32 v{vt+1}, v{vt+1}, v{vt+2}")
    for i in range(4):
        e(f"ds_write_b128 v{vt+1}, {vr(PH+i*4,4)} offset:{PHI0 + i*16}")
    e(f"ds_write_b64 v{vt+1}, {vr(PH+16,2)} offset:{PHI0 + 64}")
    e("s_waitcnt lgkmcnt(0)")
    e("s_barrier")
    sHh, sXx = sT + 2, sT + 3
    e(f"s_lshr_b32 s{sHh}, s{sW}, 1")
    e(f"s_and_b32 s{sXx}, s{sW}, 1")
    e(f"v_lshl_add_u32 v{vt}, v{vG}, 3, v{vR4}")
    e(f"v_mul_u32_u24 v{vt+1}, {PHI_PITCH}, v{vt}")
    e(f"v_lshl_add_u32 v{vt+1}, v{vC4}, 3, v{vt+1}")
    e(f"s_mul_i32 s{sT}, s{sHh}, 80")
    e(f"s_add_u32 s{sT}, s{sT}, {PHI0}")
    e(f"v_add_u32 v{vt+1}, s{sT}, v{vt+1}")
    e(f"v_mul_u32_u24 v{vt+2}, {TA_PITCH}, v{vt}")
    e(f"s_lshr_b32 s{sT}, s{sHh}, 1")
    e(f"s_mul_i32 s{sT}, s{sT}, 72")
    e(f"s_add_u32 s{sT}, s{sT}, 144")
    e(f"s_and_b32 s{sT+1}, s{sHh}, 1")
    e(f"s_mul_i32 s{sT+1}, s{sT+1}, 40")
    e(f"s_cmp_eq_u32 s{sXx}, 0")
    e(f"s_cselect_b32 s{sT+1}, s{sT+1}, 32")
    e(f"s_add_u32 s{sT}, s{sT}, s{sT+1}")
    e(f"v_lshl_add_u32 v{vt+3}, v{vC4}, 3, v{vt+2}")
    e(f"v_add_u32 v{vt+3}, s{sT}, v{vt+3}")
    sMask = e.s(2)
    e(f"v_cmp_lt_u32 {sr(sMask,2)}, 0, v{vC4}")
    e(f"s_cmp_eq_u32 s{sXx}, 0")
    e(f"s_cselect_b64 {sr(sMask,2)}, 0, {sr(sMask,2)}")
    e(f"v_mov_b32 v{vt+4}, {K1_ONES}")
    AF = ACC
    BF = ACC + 48
    KV = F
    for ks in range(4):
        for h in range(2):
            off = (ks * 32 + h * 4)
            e(f"v_add_u32 v{vt+5}, {off*TA_PITCH}, v{vt+3}")
            e(f"v_cndmask_b32 v{vt+5}, v{vt+5}, v{vt+4}, {sr(sMask,2)}")
            e(f"ds_read_b64_tr_b16 {vr(BF+ks*4+h*2,2)}, v{vt+5}")
            for ft in range(3):
                e(f"ds_read_b64_tr_b16 {vr(AF+(ks*3+ft)*4+h*2,2)}, v{vt+1} offset:{off*PHI_PITCH + ft*32}")
    e("s_waitcnt lgkmcnt(0)")
    for ks in range(4):
        for ft in range(3):
            mfma(e, KV + ft * 4, AF + (ks * 3 + ft) * 4, BF + ks * 4, "0" if ks == 0 else None)
    e(f"s_and_b32 s{sT+1}, s{sHh}, 1")
    e(f"s_lshl_b32 s{sT}, s{sT+1}, 1")
    e(f"v_add_u32 v{vt}, s{sT}, v{vL15}")
    e(f"v_subrev_u32 v{vt+1}, s{sT}, v{vL15}")
    e(f"s_xor_b32 s{sT+1}, s{sT+1}, 1")
    e(f"s_lshl_b32 s{sT+1}, s{sT+1}, 4")
    e(f"v_cmp_gt_u32 vcc, 2, v{vt+1}")
    e(f"v_add_u32 v{vt+1}, s{sT+1}, v{vt+1}")
    e(f"v_mov_b32 v{vt+2}, 0x10000")
    e("s_nop 0")
    e(f"v_cndmask_b32 v{vt+1}, v{vt+2}, v{vt+1}, vcc")
    e(f"v_cmp_eq_u32 vcc, 4, v{vL15}")
    e("s_nop 1")
    e(f"v_cndmask_b32 v{vt+1}, v{vt+1}, 18, vcc")
    e(f"s_cmp_eq_u32 s{sXx}, 0")
    e(f"s_cselect_b64 vcc, -1, 0")
    e("s_nop 1")
    e(f"v_cndmask_b32 v{vt}, v{vt+1}, v{vt}, vcc")
    e(f"v_mul_u32_u24 v{vt}, 144, v{vt}")
    e(f"v_lshl_add_u32 v{vt}, v{vG}, 4, v{vt}")
    e(f"s_lshl_b32 s{sT}, s{sRb}, 5")
    e(f"s_lshl_b32 s{sT+1}, s{sHg}, 2")
    e(f"s_add_u32 s{sT}, s{sT}, s{sT+1}")
    e(f"s_add_u32 s{sT}, s{sT}, s{sHh}")
    e(f"s_mul_i32 s{sT}, s{sT}, 2736")
    e(f"s_add_u32 s{sT}, s{sT}, {WS_P}")
    e(f"v_cmp_eq_u32 vcc, 0, v{vG}")
    e(f"v_mov_b32 v{vt+2}, 0x{OOB:x}")
    e("s_nop 1")
    e(f"v_cndmask_b32 v{vt+1}, v{vt+2}, v{vt}, vcc")
    e("s_nop 4")
    e(f"buffer_store_dwordx4 {vr(KV,4)}, v{vt}, {sr(sWs,4)}, s{sT} offen")
    e(f"buffer_store_dwordx4 {vr(KV+4,4)}, v{vt}, {sr(sWs,4)}, s{sT} offen offset:64")
    e(f"buffer_store_dwordx4 {vr(KV+8,4)}, v{vt+1}, {sr(sWs,4)}, s{sT} offen offset:128")
    e("s_endpgm")
    e.label("k1_B")
    mainloop(True)
    PK = XR
    for u in range(16):
        a = ACC + u * 4
        d = PK + u * 2
        e(f"v_cvt_pk_bf16_f32 v{d}, v{a}, v{a+1}")
        e(f"v_cvt_pk_bf16_f32 v{d+1}, v{a+2}, v{a+3}")
    vRowL = vt + 6
    e(f"v_mul_u32_u24 v{vRowL}, {TB_PITCH}, v{vL15}")
    e(f"s_mul_i32 s{sT+3}, s{sNi}, 80")
    e(f"v_add_u32 v{vRowL}, s{sT+3}, v{vRowL}")
    sMo = e.s()
    e(f"s_lshl_b32 s{sMo}, s{sMi}, 5")
    e(f"s_add_u32 s{sMo}, s{sMo}, 16")
    e(f"s_mul_i32 s{sMo}, s{sMo}, {TB_PITCH}")
    for t in range(7):
        tile_scalar(t, True)
        chunk_decode(e, sT, vG, vt, vt + 2)
        e(f"v_add_u32 v{vt+5}, s{sT+1}, v{vG}")
        e(f"v_cmp_eq_u32 {sr(sTl,2)}, 27, v{vt+5}")
        e(f"v_add_u32 v{vt}, 1, v{vt}")
        e(f"v_cmp_eq_u32 vcc, 3, v{vt}")
        e(f"v_mul_u32_u24 v{vt}, 160, v{vt}")
        e(f"v_lshl_add_u32 v{vt+3}, v{vt+2}, 3, v{vRowL}")
        e(f"v_cndmask_b32 v{vt}, v{vt}, 0, vcc")
        e(f"v_cmp_lt_u32 vcc, 4, v{vt+2}")
        e(f"v_add_u32 v{vt+3}, v{vt+3}, v{vt}")
        e(f"v_add_u32 v{vt+4}, 8, v{vt+3}")
        e(f"v_cndmask_b32 v{vt+3}, v{vt+3}, v{vt+4}, vcc")
        e(f"v_mov_b32 v{vt+4}, {DUMP}")
        e(f"v_cndmask_b32 v{vt+3}, v{vt+3}, v{vt+4}, {sr(sTl,2)}")
        e(f"v_add_u32 v{vt+5}, s{sMo}, v{vt+3}")
        e(f"v_cndmask_b32 v{vt+5}, v{vt+5}, v{vt+4}, {sr(sTl,2)}")
        for rt in range(2):
            e(f"ds_write_b64 v{vt+5}, {vr(PK + (t*2+rt)*2, 2)} offset:{rt*16*TB_PITCH}")
        if t < 2:
            e(f"ds_write_b64 v{vt+3}, {vr(PK + (14+t)*2, 2)}")
    e("s_waitcnt lgkmcnt(0)")
    e("s_barrier")
    e.vn = vmark
    base = ACC
    Q = base
    KK = base + 10
    VV = base + 90
    LG = base + 170
    assert LG + 8 <= vRB
    O = KK
    AL = KK + 20
    AH = KK + 28
    vM, vR, vS = vt + 4, vt + 5, vt + 6
    e(f"s_and_b32 s{sT}, s{sW}, 3")
    e(f"s_lshr_b32 s{sT+1}, s{sW}, 2")
    e(f"s_lshl_b32 s{sT+1}, s{sT+1}, 6")
    e(f"v_add_u32 v{vS}, s{sT+1}, v{vL}")
    e(f"v_add_u32 v{vt}, 2, v{vS}")
    e(f"v_mul_u32_u24 v{vt}, {TB_PITCH}, v{vt}")
    e(f"s_lshr_b32 s{sT+2}, s{sT}, 1")
    e(f"s_mul_i32 s{sT+2}, s{sT+2}, 80")
    e(f"s_and_b32 s{sT+3}, s{sT}, 1")
    e(f"s_mul_i32 s{sTl}, s{sT+3}, 48")
    e(f"s_add_u32 s{sTl}, s{sTl}, s{sT+2}")
    e(f"v_add_u32 v{vM}, s{sTl}, v{vt}")
    e(f"s_lshl_b32 s{sTl}, s{sT+3}, 2")
    e(f"s_add_u32 s{sTl}, s{sTl}, s{sT+2}")
    e(f"s_add_u32 s{sTl}, s{sTl}, 32")
    e(f"v_add_u32 v{vR}, s{sTl}, v{vt}")
    e(f"v_add_u32 v{vS}, s{sRow0}, v{vS}")

    def rdseg(dst, typ, w):
        off = (14 - 2 * w) * TB_PITCH + typ * 160
        e(f"ds_read_b128 {vr(dst,4)}, v{vM} offset:{off}")
        e(f"ds_read_b128 {vr(dst+4,4)}, v{vM} offset:{off+16}")
        e(f"ds_read_b32 v{dst+8}, v{vR} offset:{off}")

    rdseg(Q, 0, 0)
    for w in range(8):
        rdseg(KK + w * 10, 1, w)
    for w in range(8):
        e(f"v_mov_b32 v{LG+w}, 0")
    sMk = e.s(16, 2)
    for w in range(1, 8):
        e(f"v_cmp_le_u32 {sr(sMk+2*w,2)}, {2*w}, v{vS}")
    e("s_waitcnt lgkmcnt(12)")
    for w in range(4):
        rdseg(VV + w * 10, 2, w)
    for p in range(9):
        for w in range(4):
            e(f"v_dot2c_f32_bf16 v{LG+w}, v{Q+p}, v{KK+w*10+p}")
    e("s_waitcnt lgkmcnt(12)")
    for w in range(4, 8):
        rdseg(VV + w * 10, 2, w)
    for p in range(9):
        for w in range(4, 8):
            e(f"v_dot2c_f32_bf16 v{LG+w}, v{Q+p}, v{KK+w*10+p}")
    e(f"v_mov_b32 v{vt}, 0xf149f2ca")
    e("s_nop 2")
    for w in range(1, 8):
        e(f"v_cndmask_b32 v{LG+w}, v{vt}, v{LG+w}, {sr(sMk+2*w,2)}")
    e(f"v_max3_f32 v{vt}, v{LG}, v{LG+1}, v{LG+2}")
    e(f"v_max3_f32 v{vt}, v{vt}, v{LG+3}, v{LG+4}")
    e(f"v_max3_f32 v{vt}, v{vt}, v{LG+5}, v{LG+6}")
    e(f"v_max_f32 v{vt}, v{vt}, v{LG+7}")
    import struct, math
    cval = struct.unpack("<I", struct.pack("<f", (18 ** -0.5) * math.log2(math.e)))[0]
    e(f"s_mov_b32 s{sT+2}, 0x{cval:x}")
    e(f"v_mul_f32 v{vt}, s{sT+2}, v{vt}")
    for w in range(8):
        e(f"v_fma_f32 v{LG+w}, v{LG+w}, s{sT+2}, -v{vt}")
    for w in range(8):
        e(f"v_exp_f32 v{LG+w}, v{LG+w}")
    e("s_nop 0")
    e(f"v_add_f32 v{vt}, v{LG}, v{LG+1}")
    for w in range(2, 8):
        e(f"v_add_f32 v{vt}, v{vt}, v{LG+w}")
    e(f"v_rcp_f32 v{vt}, v{vt}")
    for i in range(18):
        e(f"v_mov_b32 v{O+i}, 0")
    for w in range(8):
        e(f"v_mul_f32 v{LG+w}, v{LG+w}, v{vt}")
    for w in range(8):
        e(f"v_cvt_pk_bf16_f32 v{AL+w}, v{LG+w}, 0")
        e(f"v_cvt_pk_bf16_f32 v{AH+w}, 0, v{LG+w}")
    e("s_waitcnt lgkmcnt(0)")
    for w in range(8):
        for p in range(9):
            e(f"v_dot2c_f32_bf16 v{O+2*p}, v{AL+w}, v{VV+w*10+p}")
            e(f"v_dot2c_f32_bf16 v{O+2*p+1}, v{AH+w}, v{VV+w*10+p}")
    e("s_nop 2")
    OP = Q
    for p in range(9):
        e(f"v_cvt_pk_bf16_f32 v{OP+p}, v{O+2*p}, v{O+2*p+1}")
    e(f"v_mul_u32_u24 v{vt}, 1152, v{vS}")
    e(f"s_mul_i32 s{sTl}, s{sHg}, 144")
    e(f"s_mul_i32 s{sTl+1}, s{sT}, 36")
    e(f"s_add_u32 s{sTl}, s{sTl}, s{sTl+1}")
    e(f"s_add_u32 s{sTl}, s{sTl}, {WS_OB}")
    e(f"s_lshl_b32 s{sTl+1}, s{sT+3}, 2")
    e(f"s_add_u32 s{sTl+1}, s{sTl+1}, s{sTl}")
    e(f"buffer_store_dwordx4 {vr(OP,4)}, v{vt}, {sr(sWs,4)}, s{sTl+1} offen")
    e(f"buffer_store_dwordx4 {vr(OP+4,4)}, v{vt}, {sr(sWs,4)}, s{sTl+1} offen offset:16")
    e(f"s_xor_b32 s{sT+3}, s{sT+3}, 1")
    e(f"s_lshl_b32 s{sT+3}, s{sT+3}, 5")
    e(f"s_add_u32 s{sTl}, s{sTl}, s{sT+3}")
    e(f"buffer_store_dword v{OP+8}, v{vt}, {sr(sWs,4)}, s{sTl} offen")
    e.label(Lend)
    e("s_endpgm")
    return e.vmax, e.smax


GEMM_LDS = 36 * 3072


def gemm_body(e, NW, sRbk, sNb, sW, sXs, sWo, sOut, part, xoff, vL, vL15, vG, vR4, vC4, vt, sT):
    MW = NW // 2
    lgm = {2: 1, 4: 2}[MW]
    sRp, sCh = e.s(), e.s()
    e(f"s_and_b32 s{sRp}, s{sW}, {MW-1}")
    e(f"s_lshr_b32 s{sCh}, s{sW}, {lgm}")
    sRow = e.s()
    e(f"s_mul_i32 s{sRow}, s{sRbk}, {32*MW}")
    e(f"s_lshl_b32 s{sT}, s{sRp}, 5")
    e(f"s_add_u32 s{sRow}, s{sRow}, s{sT}")
    vX = e.v(2)
    e(f"v_add_u32 v{vt}, s{sRow}, v{vL15}")
    e(f"v_mul_u32_u24 v{vt}, 1152, v{vt}")
    e(f"v_lshl_add_u32 v{vX}, v{vG}, 4, v{vt}")
    e(f"v_add_u32 v{vX+1}, 18432, v{vX}")
    vD = e.v(3)
    e(f"s_mul_i32 s{sT+1}, s{sNb}, 144")
    for pp in range(3):
        p, q, r, c = vt, vt + 1, vt + 2, vt + 3
        e(f"v_add_u32 v{p}, {64*pp}, v{vL}")
        e(f"v_cmp_lt_u32 vcc, 87, v{p}")
        e(f"v_subrev_u32 v{q}, 8, v{p}")
        e("s_nop 0")
        e(f"v_cndmask_b32 v{q}, v{p}, v{q}, vcc")
        e(f"v_mul_u32_u24 v{r}, 6554, v{q}")
        e(f"v_lshrrev_b32 v{r}, 16, v{r}")
        e(f"v_mul_u32_u24 v{c}, 10, v{r}")
        e(f"v_sub_u32 v{c}, v{q}, v{c}")
        e(f"v_mul_u32_u24 v{vt+4}, 1152, v{r}")
        e(f"v_lshl_add_u32 v{vt+4}, v{c}, 4, v{vt+4}")
        e(f"v_add_u32 v{vt+4}, s{sT+1}, v{vt+4}")
        e(f"v_cmp_gt_u32 vcc, 9, v{c}")
        e(f"v_cmp_gt_u32 s[{sT+2}:{sT+3}], 16, v{r}")
        e(f"s_and_b64 vcc, vcc, s[{sT+2}:{sT+3}]")
        e(f"v_subrev_u32 v{q}, 80, v{p}")
        e(f"v_cmp_le_u32 s[{sT+2}:{sT+3}], 8, v{q}")
        e(f"v_mov_b32 v{vt+5}, 0x{OOB:x}")
        e(f"s_and_b64 vcc, vcc, s[{sT+2}:{sT+3}]")
        e("s_nop 1")
        e(f"v_cndmask_b32 v{vD+pp}, v{vt+5}, v{vt+4}, vcc")
    XR = e.v(144, 4)
    ACC = e.v(24, 4)
    F = e.v(24, 4)
    vRA = e.v(3)
    nph = (36 + NW - 1) // NW
    kpp = NW // 2
    sM0, sWo_ = e.s(), e.s()
    e(f"s_mul_i32 s{sM0}, s{sW}, 3072")
    e(f"s_mul_i32 s{sWo_}, s{sW}, {16*1152}")
    cnt = []
    e(f"s_mov_b32 s{sT}, {xoff}")
    for ph in range(nph):
        n = 0
        for pp in range(3):
            e(f"s_add_u32 m0, s{sM0}, {ph*NW*3072 + pp*1024}")
            e(f"s_add_u32 s{sT+1}, s{sWo_}, {ph*NW*16*1152}")
            e(f"buffer_load_dwordx4 v{vD+pp}, {sr(sWo,4)}, s{sT+1} offen lds")
            n += 1
        for ks in range(ph * kpp, min(18, (ph + 1) * kpp)):
            for rt in range(2):
                e(f"buffer_load_dwordx4 {vr(XR+(ks*2+rt)*4,4)}, v{vX+rt}, {sr(sXs,4)}, s{sT} offen offset:{ks*64}")
                n += 1
        cnt.append(n)
    assert sum(cnt) <= 63
    e(f"v_lshrrev_b32 v{vt}, 1, v{vG}")
    e(f"v_mul_u32_u24 v{vt}, 3072, v{vt}")
    e(f"v_and_b32 v{vt+1}, 1, v{vG}")
    e(f"v_mul_u32_u24 v{vt+1}, 1408, v{vt+1}")
    e(f"v_mul_u32_u24 v{vt+2}, 160, v{vR4}")
    e(f"v_add3_u32 v{vt}, v{vt}, v{vt+1}, v{vt+2}")
    e(f"s_mul_i32 s{sT+1}, s{sCh}, 72")
    e(f"v_add_u32 v{vt}, s{sT+1}, v{vt}")
    for t in range(3):
        e(f"v_add_u32 v{vt+1}, {4*t}, v{vC4}")
        e(f"v_min_u32 v{vt+1}, 8, v{vt+1}")
        e(f"v_lshl_add_u32 v{vRA+t}, v{vt+1}, 3, v{vt}")
    for i in range(24):
        e(f"v_mov_b32 v{ACC+i}, 0")
    rebased = False
    for ph in range(nph):
        rem = sum(cnt[ph + 1:])
        e(f"s_waitcnt vmcnt({rem})")
        e("s_barrier")
        kss = list(range(ph * kpp, min(18, (ph + 1) * kpp)))
        def rd(ks, fb):
            nonlocal rebased
            if ks >= 10 and not rebased:
                for t in range(3):
                    e(f"v_add_u32 v{vRA+t}, 61440, v{vRA+t}")
                rebased = True
            o = (ks - 10 if ks >= 10 else ks) * 6144
            for t in range(3):
                for h in range(2):
                    e(f"ds_read_b64_tr_b16 {vr(F+fb*12+t*4+h*2,2)}, v{vRA+t} offset:{o + h*640}")
        rd(kss[0], 0)
        for i, ks in enumerate(kss):
            fb = i & 1
            if i + 1 < len(kss):
                rd(kss[i + 1], fb ^ 1)
                e("s_waitcnt lgkmcnt(6)")
            else:
                e("s_waitcnt lgkmcnt(0)")
            for t in range(3):
                for rt in range(2):
                    mfma(e, ACC + (t * 2 + rt) * 4, F + fb * 12 + t * 4, XR + (ks * 2 + rt) * 4)
    e(f"v_add_u32 v{vt}, s{sRow}, v{vL15}")
    e(f"v_mul_u32_u24 v{vt}, 2304, v{vt}")
    e(f"v_lshl_add_u32 v{vt}, v{vG}, 3, v{vt}")
    e(f"v_cmp_eq_u32 vcc, 0, v{vG}")
    e(f"v_mov_b32 v{vt+2}, 0x{OOB:x}")
    e(f"s_mul_i32 s{sT}, s{sNb}, 144")
    e(f"s_mul_i32 s{sT+1}, s{sCh}, 72")
    e(f"v_cndmask_b32 v{vt+1}, v{vt+2}, v{vt}, vcc")
    e(f"s_add_u32 s{sT}, s{sT}, s{sT+1}")
    e(f"s_add_u32 s{sT}, s{sT}, {part*1152}")
    e(f"s_add_u32 s{sT+1}, s{sT}, {16*2304}")
    e("s_nop 4")
    PKd = F
    for t in range(3):
        for rt in range(2):
            a = ACC + (t * 2 + rt) * 4
            d = PKd + (t * 2 + rt) * 2
            e(f"v_cvt_pk_bf16_f32 v{d}, v{a}, v{a+1}")
            e(f"v_cvt_pk_bf16_f32 v{d+1}, v{a+2}, v{a+3}")
    for t in range(3):
        for rt in range(2):
            d = PKd + (t * 2 + rt) * 2
            e(f"buffer_store_dwordx2 {vr(d,2)}, v{vt + (1 if t == 2 else 0)}, {sr(sOut,4)}, s{sT+rt} offen offset:{t*32}")
    e("s_endpgm")


def common_ids(e):
    vTid = e.v()
    vL, vL15, vG, vR4, vC4 = [e.v() for _ in range(5)]
    vt = e.v(8, 2)
    sW = e.s()
    e(f"v_lshrrev_b32 v{vt}, 6, v0")
    e(f"v_and_b32 v{vL}, 63, v0")
    e(f"v_readfirstlane_b32 s{sW}, v{vt}")
    e(f"v_and_b32 v{vL15}, 15, v0")
    e(f"v_lshrrev_b32 v{vG}, 4, v{vL}")
    e(f"v_bfe_u32 v{vR4}, v0, 2, 2")
    e(f"v_and_b32 v{vC4}, 3, v0")
    return vL, vL15, vG, vR4, vC4, vt, sW


def gen_k3(e):
    e.reset()
    e.s(3)
    e.label("k3_kernel")
    e("s_cmp_ge_u32 s2, 256")
    e("s_cbranch_scc1 k3_end")
    sPo = e.s(2)
    sPOut = e.s(2)
    sPW = e.s(2)
    e(f"s_load_dwordx2 {sr(sPo,2)}, s[0:1], 24")
    e(f"s_load_dwordx2 {sr(sPOut,2)}, s[0:1], 56")
    e(f"s_load_dwordx2 {sr(sPW,2)}, s[0:1], 72")
    sT = e.s(4)
    sRbk, sNb = e.s(), e.s()
    e(f"s_and_b32 s{sT}, s2, 7")
    e(f"s_lshr_b32 s{sT+1}, s2, 3")
    e(f"s_lshl_b32 s{sRbk}, s{sT}, 2")
    e(f"s_lshr_b32 s{sT+2}, s{sT+1}, 3")
    e(f"s_add_u32 s{sRbk}, s{sRbk}, s{sT+2}")
    e(f"s_and_b32 s{sNb}, s{sT+1}, 7")
    vL, vL15, vG, vR4, vC4, vt, sW = common_ids(e)
    sXs, sWo, sOut = e.s(4), e.s(4), e.s(4)
    e("s_waitcnt lgkmcnt(0)")
    srd(e, sXs, sPW, WS_BYTES)
    srd(e, sWo, sPo, WO_BYTES)
    srd(e, sOut, sPOut, OUT_BYTES)
    gemm_body(e, 4, sRbk, sNb, sW, sXs, sWo, sOut, 0, WS_OA, vL, vL15, vG, vR4, vC4, vt, sT)
    e.label("k3_end")
    e("s_endpgm")
    return e.vmax, e.smax


K2_WB0 = 0
K2_KV0 = WB_BYTES
K2_Z0 = K2_KV0 + 6400
K2_ZEND = K2_Z0 + 1536
K2_DUMP = K2_ZEND


def gen_k2(e):
    e.reset()
    e.s(3)
    e.label("k2_kernel")
    e("s_cmp_ge_u32 s2, 256")
    e("s_cbranch_scc1 k2_end")
    sPo = e.s(2)
    sPOut = e.s(2)
    sPW = e.s(2)
    sPP = e.s(2)
    e(f"s_load_dwordx2 {sr(sPo,2)}, s[0:1], 48")
    e(f"s_load_dwordx2 {sr(sPOut,2)}, s[0:1], 56")
    e(f"s_load_dwordx2 {sr(sPW,2)}, s[0:1], 72")
    e(f"s_load_dwordx2 {sr(sPP,2)}, s[0:1], 16")
    sT = e.s(4)
    sJ, sI = e.s(), e.s()
    e(f"s_and_b32 s{sJ}, s2, 7")
    e(f"s_lshr_b32 s{sI}, s2, 3")
    vL, vL15, vG, vR4, vC4, vt, sW = common_ids(e)
    sXs, sWo, sOut, sPhi = e.s(4), e.s(4), e.s(4), e.s(4)
    e("s_waitcnt lgkmcnt(0)")
    srd(e, sXs, sPW, WS_BYTES)
    srd(e, sWo, sPo, WO_BYTES)
    srd(e, sOut, sPOut, OUT_BYTES)
    srd(e, sPhi, sPP, WPHI_BYTES)
    vmark, smark = e.vn, e.sn
    e(f"s_cmp_lt_u32 s{sI}, 16")
    e("s_cbranch_scc1 k2_A")
    sRbk, sNb = e.s(), e.s()
    e(f"s_sub_u32 s{sT}, s{sI}, 16")
    e(f"s_lshr_b32 s{sT+1}, s{sT}, 3")
    e(f"s_lshl_b32 s{sRbk}, s{sJ}, 1")
    e(f"s_add_u32 s{sRbk}, s{sRbk}, s{sT+1}")
    e(f"s_and_b32 s{sNb}, s{sT}, 7")
    gemm_body(e, 8, sRbk, sNb, sW, sXs, sWo, sOut, 1, WS_OB, vL, vL15, vG, vR4, vC4, vt, sT)
    e.label("k2_A")
    e.vn, e.sn = vmark, smark
    sHg, sRb = sJ, sI
    sHgo = e.s()
    vWE, vWD = e.v(3), e.v(3)
    e(f"s_mul_i32 s{sHgo}, s{sHg}, {4*324*2}")
    wb_issue_loads(e, sPhi, sHgo, 0, vWE, vWD, vt)
    BQ = e.v(12, 4)
    vRow = e.v()
    e(f"s_lshl_b32 s{sT}, s{sRb}, 7")
    e(f"s_lshl_b32 s{sT+1}, s{sW}, 4")
    e(f"s_add_u32 s{sT}, s{sT}, s{sT+1}")
    e(f"v_add_u32 v{vRow}, s{sT}, v{vL15}")
    e(f"v_mul_u32_u24 v{vRow}, 1152, v{vRow}")
    e(f"v_lshl_add_u32 v{vt}, v{vG}, 4, v{vRow}")
    e(f"s_mul_i32 s{sT}, s{sHg}, 144")
    e(f"s_add_u32 s{sT}, s{sT}, {WS_Q}")
    for st in range(3):
        e(f"buffer_load_dwordx4 {vr(BQ+st*4,4)}, v{vt}, {sr(sXs,4)}, s{sT} offen offset:{st*64}")
    PR = e.v(128, 4)
    vU = e.v(2)
    e(f"v_lshlrev_b32 v{vU}, 4, v0")
    e(f"v_add_u32 v{vU+1}, {512*16}, v{vU}")
    e(f"v_cmp_gt_u32 vcc, 172, v0")
    e(f"v_mov_b32 v{vt}, 0x{OOB:x}")
    e(f"s_mul_i32 s{sT}, s{sHg}, {4*2736}")
    e(f"v_cndmask_b32 v{vU+1}, v{vt}, v{vU+1}, vcc")
    e(f"s_add_u32 s{sT}, s{sT}, {WS_P}")
    for rb in range(16):
        for h in range(2):
            e(f"buffer_load_dwordx4 {vr(PR+(rb*2+h)*4,4)}, v{vU+h}, {sr(sXs,4)}, s{sT} offen")
        if rb < 15:
            e(f"s_add_u32 s{sT}, s{sT}, {32*2736}")
    AW = e.v(60, 4)
    P = e.v(20, 4)
    lds_zero(e, 0, K2_ZEND, 0, AW)
    e("s_waitcnt lgkmcnt(0)")
    e("s_barrier")
    e("s_waitcnt vmcnt(35)")
    wb_scatter(e, K2_WB0, K2_DUMP, vWE, vWD, AW)
    e("s_waitcnt lgkmcnt(0)")
    e("s_barrier")
    e(f"v_mul_u32_u24 v{vt+2}, {WB_PITCH}, v{vL15}")
    e(f"v_lshl_add_u32 v{vt+2}, v{vG}, 4, v{vt+2}")
    for cf in range(5):
        for st in range(3):
            e(f"ds_read_b128 {vr(AW+(cf*3+st)*4,4)}, v{vt+2} offset:{K2_WB0 + cf*16*WB_PITCH + st*64}")
    e("s_waitcnt vmcnt(32) lgkmcnt(0)")
    for cf in range(5):
        for st in range(3):
            mfma(e, P + cf * 4, AW + (cf * 3 + st) * 4, BQ + st * 4, "0" if st == 0 else None)
    sL = e.s(2)
    e(f"s_mov_b32 s{sL}, 0x{LOG2E:x}")
    e(f"s_mov_b32 s{sL+1}, 0x{LOG2E:x}")
    e("s_nop 7")
    E1 = AW
    E2 = AW + 18
    PH = AW + 36
    softmax_pm(e, P, E1, E2, PH, vt, sL)
    e(f"v_mov_b32 v{PH+18}, 0")
    e(f"v_mov_b32 v{PH+19}, 0")
    e("s_waitcnt vmcnt(0)")
    for h in range(2):
        a = PR + h * 4
        for rb in range(1, 16):
            b = PR + (rb * 2 + h) * 4
            e(f"v_pk_add_f32 {vr(a,2)}, {vr(a,2)}, {vr(b,2)}")
            e(f"v_pk_add_f32 {vr(a+2,2)}, {vr(a+2,2)}, {vr(b+2,2)}")
    for h in range(2):
        a = PR + h * 4
        e(f"v_cvt_pk_bf16_f32 v{a}, v{a}, v{a+1}")
        e(f"v_cvt_pk_bf16_f32 v{a+1}, v{a+2}, v{a+3}")
        u = vt
        e(f"v_add_u32 v{u}, {512*h}, v0")
        e(f"v_mul_u32_u24 v{vt+1}, 6133, v{u}")
        e(f"v_lshrrev_b32 v{vt+1}, 20, v{vt+1}")
        e(f"v_mul_u32_u24 v{vt+2}, 171, v{vt+1}")
        e(f"v_sub_u32 v{vt+2}, v{u}, v{vt+2}")
        e(f"v_mul_u32_u24 v{vt+3}, 7282, v{vt+2}")
        e(f"v_lshrrev_b32 v{vt+3}, 16, v{vt+3}")
        e(f"v_mul_u32_u24 v{vt+4}, 9, v{vt+3}")
        e(f"v_sub_u32 v{vt+4}, v{vt+2}, v{vt+4}")
        e(f"v_mul_u32_u24 v{vt+1}, 20, v{vt+1}")
        e(f"v_add_u32 v{vt+1}, v{vt+1}, v{vt+3}")
        e(f"v_mul_u32_u24 v{vt+1}, 80, v{vt+1}")
        e(f"v_lshl_add_u32 v{vt+1}, v{vt+4}, 3, v{vt+1}")
        if h == 1:
            e(f"v_cmp_gt_u32 vcc, 172, v0")
            e(f"v_mov_b32 v{vt+2}, {K2_DUMP - K2_KV0}")
            e("s_nop 1")
            e(f"v_cndmask_b32 v{vt+1}, v{vt+2}, v{vt+1}, vcc")
        e(f"ds_write_b64 v{vt+1}, {vr(a,2)} offset:{K2_KV0}")
    e("s_waitcnt lgkmcnt(0)")
    e("s_barrier")
    AK = PR
    e(f"v_lshrrev_b32 v{vt}, 2, v{vL15}")
    e(f"v_cmp_eq_u32 vcc, v{vt}, v{vG}")
    e(f"v_mul_u32_u24 v{vt+1}, 20, v{vt}")
    e(f"v_and_b32 v{vt+2}, 3, v{vL15}")
    e(f"v_add_u32 v{vt+1}, v{vt+1}, v{vt+2}")
    e(f"v_mul_u32_u24 v{vt+1}, 80, v{vt+1}")
    e(f"v_add_u32 v{vt+1}, {K2_KV0}, v{vt+1}")
    e(f"v_mov_b32 v{vt+2}, {K2_Z0}")
    e(f"v_cndmask_b32 v{vt+1}, v{vt+2}, v{vt+1}, vcc")
    for ch in range(5):
        for st in range(5):
            e(f"ds_read_b128 {vr(AK+(ch*5+st)*4,4)}, v{vt+1} offset:{ch*320 + st*16}")
    e("s_waitcnt lgkmcnt(0)")
    N = P
    for ch in range(5):
        for st in range(5):
            mfma(e, N + ch * 4, AK + (ch * 5 + st) * 4, PH + st * 4, "0" if st == 0 else None)
    e("s_nop 7")
    e("s_nop 3")
    e(f"v_add_f32 v{vt}, 0x358637bd, v{N+18}")
    e(f"v_rcp_f32 v{vt}, v{vt}")
    e("s_nop 0")
    for i in range(0, 18, 2):
        e(f"v_pk_mul_f32 {vr(N+i,2)}, {vr(N+i,2)}, {vr(vt,2)} op_sel_hi:[1,0]")
    OP = AW
    for i in range(9):
        e(f"v_cvt_pk_bf16_f32 v{OP+i}, v{N+2*i}, v{N+2*i+1}")
    e(f"v_mul_u32_u24 v{vt+2}, 36, v{vG}")
    e(f"v_add_u32 v{vt+2}, v{vt+2}, v{vRow}")
    e(f"s_mul_i32 s{sT}, s{sHg}, 144")
    e(f"s_add_u32 s{sT}, s{sT}, {WS_OA}")
    e(f"buffer_store_dwordx4 {vr(OP,4)}, v{vt+2}, {sr(sXs,4)}, s{sT} offen")
    e(f"buffer_store_dwordx4 {vr(OP+4,4)}, v{vt+2}, {sr(sXs,4)}, s{sT} offen offset:16")
    e(f"buffer_store_dword v{OP+8}, v{vt+2}, {sr(sXs,4)}, s{sT} offen offset:32")
    e.label("k2_end")
    e("s_endpgm")
    return e.vmax, e.smax


def main():
    e = Em()
    hdr = open(f"cdna_kernels/{NAME}.s.ref").read().split("\n")
    head = [l for l in hdr if l.startswith(";") and "@launch" not in l and "Override" not in l and "grid=ceil" not in l]
    out = head[:]
    out.append(f"; @launch kernel=k1_kernel grid=(256,1,1) block=(512,1,1) lds={K1_LDS}")
    out.append(f"; @launch kernel=k2_kernel grid=(256,1,1) block=(512,1,1) lds={GEMM_LDS}")
    out.append(f"; @launch kernel=k3_kernel grid=(256,1,1) block=(256,1,1) lds={GEMM_LDS}")
    out.append('.amdgcn_target "amdgcn-amd-amdhsa--gfx950"')
    out.append(".text")
    res = {}
    for nm, fn in (("k1", gen_k1), ("k2", gen_k2), ("k3", gen_k3)):
        e.L.append(f".globl {nm}_kernel")
        e.L.append(".p2align 8")
        e.L.append(f".type {nm}_kernel,@function")
        res[nm] = fn(e)
    out += e.L
    out.append('.section .rodata,"a"')
    for nm, (vm, sm) in res.items():
        vm4 = (vm + 3) // 4 * 4
        out.append(".p2align 6")
        out.append(f".amdhsa_kernel {nm}_kernel")
        out.append(f"  .amdhsa_next_free_vgpr {vm}")
        out.append(f"  .amdhsa_next_free_sgpr {sm}")
        out.append(f"  .amdhsa_accum_offset {vm4}")
        out.append("  .amdhsa_group_segment_fixed_size 0")
        out.append("  .amdhsa_kernarg_size 80")
        out.append("  .amdhsa_user_sgpr_count 2")
        out.append("  .amdhsa_user_sgpr_kernarg_segment_ptr 1")
        out.append("  .amdhsa_system_sgpr_workgroup_id_x 1")
        out.append(".end_amdhsa_kernel")
    path = sys.argv[1] if len(sys.argv) > 1 else f"cdna_kernels/{NAME}.s"
    open(path, "w").write("\n".join(out) + "\n")
    print(res)


if __name__ == "__main__":
    main()
```

```python
import sys

NAME = "concat_heads__linear_kernel_hedgehog__sliding_local_dilated__prompt"
WS_Q = 0x000000
WS_OA = 0x400000
WS_OB = 0x800000
WS_P = 0xC00000
WS_BYTES = 0x1000000
X_BYTES = 2048 * 576 * 2
WQKV_BYTES = 576 * 1728 * 2
WO_BYTES = 576 * 576 * 2
WPHI_BYTES = 32 * 18 * 18 * 2
OUT_BYTES = 2048 * 1152 * 2
OOB = 0x80000000
LOG2E = 0x3FB8AA3B


class Em:
    def __init__(self):
        self.L = []
        self.vn = 0
        self.sn = 0
        self.vmax = 0
        self.smax = 0
        self.lab = 0

    def __call__(self, s):
        self.L.append("  " + s)

    def c(self, s):
        self.L.append("  ; " + s)

    def label(self, s):
        self.L.append(s + ":")

    def newlab(self, p="L"):
        self.lab += 1
        return f"{p}_{self.lab}"

    def v(self, n=1, al=1):
        if n >= 2 and al < 2:
            al = 2
        self.vn = (self.vn + al - 1) // al * al
        r = self.vn
        self.vn += n
        self.vmax = max(self.vmax, self.vn)
        assert self.vn <= 256, "out of vgprs"
        return r

    def s(self, n=1, al=1):
        if n == 2:
            al = max(al, 2)
        if n >= 4:
            al = max(al, 4)
        self.sn = (self.sn + al - 1) // al * al
        r = self.sn
        self.sn += n
        self.smax = max(self.smax, self.sn)
        assert self.sn <= 100, "out of sgprs"
        return r

    def reset(self):
        self.vn = 0
        self.sn = 0
        self.vmax = 0
        self.smax = 0


STAMP = False
WS_ST = 0xF00000

def stamp_init(e):
    if not STAMP: return
    e.stp = e.s(24, 4)
    e.stn = 0

def stamp(e):
    if not STAMP: return
    i = e.stn
    e.stn += 1
    assert i < 12
    if i == 0:
        e(f"s_memrealtime {sr(e.stp + 22, 2)}")
    e(f"s_memtime {sr(e.stp + 2*i, 2)}")
    e("s_waitcnt lgkmcnt(0)")

def stamp_dump(e, sWs, kidx, vt, sT):
    if not STAMP: return
    e("s_waitcnt vmcnt(0) lgkmcnt(0)")
    stamp(e)
    e(f"v_lshrrev_b32 v{vt}, 6, v0")
    e(f"v_lshlrev_b32 v{vt}, 6, v{vt}")
    e(f"s_lshl_b32 s{sT}, s2, 9")
    e(f"s_add_u32 s{sT}, s{sT}, {WS_ST + kidx*256*512}")
    e(f"v_and_b32 v{vt+1}, 63, v0")
    e(f"v_cmp_eq_u32 vcc, 0, v{vt+1}")
    e(f"v_mov_b32 v{vt+2}, 0x{OOB:x}")
    e("s_nop 1")
    e(f"v_cndmask_b32 v{vt}, v{vt+2}, v{vt}, vcc")
    for i in range(12):
        src = e.stp + 2*i if i < 11 else e.stp + 22
        e(f"v_mov_b32 v{vt+1}, s{src}")
        e(f"buffer_store_dword v{vt+1}, v{vt}, {sr(sWs,4)}, s{sT} offen offset:{4*i}")
    e("s_waitcnt vmcnt(0)")

def vr(a, n):
    return f"v[{a}:{a+n-1}]" if n > 1 else f"v{a}"


def sr(a, n):
    return f"s[{a}:{a+n-1}]" if n > 1 else f"s{a}"


def srd(e, d, base, nbytes):
    e(f"s_mov_b32 s{d}, s{base}")
    e(f"s_and_b32 s{d+1}, s{base+1}, 0xffff")
    e(f"s_mov_b32 s{d+2}, {nbytes}")
    e(f"s_mov_b32 s{d+3}, 0x00020000")


def mfma(e, d, a, b, c=None):
    cs = vr(d, 4) if c is None else c
    e(f"v_mfma_f32_16x16x32_bf16 {vr(d,4)}, {vr(a,4)}, {vr(b,4)}, {cs}")


WB_PITCH = 208
WB_BYTES = 5 * 16 * WB_PITCH


def wb_issue_loads(e, sPhi, sHg, vTid, vE, vD, tmp):
    sB = sHg
    for i in range(3):
        e(f"v_add_u32 v{vE+i}, {512*i}, v{vTid}")
        e(f"v_lshlrev_b32 v{tmp}, 1, v{vE+i}")
        if i == 2:
            e(f"v_cmp_gt_u32 vcc, 1296, v{vE+i}")
            e(f"v_mov_b32 v{tmp+1}, 0x{OOB:x}")
            e("s_nop 1")
            e(f"v_cndmask_b32 v{tmp}, v{tmp+1}, v{tmp}, vcc")
        e(f"buffer_load_ushort v{vD+i}, v{tmp}, {sr(sPhi,4)}, s{sB} offen")


def lds_zero(e, base, nbytes, vTid, tmp4, nthreads=512):
    z = tmp4
    a = tmp4 + 4
    for i in range(4):
        e(f"v_mov_b32 v{z+i}, 0")
    n16 = nbytes // 16
    rounds = (n16 + nthreads - 1) // nthreads
    e(f"v_lshlrev_b32 v{a}, 4, v{vTid}")
    if base:
        e(f"v_add_u32 v{a}, {base}, v{a}")
    for r in range(rounds):
        if (r + 1) * nthreads <= n16:
            e(f"ds_write_b128 v{a}, {vr(z,4)} offset:{r*nthreads*16}")
        else:
            last = (n16 - 1 - r * nthreads) * 16 + base
            e(f"v_min_u32 v{a+1}, {last}, v{a}")
            e(f"ds_write_b128 v{a+1}, {vr(z,4)} offset:{r*nthreads*16}")


def wb_scatter(e, WB0, DUMP, vE, vD, t):
    for i in range(3):
        E = vE + i
        e(f"v_mul_u32_u24 v{t}, 3237, v{E}")
        e(f"v_lshrrev_b32 v{t}, 20, v{t}")
        e(f"v_mul_u32_u24 v{t+1}, 324, v{t}")
        e(f"v_sub_u32 v{t+1}, v{E}, v{t+1}")
        e(f"v_mul_u32_u24 v{t+2}, 3641, v{t+1}")
        e(f"v_lshrrev_b32 v{t+2}, 16, v{t+2}")
        e(f"v_mul_u32_u24 v{t+3}, 18, v{t+2}")
        e(f"v_sub_u32 v{t+3}, v{t+1}, v{t+3}")
        e(f"v_lshrrev_b32 v{t+4}, 2, v{t+3}")
        e(f"v_lshlrev_b32 v{t+4}, 4, v{t+4}")
        e(f"v_lshl_add_u32 v{t+4}, v{t}, 2, v{t+4}")
        e(f"v_and_b32 v{t+3}, 3, v{t+3}")
        e(f"v_add_u32 v{t+4}, v{t+4}, v{t+3}")
        e(f"v_mul_u32_u24 v{t+4}, {WB_PITCH}, v{t+4}")
        e(f"v_mul_u32_u24 v{t}, 18, v{t}")
        e(f"v_add_u32 v{t}, v{t}, v{t+2}")
        e(f"v_lshl_add_u32 v{t+4}, v{t}, 1, v{t+4}")
        if i == 2:
            e(f"v_cmp_gt_u32 vcc, 1296, v{E}")
            e(f"v_mov_b32 v{t}, {DUMP - WB0}")
            e("s_nop 1")
            e(f"v_cndmask_b32 v{t+4}, v{t}, v{t+4}, vcc")
        if WB0:
            e(f"v_add_u32 v{t+4}, {WB0}, v{t+4}")
        e(f"ds_write_b16 v{t+4}, v{vD+i}")


def softmax_pm(e, P, E1, E2, OUT, t, sL):
    mx, mn = t, t + 1
    e(f"v_max3_f32 v{mx}, v{P}, v{P+1}, v{P+2}")
    e(f"v_min3_f32 v{mn}, v{P}, v{P+1}, v{P+2}")
    for i in range(3, 17, 2):
        e(f"v_max3_f32 v{mx}, v{mx}, v{P+i}, v{P+i+1}")
        e(f"v_min3_f32 v{mn}, v{mn}, v{P+i}, v{P+i+1}")
    e(f"v_max_f32 v{mx}, v{mx}, v{P+17}")
    e(f"v_min_f32 v{mn}, v{mn}, v{P+17}")
    cp, cm = t + 2, t + 4
    e(f"v_mul_f32 v{cp}, s{sL}, v{mx}")
    e(f"v_mul_f32 v{cm}, s{sL}, v{mn}")
    for i in range(0, 18, 2):
        e(f"v_pk_fma_f32 {vr(E1+i,2)}, {vr(P+i,2)}, {sr(sL,2)}, {vr(cp,2)} op_sel_hi:[1,1,0] neg_lo:[0,0,1] neg_hi:[0,0,1]")
        e(f"v_pk_fma_f32 {vr(E2+i,2)}, {vr(P+i,2)}, {sr(sL,2)}, {vr(cm,2)} op_sel_hi:[1,1,0] neg_lo:[1,0,0] neg_hi:[1,0,0]")
    for i in range(18):
        e(f"v_exp_f32 v{E1+i}, v{E1+i}")
        e(f"v_exp_f32 v{E2+i}, v{E2+i}")
    s1, s2 = t + 2, t + 4
    e(f"v_pk_add_f32 {vr(s1,2)}, {vr(E1,2)}, {vr(E1+2,2)}")
    e(f"v_pk_add_f32 {vr(s2,2)}, {vr(E2,2)}, {vr(E2+2,2)}")
    for i in range(4, 18, 2):
        e(f"v_pk_add_f32 {vr(s1,2)}, {vr(s1,2)}, {vr(E1+i,2)}")
        e(f"v_pk_add_f32 {vr(s2,2)}, {vr(s2,2)}, {vr(E2+i,2)}")
    e(f"v_add_f32 v{s1}, v{s1}, v{s1+1}")
    e(f"v_add_f32 v{s2}, v{s2}, v{s2+1}")
    e(f"v_rcp_f32 v{s1}, v{s1}")
    e(f"v_rcp_f32 v{s2}, v{s2}")
    e("s_nop 0")
    for i in range(0, 18, 2):
        e(f"v_pk_mul_f32 {vr(E1+i,2)}, {vr(E1+i,2)}, {vr(s1,2)} op_sel_hi:[1,0]")
        e(f"v_pk_mul_f32 {vr(E2+i,2)}, {vr(E2+i,2)}, {vr(s2,2)} op_sel_hi:[1,0]")
    for i in range(0, 18, 2):
        e(f"v_cvt_pk_bf16_f32 v{OUT+i//2}, v{E1+i}, v{E1+i+1}")
        e(f"v_cvt_pk_bf16_f32 v{OUT+9+i//2}, v{E2+i}, v{E2+i+1}")


def chunk_decode(e, sTile, vq, vS, vC):
    e(f"s_lshl_b32 s{sTile+1}, s{sTile}, 2")
    e(f"v_add_u32 v{vC}, s{sTile+1}, v{vq}")
    e(f"v_min_u32 v{vC}, 26, v{vC}")
    e(f"v_mul_u32_u24 v{vS}, 57, v{vC}")
    e(f"v_lshrrev_b32 v{vS}, 9, v{vS}")
    e(f"v_mul_u32_u24 v{vS+1}, 9, v{vS}")
    e(f"v_sub_u32 v{vC}, v{vC}, v{vS+1}")


WSLOT = 16384
XR0 = 4 * WSLOT
XSLOT = 18432
K1_WB0 = XR0 + 3 * XSLOT
K1_ONES = K1_WB0 + WB_BYTES
K1_DUMP2 = K1_ONES + 16
K1_LDS = K1_DUMP2 + 16
TA_PITCH = 304
PHI0 = 40960
PHI_PITCH = 336
TB_PITCH = 496
OB0 = 73728


def chunk_of(T, g):
    p = 4 * T + g
    pad = p > 26
    p = min(p, 26)
    return p // 9, p % 9, pad


def lit(fn, T):
    return sum((fn(*chunk_of(T, g)) & 0xff) << (8 * g) for g in range(4))


LITW = [lit(lambda s, c, p: 18 * ((s + 1) % 3) + c, T) for T in range(7)]
LITA = [lit(lambda s, c, p: 36 if (s == 2 or p) else 18 * s + c, T) for T in range(7)]
LITQ = [lit(lambda s, c, p: c if (s == 2 and not p) else 255, T) for T in range(7)]
LITB = [lit(lambda s, c, p: 5 if p else 20 * ((s + 1) % 3) + (c if c < 5 else c + 1), T) for T in range(7)]


def wb_issue_loads2(e, sPhi, sB, vTid, vE, vD, tmp, nth):
    n = (1296 + nth - 1) // nth
    for i in range(n):
        e(f"v_add_u32 v{vE+i}, {nth*i}, v{vTid}")
        e(f"v_lshlrev_b32 v{tmp}, 1, v{vE+i}")
        if (i + 1) * nth > 1296:
            e(f"v_cmp_gt_u32 vcc, 1296, v{vE+i}")
            e(f"v_mov_b32 v{tmp+1}, 0x{OOB:x}")
            e("s_nop 1")
            e(f"v_cndmask_b32 v{tmp}, v{tmp+1}, v{tmp}, vcc")
        e(f"buffer_load_ushort v{vD+i}, v{tmp}, {sr(sPhi,4)}, s{sB} offen")
    return n


def wb_scatter2(e, WB0, DUMPA, vE, vD, t, nth):
    n = (1296 + nth - 1) // nth
    for i in range(n):
        E = vE + i
        e(f"v_mul_u32_u24 v{t}, 3237, v{E}")
        e(f"v_lshrrev_b32 v{t}, 20, v{t}")
        e(f"v_mul_u32_u24 v{t+1}, 324, v{t}")
        e(f"v_sub_u32 v{t+1}, v{E}, v{t+1}")
        e(f"v_mul_u32_u24 v{t+2}, 3641, v{t+1}")
        e(f"v_lshrrev_b32 v{t+2}, 16, v{t+2}")
        e(f"v_mul_u32_u24 v{t+3}, 18, v{t+2}")
        e(f"v_sub_u32 v{t+3}, v{t+1}, v{t+3}")
        e(f"v_lshrrev_b32 v{t+4}, 2, v{t+3}")
        e(f"v_lshlrev_b32 v{t+4}, 4, v{t+4}")
        e(f"v_lshl_add_u32 v{t+4}, v{t}, 2, v{t+4}")
        e(f"v_and_b32 v{t+3}, 3, v{t+3}")
        e(f"v_add_u32 v{t+4}, v{t+4}, v{t+3}")
        e(f"v_mul_u32_u24 v{t+4}, {WB_PITCH}, v{t+4}")
        e(f"v_mul_u32_u24 v{t}, 18, v{t}")
        e(f"v_add_u32 v{t}, v{t}, v{t+2}")
        e(f"v_lshl_add_u32 v{t+4}, v{t}, 1, v{t+4}")
        if (i + 1) * nth > 1296:
            e(f"v_cmp_gt_u32 vcc, 1296, v{E}")
            e(f"v_mov_b32 v{t}, {DUMPA - WB0}")
            e("s_nop 1")
            e(f"v_cndmask_b32 v{t+4}, v{t}, v{t+4}, vcc")
        if WB0:
            e(f"v_add_u32 v{t+4}, {WB0}, v{t+4}")
        e(f"ds_write_b16 v{t+4}, v{vD+i}")


def interleave(e, mf, other, start=1, per=1):
    oi = 0
    for i, m in enumerate(mf):
        e(m)
        if i >= start - 1:
            for _ in range(per):
                if oi < len(other):
                    e(other[oi]); oi += 1
    while oi < len(other):
        e(other[oi]); oi += 1


def mf(d, a, b, c=None):
    cs = vr(d, 4) if c is None else c
    return f"v_mfma_f32_16x16x32_bf16 {vr(d,4)}, {vr(a,4)}, {vr(b,4)}, {cs}"


def gen_k1(e):
    e.reset()
    e.s(3)
    e.label("k1_kernel")
    Lend = "k1_end"
    e("s_cmp_ge_u32 s2, 256")
    e(f"s_cbranch_scc1 {Lend}")
    stamp_init(e); stamp(e)
    sPA = e.s(4)
    sPB = e.s(4)
    sPP = e.s(2)
    sPW = e.s(2)
    e(f"s_load_dwordx4 {sr(sPA,4)}, s[0:1], 0")
    e(f"s_load_dwordx2 {sr(sPP,2)}, s[0:1], 16")
    e(f"s_load_dwordx4 {sr(sPB,4)}, s[0:1], 32")
    e(f"s_load_dwordx2 {sr(sPW,2)}, s[0:1], 72")
    sJ, sI, sBr, sRb, sHg, sW, sMi, sNi = [e.s() for _ in range(8)]
    sT = e.s(4)
    e(f"s_and_b32 s{sJ}, s2, 7")
    e(f"s_lshr_b32 s{sI}, s2, 3")
    e(f"s_lshr_b32 s{sBr}, s{sJ}, 2")
    e(f"s_lshr_b32 s{sT}, s{sJ}, 1")
    e(f"s_and_b32 s{sT}, s{sT}, 1")
    e(f"s_lshl_b32 s{sT}, s{sT}, 3")
    e(f"s_lshr_b32 s{sRb}, s{sI}, 2")
    e(f"s_add_u32 s{sRb}, s{sRb}, s{sT}")
    e(f"s_and_b32 s{sT}, s{sJ}, 1")
    e(f"s_lshl_b32 s{sT}, s{sT}, 2")
    e(f"s_and_b32 s{sHg}, s{sI}, 3")
    e(f"s_add_u32 s{sHg}, s{sHg}, s{sT}")
    vTid = e.v()
    vL, vL15, vG, vR4, vC4 = [e.v() for _ in range(5)]
    vt = e.v(8, 2)
    e(f"v_lshrrev_b32 v{vt}, 6, v0")
    e(f"v_and_b32 v{vL}, 63, v0")
    e(f"v_readfirstlane_b32 s{sW}, v{vt}")
    e(f"v_and_b32 v{vL15}, 15, v0")
    e(f"v_lshrrev_b32 v{vG}, 4, v{vL}")
    e(f"v_bfe_u32 v{vR4}, v0, 2, 2")
    e(f"v_and_b32 v{vC4}, 3, v0")
    e(f"s_and_b32 s{sMi}, s{sW}, 1")
    e(f"s_bfe_u32 s{sNi}, s{sW}, 0x10001")
    sX = e.s(4)
    sWq = e.s(4)
    sWs = e.s(4)
    sPhi = e.s(4)
    sRow0 = e.s()
    sTl = e.s(2)
    sIt = e.s()
    sDl = e.s()
    sSl = e.s()
    sWlim, sXh, sLx = e.s(), e.s(), e.s()
    e(f"s_lshl_b32 s{sRow0}, s{sRb}, 7")
    e("s_waitcnt lgkmcnt(0)")
    e(f"s_cmp_eq_u32 s{sBr}, 0")
    for i in range(4):
        e(f"s_cselect_b32 s{sPA+i}, s{sPA+i}, s{sPB+i}")
    srd(e, sX, sPA, X_BYTES)
    srd(e, sWq, sPA + 2, WQKV_BYTES)
    srd(e, sWs, sPW, WS_BYTES)
    srd(e, sPhi, sPP, WPHI_BYTES)
    vbase = e.vn
    ACC = e.v(124, 4)
    FW = e.v(56, 4)
    FX = e.v(40, 4)
    vRA = e.v(11)
    vtop = e.vn
    stn0 = getattr(e, "stn", 0)

    def loader(isB):
        tag = "B" if isB else "A"
        e.label(f"k1_{tag}_load")
        e.stn = stn0
        sLw = sMi
        sWoff, sM0, sXo = sNi, sSl, sDl
        e(f"s_sub_u32 s{sLw}, s{sW}, 4")
        vD = vbase
        vXo = vbase + 2
        vWE = vbase + 4
        vWD = vbase + 10
        tmp = vbase + 16
        vT2 = vbase + 24
        if not isB:
            e(f"v_subrev_u32 v{vT2}, 256, v0")
            e(f"s_mul_i32 s{sT}, s{sHg}, {4*324*2}")
            wb_issue_loads2(e, sPhi, sT, vT2, vWE, vWD, vt, 256)
        e(f"s_and_b32 s{sT}, s{sLw}, 1")
        e(f"s_lshl_b32 s{sT}, s{sT}, 3")
        e(f"s_mul_i32 s{sT+1}, s{sHg}, 144")
        for hf in range(2):
            p, r, c, sg = vt, vt + 1, vt + 2, vt + 3
            e(f"s_sub_u32 s{sT+2}, {64*hf}, s{sT}")
            e(f"v_add_u32 v{p}, s{sT+2}, v{vL}")
            e(f"v_and_b32 v{vt+4}, 0xff, v{p}")
            e(f"v_mul_u32_u24 v{r}, 2185, v{vt+4}")
            e(f"v_lshrrev_b32 v{r}, 16, v{r}")
            e(f"v_mul_u32_u24 v{c}, 30, v{r}")
            e(f"v_sub_u32 v{c}, v{vt+4}, v{c}")
            e(f"v_mul_u32_u24 v{sg}, 57, v{c}")
            e(f"v_lshrrev_b32 v{sg}, 9, v{sg}")
            e(f"v_mul_u32_u24 v{vt+4}, 9, v{sg}")
            e(f"v_sub_u32 v{vt+4}, v{c}, v{vt+4}")
            e(f"v_mul_u32_u24 v{r}, 3456, v{r}")
            e(f"v_mul_u32_u24 v{sg}, 1152, v{sg}")
            e(f"v_add3_u32 v{r}, v{r}, v{sg}, s{sT+1}")
            e(f"v_lshl_add_u32 v{r}, v{vt+4}, 4, v{r}")
            e(f"v_cmp_gt_u32 vcc, 120, v{p}")
            e(f"v_cmp_gt_u32 s[{sT+2}:{sT+3}], 27, v{c}")
            e(f"v_mov_b32 v{vt+5}, 0x{OOB:x}")
            e(f"s_and_b64 vcc, vcc, s[{sT+2}:{sT+3}]")
            e("s_nop 1")
            e(f"v_cndmask_b32 v{vD+hf}, v{vt+5}, v{r}, vcc")
        e(f"v_and_b32 v{vt}, 7, v{vL}")
        e(f"v_xor_b32 v{vt}, v{vt}, v{vG}")
        e(f"v_lshrrev_b32 v{vt+1}, 3, v{vL}")
        e(f"v_mul_u32_u24 v{vt+1}, 1152, v{vt+1}")
        e(f"v_lshl_add_u32 v{vXo}, v{vt}, 4, v{vt+1}")
        e(f"v_xor_b32 v{vXo+1}, 64, v{vXo}")
        sBlk = sT + 2
        sXs_ = sT + 3
        e(f"s_lshr_b32 s{sT}, s{sI}, 2")
        e(f"s_and_b32 s{sT+1}, s{sI}, 3")
        e(f"s_lshl_b32 s{sT+1}, s{sT+1}, 1")
        e(f"s_add_u32 s{sBlk}, s{sT}, s{sT+1}")
        e(f"s_sub_u32 s{sT}, s{sBlk}, 9")
        e(f"s_cmp_ge_u32 s{sBlk}, 9")
        e(f"s_cselect_b32 s{sBlk}, s{sT}, s{sBlk}")
        e(f"s_mul_i32 s{sWoff}, s{sBlk}, {64*3456}")
        e(f"s_mul_i32 s{sT}, s{sLw}, {2*13824}")
        e(f"s_add_u32 s{sWoff}, s{sWoff}, s{sT}")
        e(f"s_add_u32 s{sWlim}, s{sT}, {576*3456}")
        e(f"s_lshl_b32 s{sM0}, s{sLw}, 12")
        e(f"s_lshl_b32 s{sT}, s{sLw}, 4")
        e(f"s_add_u32 s{sT}, s{sT}, s{sRow0}")
        e(f"s_mul_i32 s{sXo}, s{sT}, 1152")
        if isB:
            e(f"s_sub_u32 s{sT}, s{sRow0}, 16")
            e(f"s_max_i32 s{sT}, s{sT}, 0")
            e(f"s_mul_i32 s{sXh}, s{sT}, 1152")
        e(f"s_lshl_b32 s{sLx}, s{sLw}, 11")
        e(f"s_add_u32 s{sLx}, s{sLx}, 2048")
        e(f"s_mov_b32 s{sXs_}, {XR0}")
        e(f"s_mov_b32 s{sIt}, 0")

        def issue_x(hh, lim):
            e(f"s_lshl_b32 s{sTl}, s{sBlk}, 7")
            e(f"s_cmp_lt_u32 s{sIt}, {lim}")
            e(f"s_cselect_b32 s{sTl}, s{sTl}, 0x{OOB:x}")
            e(f"s_add_u32 s{sTl+1}, s{sXs_}, s{sLx}")
            for i in range(2):
                e(f"s_add_u32 m0, s{sTl+1}, {hh*8192 + i*1024}")
                e(f"s_add_u32 s{sT}, s{sTl}, s{sXo}")
                if hh or i:
                    e(f"s_add_u32 s{sT}, s{sT}, {(hh*64 + i*8)*1152}")
                e(f"buffer_load_dwordx4 v{vXo+i}, {sr(sX,4)}, s{sT} offen lds")
            if isB:
                lab = e.newlab("k1h")
                e(f"s_cmp_lg_u32 s{sLw}, 0")
                e(f"s_cbranch_scc1 {lab}")
                e(f"s_add_u32 m0, s{sXs_}, {hh*1024}")
                e(f"s_add_u32 s{sT}, s{sTl}, s{sXh}")
                if hh:
                    e(f"s_add_u32 s{sT}, s{sT}, {8*1152}")
                e(f"buffer_load_dwordx4 v{vXo+hh}, {sr(sX,4)}, s{sT} offen lds")
                e.label(lab)
            if hh:
                e(f"s_add_u32 s{sBlk}, s{sBlk}, 1")
                e(f"s_cmp_eq_u32 s{sBlk}, 9")
                e(f"s_cselect_b32 s{sBlk}, 0, s{sBlk}")
                e(f"s_add_u32 s{sXs_}, s{sXs_}, {XSLOT}")
                e(f"s_cmp_eq_u32 s{sXs_}, {XR0 + 3*XSLOT}")
                e(f"s_cselect_b32 s{sXs_}, {XR0}, s{sXs_}")

        def issue(par):
            e(f"s_cmp_lt_u32 s{sIt}, 18")
            e(f"s_cselect_b32 s{sTl+1}, s{sWoff}, 0x{OOB:x}")
            for j in range(2):
                for hf in range(2):
                    e(f"s_add_u32 m0, s{sM0}, {j*2048 + hf*1024}")
                    e(f"s_add_u32 s{sTl}, s{sTl+1}, {j*13824}")
                    e(f"buffer_load_dwordx4 v{vD+hf}, {sr(sWq,4)}, s{sTl} offen lds")
            issue_x(par ^ 1, 17)
            e(f"s_add_u32 s{sWoff}, s{sWoff}, {32*3456}")
            e(f"s_sub_u32 s{sTl}, s{sWoff}, {576*3456}")
            e(f"s_cmp_ge_u32 s{sWoff}, s{sWlim}")
            e(f"s_cselect_b32 s{sWoff}, s{sTl}, s{sWoff}")
            e(f"s_add_u32 s{sM0}, s{sM0}, {WSLOT}")
            e(f"s_and_b32 s{sM0}, s{sM0}, 0xffff")
            e(f"s_add_u32 s{sIt}, s{sIt}, 1")

        issue_x(0, 17)
        issue(0)
        issue(1)
        stamp(e)
        if not isB:
            lds_zero(e, K1_WB0, WB_BYTES, vT2, tmp, 256)
            e(f"v_mov_b32 v{tmp}, 0x3f803f80")
            e(f"v_mov_b32 v{tmp+1}, 0x3f803f80")
            e(f"v_mov_b32 v{tmp+2}, {K1_ONES}")
            e(f"ds_write_b64 v{tmp+2}, {vr(tmp,2)}")
        e(f"s_waitcnt vmcnt(6) lgkmcnt(0)")
        e("s_barrier")
        stamp(e)
        issue(0)
        issue(1)
        if not isB:
            wb_scatter2(e, K1_WB0, K1_DUMP2, vWE, vWD, tmp, 256)
        Lp = f"k1_{tag}_lloop"
        e.label(Lp)
        for par in range(2):
            e(f"s_waitcnt vmcnt(12)")
            e("s_barrier")
            issue(par)
        e(f"s_cmp_lt_u32 s{sIt}, 22")
        e(f"s_cbranch_scc1 {Lp}")
        stamp(e)
        e("s_waitcnt vmcnt(0) lgkmcnt(0)")
        e("s_barrier")
        stamp(e)
        e(f"s_branch k1_{tag}_epi")

    def lit_sel(dst, L, t, isB):
        if isB:
            e(f"s_cmp_eq_u32 s{sMi}, 0")
            e(f"s_cselect_b32 s{dst}, 0x{L[t]:x}, 0x{L[(t+3)%7]:x}") if False else (
                e(f"s_mov_b32 s{dst}, 0x{L[t]:x}"), e(f"s_mov_b32 s{dst+1}, 0x{L[(t+3)%7]:x}"),
                e(f"s_cselect_b32 s{dst}, s{dst}, s{dst+1}"))
        else:
            e(f"s_mov_b32 s{dst}, 0x{L[t]:x}")

    def compute(isB):
        tag = "B" if isB else "A"
        nrt = 5 if isB else 4
        stamp(e)
        base = vt + 6
        e(f"v_lshlrev_b32 v{base}, 12, v{vG}")
        e(f"v_and_b32 v{vt}, 1, v{vG}")
        e(f"v_lshl_add_u32 v{base}, v{vt}, 7, v{base}")
        e(f"v_mul_u32_u24 v{vt}, 480, v{vR4}")
        e(f"s_mul_i32 s{sT+2}, s{sNi}, 72")
        e(f"v_add3_u32 v{base}, v{base}, v{vt}, s{sT+2}")
        e(f"v_lshlrev_b32 v{vt+1}, 3, v{vC4}")
        for t in range(7):
            lit_sel(sT, LITW, t, isB)
            e(f"v_bfe_u32 v{vt}, s{sT}, v{vt+1}, 8")
            e(f"v_lshl_add_u32 v{vRA+t}, v{vt}, 3, v{base}")
        e(f"v_lshrrev_b32 v{vt}, 1, v{vL15}")
        e(f"v_xor_b32 v{vt}, v{vt}, v{vG}")
        e(f"v_lshlrev_b32 v{vt+1}, 7, v{vL15}")
        e(f"v_lshl_add_u32 v{vt}, v{vt}, 4, v{vt+1}")
        e(f"v_add_u32 v{vRA+9}, {XR0}, v{vt}")
        e(f"v_xor_b32 v{vRA+10}, 64, v{vRA+9}")
        e(f"s_lshl_b32 s{sT}, s{sMi}, 13")
        e(f"s_add_u32 s{sT}, s{sT}, 2048")
        e(f"v_add_u32 v{vRA+7}, s{sT}, v{vRA+9}")
        e(f"v_add_u32 v{vRA+8}, s{sT}, v{vRA+10}")
        for i in range(124 if isB else 112):
            e(f"v_mov_b32 v{ACC+i}, 0")

        def reads(fb):
            L = []
            for rt in range(4):
                L.append(f"ds_read_b128 {vr(FX + fb*20 + rt*4, 4)}, v{vRA+7+fb} offset:{rt*2048}")
            if isB:
                L.append(f"ds_read_b128 {vr(FX + fb*20 + 16, 4)}, v{vRA+9+fb}")
            for t in range(7):
                for h in range(2):
                    L.append(f"ds_read_b64_tr_b16 {vr(FW + fb*28 + t*4 + h*2, 2)}, v{vRA+t} offset:{h*2048}")
            return L

        def adv(fb):
            L = []
            if fb == 0:
                L += [f"s_add_u32 s{sSl}, s{sSl}, 1", f"s_cmp_eq_u32 s{sSl}, 3",
                      f"s_cselect_b32 s{sDl}, s{sTl}, s{sTl+1}", f"s_cselect_b32 s{sSl}, 0, s{sSl}"]
                for t in ([7, 9, 8, 10] if isB else [7, 8]):
                    L.append(f"v_add_u32 v{vRA+t}, s{sDl}, v{vRA+t}")
            for t in range(7):
                L.append(f"v_add_u32 v{vRA+t}, {WSLOT}, v{vRA+t}")
                L.append(f"v_and_b32 v{vRA+t}, 0xffff, v{vRA+t}")
            return L

        e(f"s_mov_b32 s{sTl}, {(-XSLOT*2) & 0xffffffff}")
        e(f"s_mov_b32 s{sTl+1}, {XSLOT}")
        e(f"s_mov_b32 s{sSl}, 0")
        e(f"s_mov_b32 s{sIt}, 0")
        e("s_barrier")
        stamp(e)
        for r in reads(0):
            e(r)
        Lp = f"k1_{tag}_cloop"
        e.label(Lp)
        for fb in range(2):
            e("s_waitcnt lgkmcnt(0)")
            e("s_barrier")
            M = []
            for t in range(7):
                for rt in range(4):
                    M.append(mf(ACC + (t * 4 + rt) * 4, FW + fb * 28 + t * 4, FX + fb * 20 + rt * 4))
                if isB and t < 3:
                    M.append(mf(ACC + 112 + t * 4, FW + fb * 28 + t * 4, FX + fb * 20 + 16))
            a = adv(fb ^ 1)
            oth = a + reads(fb ^ 1)
            oi = 0
            for i, m in enumerate(M):
                e(m)
                n = 3 if oi < len(a) else 1
                for _ in range(n):
                    if oi < len(oth):
                        e(oth[oi]); oi += 1
            assert oi == len(oth)
        e(f"s_add_u32 s{sIt}, s{sIt}, 1")
        e(f"s_cmp_lt_u32 s{sIt}, 9")
        e(f"s_cbranch_scc1 {Lp}")
        stamp(e)
        e("s_waitcnt lgkmcnt(0)")
        e("s_barrier")
        stamp(e)

    e(f"s_cmp_eq_u32 s{sBr}, 1")
    e("s_cbranch_scc1 k1_B")
    e(f"s_cmp_ge_u32 s{sW}, 4")
    e("s_cbranch_scc1 k1_A_load")
    compute(False)
    PK = FW
    for u in range(28):
        a = ACC + u * 4
        e(f"v_cvt_pk_bf16_f32 v{PK+2*u}, v{a}, v{a+1}")
        e(f"v_cvt_pk_bf16_f32 v{PK+2*u+1}, v{a+2}, v{a+3}")
    vRowL = vt + 6
    vG8 = vt + 7
    e(f"s_lshl_b32 s{sT+2}, s{sMi}, 6")
    e(f"v_add_u32 v{vt}, s{sT+2}, v{vL15}")
    e(f"v_mul_u32_u24 v{vRowL}, {TA_PITCH}, v{vt}")
    e(f"s_mul_i32 s{sT+3}, s{sNi}, 72")
    e(f"v_add_u32 v{vRowL}, s{sT+3}, v{vRowL}")
    e(f"v_lshlrev_b32 v{vG8}, 3, v{vG}")
    for t in range(5):
        e(f"s_mov_b32 s{sT}, 0x{LITA[t]:x}")
        e(f"v_bfe_u32 v{vt}, s{sT}, v{vG8}, 8")
        e(f"v_lshl_add_u32 v{vt}, v{vt}, 3, v{vRowL}")
        if t == 4:
            e(f"v_cmp_lt_u32 vcc, 1, v{vG}")
            e(f"v_subrev_u32 v{vt+1}, s{sT+3}, v{vt}")
            e("s_nop 0")
            e(f"v_cndmask_b32 v{vt}, v{vt}, v{vt+1}, vcc")
        for rt in range(4):
            e(f"ds_write_b64 v{vt}, {vr(PK + (t*4+rt)*2, 2)} offset:{rt*16*TA_PITCH}")
    e(f"s_lshl_b32 s{sT}, s{sRb}, 3")
    e(f"s_lshl_b32 s{sT+1}, s{sMi}, 2")
    e(f"s_add_u32 s{sT}, s{sT}, s{sT+1}")
    e(f"s_mul_i32 s{sT}, s{sT}, 72")
    e(f"s_mul_i32 s{sT+1}, s{sHg}, 9")
    e(f"s_add_u32 s{sT}, s{sT}, s{sT+1}")
    e(f"s_lshl_b32 s{sT}, s{sT}, 8")
    e(f"s_add_u32 s{sT}, s{sT}, {WS_Q}")
    e(f"s_mul_i32 s{sT+2}, s{sNi}, 9")
    for t in range(4, 7):
        e(f"s_mov_b32 s{sT+1}, 0x{LITQ[t]:x}")
        e(f"v_bfe_u32 v{vt}, s{sT+1}, v{vG8}, 8")
        e(f"v_cmp_ne_u32 vcc, 255, v{vt}")
        e(f"v_add_u32 v{vt}, s{sT+2}, v{vt}")
        e(f"v_lshrrev_b32 v{vt+1}, 1, v{vt}")
        e(f"v_and_b32 v{vt}, 1, v{vt}")
        e(f"v_lshlrev_b32 v{vt+1}, 8, v{vt+1}")
        e(f"v_lshl_add_u32 v{vt+1}, v{vt}, 3, v{vt+1}")
        e(f"v_lshl_add_u32 v{vt+1}, v{vL15}, 4, v{vt+1}")
        e(f"v_mov_b32 v{vt+2}, 0x{OOB:x}")
        e(f"v_cndmask_b32 v{vt+3+(t-4)}, v{vt+2}, v{vt+1}, vcc")
    for rt in range(4):
        e(f"s_add_u32 s{sT+1}, s{sT}, {rt*18432}")
        for t in range(4, 7):
            e(f"buffer_store_dwordx2 {vr(PK + (t*4+rt)*2, 2)}, v{vt+3+(t-4)}, {sr(sWs,4)}, s{sT+1} offen")
    e.label("k1_A_epi")
    e("s_waitcnt lgkmcnt(0)")
    e("s_barrier")
    stamp(e)
    XR = ACC + 64
    BK = FX
    AW = ACC
    P = FX + 12
    e(f"s_lshl_b32 s{sT}, s{sW}, 4")
    e(f"v_add_u32 v{vt}, s{sT}, v{vL15}")
    e(f"v_mul_u32_u24 v{vt+1}, {TA_PITCH}, v{vt}")
    e(f"v_lshl_add_u32 v{vt+1}, v{vG}, 4, v{vt+1}")
    for st in range(3):
        e(f"ds_read_b128 {vr(BK+st*4,4)}, v{vt+1} offset:{st*64}")
    e(f"v_mul_u32_u24 v{vt+2}, {WB_PITCH}, v{vL15}")
    e(f"v_lshl_add_u32 v{vt+2}, v{vG}, 4, v{vt+2}")
    e(f"v_add_u32 v{vt+3}, {K1_WB0}, v{vt+2}")
    for cf in range(5):
        for st in range(3):
            e(f"ds_read_b128 {vr(AW+(cf*3+st)*4,4)}, v{vt+3} offset:{cf*16*WB_PITCH + st*64}")
    sL = e.s(2)
    e(f"s_mov_b32 s{sL}, 0x{LOG2E:x}")
    e(f"s_mov_b32 s{sL+1}, 0x{LOG2E:x}")
    for cf in range(5):
        e(f"s_waitcnt lgkmcnt({12 - 3*cf})")
        for st in range(3):
            mfma(e, P + cf * 4, AW + (cf * 3 + st) * 4, BK + st * 4, "0" if st == 0 else None)
    e("s_nop 7")
    E1 = XR
    E2 = XR + 18
    PH = XR + 36
    softmax_pm(e, P, E1, E2, PH, XR + 56 - 4 + 4, sL) if False else softmax_pm(e, P, E1, E2, PH, FW, sL)
    e(f"v_mul_u32_u24 v{vt+1}, {PHI_PITCH}, v{vt}")
    e(f"v_mul_u32_u24 v{vt+2}, 80, v{vG}")
    e(f"v_add_u32 v{vt+1}, v{vt+1}, v{vt+2}")
    for i in range(4):
        e(f"ds_write_b128 v{vt+1}, {vr(PH+i*4,4)} offset:{PHI0 + i*16}")
    e(f"ds_write_b64 v{vt+1}, {vr(PH+16,2)} offset:{PHI0 + 64}")
    sHh, sXx = sT + 2, sT + 3
    e(f"s_lshr_b32 s{sHh}, s{sW}, 1")
    e(f"s_and_b32 s{sXx}, s{sW}, 1")
    e(f"v_lshl_add_u32 v{vt}, v{vG}, 3, v{vR4}")
    e(f"v_mul_u32_u24 v{vt+1}, {PHI_PITCH}, v{vt}")
    e(f"v_lshl_add_u32 v{vt+1}, v{vC4}, 3, v{vt+1}")
    e(f"s_mul_i32 s{sT}, s{sHh}, 80")
    e(f"s_add_u32 s{sT}, s{sT}, {PHI0}")
    e(f"v_add_u32 v{vt+1}, s{sT}, v{vt+1}")
    e(f"v_mul_u32_u24 v{vt+2}, {TA_PITCH}, v{vt}")
    e(f"s_lshr_b32 s{sT}, s{sHh}, 1")
    e(f"s_mul_i32 s{sT}, s{sT}, 72")
    e(f"s_add_u32 s{sT}, s{sT}, 144")
    e(f"s_and_b32 s{sT+1}, s{sHh}, 1")
    e(f"s_mul_i32 s{sT+1}, s{sT+1}, 40")
    e(f"s_cmp_eq_u32 s{sXx}, 0")
    e(f"s_cselect_b32 s{sT+1}, s{sT+1}, 32")
    e(f"s_add_u32 s{sT}, s{sT}, s{sT+1}")
    e(f"v_lshl_add_u32 v{vt+3}, v{vC4}, 3, v{vt+2}")
    e(f"v_add_u32 v{vt+3}, s{sT}, v{vt+3}")
    sMask = e.s(2)
    e(f"v_cmp_lt_u32 {sr(sMask,2)}, 0, v{vC4}")
    e(f"s_cmp_eq_u32 s{sXx}, 0")
    e(f"s_cselect_b64 {sr(sMask,2)}, 0, {sr(sMask,2)}")
    e(f"v_mov_b32 v{vt+4}, {K1_ONES}")
    BA = FW + 8
    for ks in range(4):
        for h in range(2):
            off = (ks * 32 + h * 4)
            e(f"v_add_u32 v{BA+ks*2+h}, {off*TA_PITCH}, v{vt+3}")
            e(f"v_cndmask_b32 v{BA+ks*2+h}, v{BA+ks*2+h}, v{vt+4}, {sr(sMask,2)}")
    e("s_waitcnt lgkmcnt(0)")
    e("s_barrier")
    stamp(e)
    AF = ACC
    BF = ACC + 48
    KV = FX
    for ks in range(4):
        for h in range(2):
            off = (ks * 32 + h * 4)
            e(f"ds_read_b64_tr_b16 {vr(BF+ks*4+h*2,2)}, v{BA+ks*2+h}")
            for ft in range(3):
                e(f"ds_read_b64_tr_b16 {vr(AF+(ks*3+ft)*4+h*2,2)}, v{vt+1} offset:{off*PHI_PITCH + ft*32}")
    e(f"s_and_b32 s{sT+1}, s{sHh}, 1")
    e(f"s_lshl_b32 s{sT}, s{sT+1}, 1")
    e(f"v_add_u32 v{vt}, s{sT}, v{vL15}")
    e(f"v_subrev_u32 v{vt+1}, s{sT}, v{vL15}")
    e(f"s_xor_b32 s{sT+1}, s{sT+1}, 1")
    e(f"s_lshl_b32 s{sT+1}, s{sT+1}, 4")
    e(f"v_cmp_gt_u32 vcc, 2, v{vt+1}")
    e(f"v_add_u32 v{vt+1}, s{sT+1}, v{vt+1}")
    e(f"v_mov_b32 v{vt+2}, 0x10000")
    e("s_nop 0")
    e(f"v_cndmask_b32 v{vt+1}, v{vt+2}, v{vt+1}, vcc")
    e(f"v_cmp_eq_u32 vcc, 4, v{vL15}")
    e("s_nop 1")
    e(f"v_cndmask_b32 v{vt+1}, v{vt+1}, 18, vcc")
    e(f"s_cmp_eq_u32 s{sXx}, 0")
    e(f"s_cselect_b64 vcc, -1, 0")
    e("s_nop 1")
    e(f"v_cndmask_b32 v{vt}, v{vt+1}, v{vt}, vcc")
    e(f"v_mul_u32_u24 v{vt}, 144, v{vt}")
    e(f"v_lshl_add_u32 v{vt}, v{vG}, 4, v{vt}")
    e(f"s_lshl_b32 s{sT}, s{sRb}, 5")
    e(f"s_lshl_b32 s{sT+1}, s{sHg}, 2")
    e(f"s_add_u32 s{sT}, s{sT}, s{sT+1}")
    e(f"s_add_u32 s{sT}, s{sT}, s{sHh}")
    e(f"s_mul_i32 s{sT}, s{sT}, 2736")
    e(f"s_add_u32 s{sT}, s{sT}, {WS_P}")
    e(f"v_cmp_eq_u32 vcc, 0, v{vG}")
    e(f"v_mov_b32 v{vt+2}, 0x{OOB:x}")
    e("s_nop 1")
    e(f"v_cndmask_b32 v{vt+1}, v{vt+2}, v{vt}, vcc")
    for ks in range(4):
        e(f"s_waitcnt lgkmcnt({min(15, 24 - 8*ks)})" if ks < 3 else "s_waitcnt lgkmcnt(0)")
        for ft in range(3):
            mfma(e, KV + ft * 4, AF + (ks * 3 + ft) * 4, BF + ks * 4, "0" if ks == 0 else None)
    e("s_nop 7")
    e("s_nop 1")
    e(f"buffer_store_dwordx4 {vr(KV,4)}, v{vt}, {sr(sWs,4)}, s{sT} offen")
    e(f"buffer_store_dwordx4 {vr(KV+4,4)}, v{vt}, {sr(sWs,4)}, s{sT} offen offset:64")
    e(f"buffer_store_dwordx4 {vr(KV+8,4)}, v{vt+1}, {sr(sWs,4)}, s{sT} offen offset:128")
    stamp_dump(e, sWs, 0, vt, sT)
    e("s_endpgm")
    loader(False)
    e.label("k1_B")
    e.stn = stn0
    e(f"s_cmp_ge_u32 s{sW}, 4")
    e("s_cbranch_scc1 k1_B_load")
    compute(True)
    PK = FW
    for u in range(31):
        a = ACC + u * 4
        e(f"v_cvt_pk_bf16_f32 v{PK+2*u}, v{a}, v{a+1}")
        e(f"v_cvt_pk_bf16_f32 v{PK+2*u+1}, v{a+2}, v{a+3}")
    vRowL = vt + 6
    vG8 = vt + 7
    e(f"v_mul_u32_u24 v{vRowL}, {TB_PITCH}, v{vL15}")
    e(f"s_mul_i32 s{sT+3}, s{sNi}, 80")
    e(f"v_add_u32 v{vRowL}, s{sT+3}, v{vRowL}")
    e(f"v_lshlrev_b32 v{vG8}, 3, v{vG}")
    sMo = sT + 2
    e(f"s_lshl_b32 s{sMo}, s{sMi}, 6")
    e(f"s_add_u32 s{sMo}, s{sMo}, 16")
    e(f"s_mul_i32 s{sMo}, s{sMo}, {TB_PITCH}")
    for t in range(7):
        lit_sel(sT, LITB, t, True)
        e(f"v_bfe_u32 v{vt}, s{sT}, v{vG8}, 8")
        e(f"v_lshl_add_u32 v{vt}, v{vt}, 3, v{vRowL}")
        e(f"v_add_u32 v{vt+1}, s{sMo}, v{vt}")
        for rt in range(4):
            e(f"ds_write_b64 v{vt+1}, {vr(PK + (t*4+rt)*2, 2)} offset:{rt*16*TB_PITCH}")
        if t < 3:
            e(f"ds_write_b64 v{vt}, {vr(PK + (28+t)*2, 2)}")
    e.label("k1_B_epi")
    base = ACC
    Q = base
    KK = base + 10
    VV = base + 90
    LG = base + 170
    assert LG + 8 <= vtop
    O = KK
    AL = KK + 20
    AH = KK + 28
    vM, vR, vS = vt + 4, vt + 5, vt + 6
    e(f"s_and_b32 s{sT}, s{sW}, 3")
    e(f"s_lshr_b32 s{sT+1}, s{sW}, 2")
    e(f"s_lshl_b32 s{sT+1}, s{sT+1}, 6")
    e(f"v_add_u32 v{vS}, s{sT+1}, v{vL}")
    e(f"v_add_u32 v{vt}, 2, v{vS}")
    e(f"v_mul_u32_u24 v{vt}, {TB_PITCH}, v{vt}")
    e(f"s_lshr_b32 s{sT+2}, s{sT}, 1")
    e(f"s_mul_i32 s{sT+2}, s{sT+2}, 80")
    e(f"s_and_b32 s{sT+3}, s{sT}, 1")
    e(f"s_mul_i32 s{sTl}, s{sT+3}, 48")
    e(f"s_add_u32 s{sTl}, s{sTl}, s{sT+2}")
    e(f"v_add_u32 v{vM}, s{sTl}, v{vt}")
    e(f"s_lshl_b32 s{sTl}, s{sT+3}, 2")
    e(f"s_add_u32 s{sTl}, s{sTl}, s{sT+2}")
    e(f"s_add_u32 s{sTl}, s{sTl}, 32")
    e(f"v_add_u32 v{vR}, s{sTl}, v{vt}")
    vO = vt + 7
    e(f"v_mul_u32_u24 v{vO}, 144, v{vS}")
    e(f"s_mul_i32 s{sTl}, s{sT}, 36")
    e(f"s_add_u32 s{sTl}, s{sTl}, {OB0}")
    e(f"v_add_u32 v{vO}, s{sTl}, v{vO}")
    e(f"v_add_u32 v{vS}, s{sRow0}, v{vS}")
    sMk = e.s(16, 2)
    for w in range(1, 8):
        e(f"v_cmp_le_u32 {sr(sMk+2*w,2)}, {2*w}, v{vS}")
    e("s_waitcnt lgkmcnt(0)")
    e("s_barrier")
    stamp(e)

    def rdseg(dst, typ, w):
        off = (14 - 2 * w) * TB_PITCH + typ * 160
        e(f"ds_read_b128 {vr(dst,4)}, v{vM} offset:{off}")
        e(f"ds_read_b128 {vr(dst+4,4)}, v{vM} offset:{off+16}")
        e(f"ds_read_b32 v{dst+8}, v{vR} offset:{off}")

    rdseg(Q, 0, 0)
    for w in range(8):
        rdseg(KK + w * 10, 1, w)
    for w in range(8):
        e(f"v_mov_b32 v{LG+w}, 0")
    e("s_waitcnt lgkmcnt(12)")
    for w in range(4):
        rdseg(VV + w * 10, 2, w)
    for p in range(9):
        for w in range(4):
            e(f"v_dot2c_f32_bf16 v{LG+w}, v{Q+p}, v{KK+w*10+p}")
    e("s_waitcnt lgkmcnt(12)")
    for w in range(4, 8):
        rdseg(VV + w * 10, 2, w)
    for p in range(9):
        for w in range(4, 8):
            e(f"v_dot2c_f32_bf16 v{LG+w}, v{Q+p}, v{KK+w*10+p}")
    e(f"v_mov_b32 v{vt}, 0xf149f2ca")
    e("s_nop 2")
    for w in range(1, 8):
        e(f"v_cndmask_b32 v{LG+w}, v{vt}, v{LG+w}, {sr(sMk+2*w,2)}")
    e(f"v_max3_f32 v{vt}, v{LG}, v{LG+1}, v{LG+2}")
    e(f"v_max3_f32 v{vt}, v{vt}, v{LG+3}, v{LG+4}")
    e(f"v_max3_f32 v{vt}, v{vt}, v{LG+5}, v{LG+6}")
    e(f"v_max_f32 v{vt}, v{vt}, v{LG+7}")
    import struct, math
    cval = struct.unpack("<I", struct.pack("<f", (18 ** -0.5) * math.log2(math.e)))[0]
    e(f"s_mov_b32 s{sT+2}, 0x{cval:x}")
    e(f"v_mul_f32 v{vt}, s{sT+2}, v{vt}")
    for w in range(8):
        e(f"v_fma_f32 v{LG+w}, v{LG+w}, s{sT+2}, -v{vt}")
    for w in range(8):
        e(f"v_exp_f32 v{LG+w}, v{LG+w}")
    e("s_nop 0")
    e(f"v_add_f32 v{vt}, v{LG}, v{LG+1}")
    for w in range(2, 8):
        e(f"v_add_f32 v{vt}, v{vt}, v{LG+w}")
    e(f"v_rcp_f32 v{vt}, v{vt}")
    for i in range(18):
        e(f"v_mov_b32 v{O+i}, 0")
    for w in range(8):
        e(f"v_mul_f32 v{LG+w}, v{LG+w}, v{vt}")
    for w in range(8):
        e(f"v_cvt_pk_bf16_f32 v{AL+w}, v{LG+w}, 0")
        e(f"v_cvt_pk_bf16_f32 v{AH+w}, 0, v{LG+w}")
    e("s_waitcnt lgkmcnt(0)")
    for w in range(8):
        for p in range(9):
            e(f"v_dot2c_f32_bf16 v{O+2*p}, v{AL+w}, v{VV+w*10+p}")
            e(f"v_dot2c_f32_bf16 v{O+2*p+1}, v{AH+w}, v{VV+w*10+p}")
    e("s_nop 2")
    OP = Q
    for p in range(9):
        e(f"v_cvt_pk_bf16_f32 v{OP+p}, v{O+2*p}, v{O+2*p+1}")
    e(f"s_lshl_b32 s{sTl}, s{sT+3}, 2")
    e(f"v_add_u32 v{vt}, s{sTl}, v{vO}")
    for i in range(4):
        e(f"ds_write_b64 v{vt}, {vr(OP+2*i,2)} offset:{8*i}")
    e(f"s_xor_b32 s{sT+3}, s{sT+3}, 1")
    e(f"s_lshl_b32 s{sT+3}, s{sT+3}, 5")
    e(f"v_add_u32 v{vt+1}, s{sT+3}, v{vO}")
    e(f"ds_write_b32 v{vt+1}, v{OP+8}")
    e(f"s_lshl_b32 s{sT}, s{sW}, 4")
    e(f"v_add_u32 v{vt}, s{sT}, v{vL15}")
    e(f"v_mul_u32_u24 v{vt}, 144, v{vt}")
    e(f"v_lshl_add_u32 v{vt}, v{vG}, 4, v{vt}")
    e(f"v_add_u32 v{vt}, {OB0}, v{vt}")
    e(f"v_lshlrev_b32 v{vt+1}, 4, v{vL}")
    e(f"v_cmp_eq_u32 vcc, 0, v{vG}")
    e(f"v_mov_b32 v{vt+2}, 0x{OOB:x}")
    e(f"s_lshl_b32 s{sT}, s{sRb}, 3")
    e(f"s_add_u32 s{sT}, s{sT}, s{sW}")
    e(f"v_cndmask_b32 v{vt+2}, v{vt+2}, v{vt+1}, vcc")
    e(f"s_mul_i32 s{sT}, s{sT}, 72")
    e(f"s_mul_i32 s{sT+1}, s{sHg}, 9")
    e(f"s_add_u32 s{sT}, s{sT}, s{sT+1}")
    e(f"s_lshl_b32 s{sT}, s{sT}, 8")
    e(f"s_add_u32 s{sT}, s{sT}, {WS_OB}")
    e("s_waitcnt lgkmcnt(0)")
    e("s_barrier")
    CO = KK
    for i in range(3):
        e(f"ds_read_b128 {vr(CO+4*i,4)}, v{vt} offset:{64*i}")
    for i in range(3):
        e(f"s_waitcnt lgkmcnt({2-i})")
        e(f"buffer_store_dwordx4 {vr(CO+4*i,4)}, v{vt+1 if i < 2 else vt+2}, {sr(sWs,4)}, s{sT} offen offset:{1024*i}")
    stamp_dump(e, sWs, 0, vt, sT)
    e("s_endpgm")
    loader(True)
    e.label(Lend)
    e("s_endpgm")
    return e.vmax, e.smax


GEMM_LDS = 36 * 3072


def gemm_body(e, NW, sRbk, sNb, sW, sXs, sWo, sOut, part, xoff, vL, vL15, vG, vR4, vC4, vt, sT):
    sRt = e.s()
    e(f"s_mul_i32 s{sRt}, s{sRbk}, {NW}")
    e(f"s_add_u32 s{sRt}, s{sRt}, s{sW}")
    vX = e.v()
    e(f"v_lshlrev_b32 v{vX}, 4, v{vL}")
    vD = e.v(3)
    e(f"s_mul_i32 s{sT+1}, s{sNb}, 144")
    for pp in range(3):
        p, q, r, c = vt, vt + 1, vt + 2, vt + 3
        e(f"v_add_u32 v{p}, {64*pp}, v{vL}")
        e(f"v_cmp_lt_u32 vcc, 87, v{p}")
        e(f"v_subrev_u32 v{q}, 8, v{p}")
        e("s_nop 0")
        e(f"v_cndmask_b32 v{q}, v{p}, v{q}, vcc")
        e(f"v_mul_u32_u24 v{r}, 6554, v{q}")
        e(f"v_lshrrev_b32 v{r}, 16, v{r}")
        e(f"v_mul_u32_u24 v{c}, 10, v{r}")
        e(f"v_sub_u32 v{c}, v{q}, v{c}")
        e(f"v_mul_u32_u24 v{vt+4}, 1152, v{r}")
        e(f"v_lshl_add_u32 v{vt+4}, v{c}, 4, v{vt+4}")
        e(f"v_add_u32 v{vt+4}, s{sT+1}, v{vt+4}")
        e(f"v_cmp_gt_u32 vcc, 9, v{c}")
        e(f"v_cmp_gt_u32 s[{sT+2}:{sT+3}], 16, v{r}")
        e(f"s_and_b64 vcc, vcc, s[{sT+2}:{sT+3}]")
        e(f"v_subrev_u32 v{q}, 80, v{p}")
        e(f"v_cmp_le_u32 s[{sT+2}:{sT+3}], 8, v{q}")
        e(f"v_mov_b32 v{vt+5}, 0x{OOB:x}")
        e(f"s_and_b64 vcc, vcc, s[{sT+2}:{sT+3}]")
        e("s_nop 1")
        e(f"v_cndmask_b32 v{vD+pp}, v{vt+5}, v{vt+4}, vcc")
    XR = e.v(72, 4)
    ACC = e.v(20, 4)
    F = e.v(40, 4)
    vRA = e.v(5)
    nph = (36 + NW - 1) // NW
    kpp = NW // 2
    sM0, sWo_ = e.s(), e.s()
    e(f"s_mul_i32 s{sM0}, s{sW}, 3072")
    e(f"s_mul_i32 s{sWo_}, s{sW}, {16*1152}")
    cnt = []
    e(f"s_mul_i32 s{sT}, s{sRt}, 18432")
    e(f"s_add_u32 s{sT}, s{sT}, {xoff}")
    for ph in range(nph):
        n = 0
        for pp in range(3):
            e(f"s_add_u32 m0, s{sM0}, {ph*NW*3072 + pp*1024}")
            e(f"s_add_u32 s{sT+1}, s{sWo_}, {ph*NW*16*1152}")
            e(f"buffer_load_dwordx4 v{vD+pp}, {sr(sWo,4)}, s{sT+1} offen lds")
            n += 1
        for ks in range(ph * kpp, min(18, (ph + 1) * kpp)):
            if ks % 4 == 0 and ks:
                e(f"s_add_u32 s{sT}, s{sT}, 4096")
            e(f"buffer_load_dwordx4 {vr(XR+ks*4,4)}, v{vX}, {sr(sXs,4)}, s{sT} offen offset:{(ks%4)*1024}")
            n += 1
        cnt.append(n)
    assert sum(cnt) <= 63
    stamp(e)
    e(f"v_lshrrev_b32 v{vt}, 1, v{vG}")
    e(f"v_mul_u32_u24 v{vt}, 3072, v{vt}")
    e(f"v_and_b32 v{vt+1}, 1, v{vG}")
    e(f"v_mul_u32_u24 v{vt+1}, 1408, v{vt+1}")
    e(f"v_mul_u32_u24 v{vt+2}, 160, v{vR4}")
    e(f"v_add3_u32 v{vt}, v{vt}, v{vt+1}, v{vt+2}")
    for t in range(5):
        e(f"v_add_u32 v{vt+1}, {4*t}, v{vC4}")
        e(f"v_min_u32 v{vt+1}, 17, v{vt+1}")
        e(f"v_lshl_add_u32 v{vRA+t}, v{vt+1}, 3, v{vt}")
    for i in range(20):
        e(f"v_mov_b32 v{ACC+i}, 0")
    vO = e.v(2)
    e(f"s_lshl_b32 s{sT}, s{sRt}, 4")
    e(f"v_add_u32 v{vO}, s{sT}, v{vL15}")
    e(f"v_mul_u32_u24 v{vO}, 2304, v{vO}")
    e(f"v_lshl_add_u32 v{vO}, v{vG}, 3, v{vO}")
    e(f"v_cmp_gt_u32 vcc, 2, v{vG}")
    e(f"v_mov_b32 v{vt+2}, 0x{OOB:x}")
    e(f"s_mul_i32 s{sT}, s{sNb}, 144")
    e(f"s_add_u32 s{sT}, s{sT}, {part*1152}")
    e(f"v_cndmask_b32 v{vO+1}, v{vt+2}, v{vO}, vcc")
    rebased = False
    for ph in range(nph):
        rem = sum(cnt[ph + 1:])
        e(f"s_waitcnt vmcnt({rem})")
        e("s_barrier")
        if ph in (0, 1, nph - 1): stamp(e)
        kss = list(range(ph * kpp, min(18, (ph + 1) * kpp)))

        def rd(ks, fb):
            nonlocal rebased
            if ks >= 10 and not rebased:
                for t in range(5):
                    e(f"v_add_u32 v{vRA+t}, 61440, v{vRA+t}")
                rebased = True
            o = (ks - 10 if ks >= 10 else ks) * 6144
            for t in range(5):
                for h in range(2):
                    e(f"ds_read_b64_tr_b16 {vr(F+fb*20+t*4+h*2,2)}, v{vRA+t} offset:{o + h*640}")
        rd(kss[0], 0)
        for i, ks in enumerate(kss):
            fb = i & 1
            if i + 1 < len(kss):
                rd(kss[i + 1], fb ^ 1)
                e("s_waitcnt lgkmcnt(10)")
            else:
                e("s_waitcnt lgkmcnt(0)")
            for t in range(5):
                mfma(e, ACC + t * 4, F + fb * 20 + t * 4, XR + ks * 4)
    e("s_nop 7")
    PKd = F
    for t in range(5):
        a = ACC + t * 4
        d = PKd + t * 2
        e(f"v_cvt_pk_bf16_f32 v{d}, v{a}, v{a+1}")
        e(f"v_cvt_pk_bf16_f32 v{d+1}, v{a+2}, v{a+3}")
    for t in range(5):
        d = PKd + t * 2
        e(f"buffer_store_dwordx2 {vr(d,2)}, v{vO + (1 if t == 4 else 0)}, {sr(sOut,4)}, s{sT} offen offset:{t*32}")
    stamp_dump(e, sXs, 1 if NW == 8 else 2, vt, sT)
    e("s_endpgm")


def common_ids(e):
    vTid = e.v()
    vL, vL15, vG, vR4, vC4 = [e.v() for _ in range(5)]
    vt = e.v(8, 2)
    sW = e.s()
    e(f"v_lshrrev_b32 v{vt}, 6, v0")
    e(f"v_and_b32 v{vL}, 63, v0")
    e(f"v_readfirstlane_b32 s{sW}, v{vt}")
    e(f"v_and_b32 v{vL15}, 15, v0")
    e(f"v_lshrrev_b32 v{vG}, 4, v{vL}")
    e(f"v_bfe_u32 v{vR4}, v0, 2, 2")
    e(f"v_and_b32 v{vC4}, 3, v0")
    return vL, vL15, vG, vR4, vC4, vt, sW


def gen_k3(e):
    e.reset()
    e.s(3)
    e.label("k3_kernel")
    e("s_cmp_ge_u32 s2, 256")
    e("s_cbranch_scc1 k3_end")
    stamp_init(e); stamp(e)
    sPo = e.s(2)
    sPOut = e.s(2)
    sPW = e.s(2)
    e(f"s_load_dwordx2 {sr(sPo,2)}, s[0:1], 24")
    e(f"s_load_dwordx2 {sr(sPOut,2)}, s[0:1], 56")
    e(f"s_load_dwordx2 {sr(sPW,2)}, s[0:1], 72")
    sT = e.s(4)
    sRbk, sNb = e.s(), e.s()
    e(f"s_and_b32 s{sT}, s2, 7")
    e(f"s_lshr_b32 s{sT+1}, s2, 3")
    e(f"s_lshl_b32 s{sRbk}, s{sT}, 2")
    e(f"s_lshr_b32 s{sT+2}, s{sT+1}, 3")
    e(f"s_add_u32 s{sRbk}, s{sRbk}, s{sT+2}")
    e(f"s_and_b32 s{sNb}, s{sT+1}, 7")
    vL, vL15, vG, vR4, vC4, vt, sW = common_ids(e)
    sXs, sWo, sOut = e.s(4), e.s(4), e.s(4)
    e("s_waitcnt lgkmcnt(0)")
    srd(e, sXs, sPW, WS_BYTES)
    srd(e, sWo, sPo, WO_BYTES)
    srd(e, sOut, sPOut, OUT_BYTES)
    gemm_body(e, 4, sRbk, sNb, sW, sXs, sWo, sOut, 0, WS_OA, vL, vL15, vG, vR4, vC4, vt, sT)
    e.label("k3_end")
    e("s_endpgm")
    return e.vmax, e.smax


K2_WB0 = 0
K2_KV0 = WB_BYTES
K2_Z0 = K2_KV0 + 6400
K2_ZEND = K2_Z0 + 1536
K2_DUMP = K2_ZEND
K2_O0 = K2_ZEND + 64


def gen_k2(e):
    e.reset()
    e.s(3)
    e.label("k2_kernel")
    e("s_cmp_ge_u32 s2, 256")
    e("s_cbranch_scc1 k2_end")
    stamp_init(e); stamp(e)
    sPo = e.s(2)
    sPOut = e.s(2)
    sPW = e.s(2)
    sPP = e.s(2)
    e(f"s_load_dwordx2 {sr(sPo,2)}, s[0:1], 48")
    e(f"s_load_dwordx2 {sr(sPOut,2)}, s[0:1], 56")
    e(f"s_load_dwordx2 {sr(sPW,2)}, s[0:1], 72")
    e(f"s_load_dwordx2 {sr(sPP,2)}, s[0:1], 16")
    sT = e.s(4)
    sJ, sI = e.s(), e.s()
    e(f"s_and_b32 s{sJ}, s2, 7")
    e(f"s_lshr_b32 s{sI}, s2, 3")
    vL, vL15, vG, vR4, vC4, vt, sW = common_ids(e)
    sXs, sWo, sOut, sPhi = e.s(4), e.s(4), e.s(4), e.s(4)
    e("s_waitcnt lgkmcnt(0)")
    srd(e, sXs, sPW, WS_BYTES)
    srd(e, sWo, sPo, WO_BYTES)
    srd(e, sOut, sPOut, OUT_BYTES)
    srd(e, sPhi, sPP, WPHI_BYTES)
    vmark, smark = e.vn, e.sn
    e(f"s_cmp_lt_u32 s{sI}, 16")
    e("s_cbranch_scc1 k2_A")
    stn0 = getattr(e, "stn", 0)
    sRbk, sNb = e.s(), e.s()
    e(f"s_sub_u32 s{sT}, s{sI}, 16")
    e(f"s_lshr_b32 s{sT+1}, s{sT}, 3")
    e(f"s_lshl_b32 s{sRbk}, s{sJ}, 1")
    e(f"s_add_u32 s{sRbk}, s{sRbk}, s{sT+1}")
    e(f"s_and_b32 s{sNb}, s{sT}, 7")
    gemm_body(e, 8, sRbk, sNb, sW, sXs, sWo, sOut, 1, WS_OB, vL, vL15, vG, vR4, vC4, vt, sT)
    e.label("k2_A")
    e.stn = stn0
    e.vn, e.sn = vmark, smark
    sHg, sRb = sJ, sI
    sHgo = e.s()
    sOF = e.s()
    vWE, vWD = e.v(3), e.v(3)
    e(f"s_mul_i32 s{sHgo}, s{sHg}, {4*324*2}")
    wb_issue_loads2(e, sPhi, sHgo, 0, vWE, vWD, vt, 512)
    BQ = e.v(12, 4)
    vL16 = e.v()
    e(f"s_lshl_b32 s{sOF}, s{sRb}, 3")
    e(f"s_add_u32 s{sOF}, s{sOF}, s{sW}")
    e(f"s_mul_i32 s{sOF}, s{sOF}, 72")
    e(f"s_mul_i32 s{sT}, s{sHg}, 9")
    e(f"s_add_u32 s{sOF}, s{sOF}, s{sT}")
    e(f"s_lshl_b32 s{sOF}, s{sOF}, 8")
    e(f"v_lshlrev_b32 v{vL16}, 4, v{vL}")
    e(f"s_add_u32 s{sT}, s{sOF}, {WS_Q}")
    for st in range(3):
        e(f"buffer_load_dwordx4 {vr(BQ+st*4,4)}, v{vL16}, {sr(sXs,4)}, s{sT} offen offset:{st*1024}")
    PR = e.v(128, 4)
    vU = e.v(2)
    e(f"v_lshlrev_b32 v{vU}, 4, v0")
    e(f"v_add_u32 v{vU+1}, {512*16}, v{vU}")
    e(f"v_cmp_gt_u32 vcc, 172, v0")
    e(f"v_mov_b32 v{vt}, 0x{OOB:x}")
    e(f"s_mul_i32 s{sT}, s{sHg}, {4*2736}")
    e(f"v_cndmask_b32 v{vU+1}, v{vt}, v{vU+1}, vcc")
    e(f"s_add_u32 s{sT}, s{sT}, {WS_P}")
    e(f"s_mov_b32 s{sT+1}, s{sT}")
    for rb in range(16):
        e(f"buffer_load_dwordx4 {vr(PR+rb*4,4)}, v{vU}, {sr(sXs,4)}, s{sT} offen")
        if rb < 15:
            e(f"s_add_u32 s{sT}, s{sT}, {32*2736}")
    for i in range(64):
        e(f"v_mov_b32 v{PR+64+i}, 0")
    e(f"s_cmp_ge_u32 s{sW}, 3")
    e("s_cbranch_scc1 k2_A_skip")
    for rb in range(16):
        e(f"buffer_load_dwordx4 {vr(PR+64+rb*4,4)}, v{vU+1}, {sr(sXs,4)}, s{sT+1} offen")
        if rb < 15:
            e(f"s_add_u32 s{sT+1}, s{sT+1}, {32*2736}")
    e.label("k2_A_skip")
    stamp(e)
    AW = e.v(60, 4)
    P = e.v(20, 4)
    lds_zero(e, 0, K2_ZEND, 0, AW)
    e("s_waitcnt lgkmcnt(0)")
    e("s_barrier")
    e("s_waitcnt vmcnt(19)")
    wb_scatter2(e, K2_WB0, K2_DUMP, vWE, vWD, AW, 512)
    e("s_waitcnt lgkmcnt(0)")
    e("s_barrier")
    stamp(e)
    e(f"v_mul_u32_u24 v{vt+2}, {WB_PITCH}, v{vL15}")
    e(f"v_lshl_add_u32 v{vt+2}, v{vG}, 4, v{vt+2}")
    for cf in range(5):
        for st in range(3):
            e(f"ds_read_b128 {vr(AW+(cf*3+st)*4,4)}, v{vt+2} offset:{K2_WB0 + cf*16*WB_PITCH + st*64}")
    e("s_waitcnt vmcnt(16) lgkmcnt(0)")
    for cf in range(5):
        for st in range(3):
            mfma(e, P + cf * 4, AW + (cf * 3 + st) * 4, BQ + st * 4, "0" if st == 0 else None)
    sL = e.s(2)
    e(f"s_mov_b32 s{sL}, 0x{LOG2E:x}")
    e(f"s_mov_b32 s{sL+1}, 0x{LOG2E:x}")
    e("s_nop 7")
    E1 = AW
    E2 = AW + 18
    PH = AW + 36
    softmax_pm(e, P, E1, E2, PH, vt, sL)
    e(f"v_mov_b32 v{PH+18}, 0")
    e(f"v_mov_b32 v{PH+19}, 0")
    stamp(e)
    e("s_waitcnt vmcnt(0)")
    stamp(e)
    for h in range(2):
        a = PR + h * 64
        for rb in range(1, 16):
            b = a + rb * 4
            e(f"v_pk_add_f32 {vr(a,2)}, {vr(a,2)}, {vr(b,2)}")
            e(f"v_pk_add_f32 {vr(a+2,2)}, {vr(a+2,2)}, {vr(b+2,2)}")
    for h in range(2):
        a = PR + h * 64
        e(f"v_cvt_pk_bf16_f32 v{a}, v{a}, v{a+1}")
        e(f"v_cvt_pk_bf16_f32 v{a+1}, v{a+2}, v{a+3}")
        u = vt
        e(f"v_add_u32 v{u}, {512*h}, v0")
        e(f"v_mul_u32_u24 v{vt+1}, 6133, v{u}")
        e(f"v_lshrrev_b32 v{vt+1}, 20, v{vt+1}")
        e(f"v_mul_u32_u24 v{vt+2}, 171, v{vt+1}")
        e(f"v_sub_u32 v{vt+2}, v{u}, v{vt+2}")
        e(f"v_mul_u32_u24 v{vt+3}, 7282, v{vt+2}")
        e(f"v_lshrrev_b32 v{vt+3}, 16, v{vt+3}")
        e(f"v_mul_u32_u24 v{vt+4}, 9, v{vt+3}")
        e(f"v_sub_u32 v{vt+4}, v{vt+2}, v{vt+4}")
        e(f"v_mul_u32_u24 v{vt+1}, 20, v{vt+1}")
        e(f"v_add_u32 v{vt+1}, v{vt+1}, v{vt+3}")
        e(f"v_mul_u32_u24 v{vt+1}, 80, v{vt+1}")
        e(f"v_lshl_add_u32 v{vt+1}, v{vt+4}, 3, v{vt+1}")
        if h == 1:
            e(f"v_cmp_gt_u32 vcc, 172, v0")
            e(f"v_mov_b32 v{vt+2}, {K2_DUMP - K2_KV0}")
            e("s_nop 1")
            e(f"v_cndmask_b32 v{vt+1}, v{vt+2}, v{vt+1}, vcc")
        e(f"ds_write_b64 v{vt+1}, {vr(a,2)} offset:{K2_KV0}")
    AK = PR
    e(f"v_lshrrev_b32 v{vt}, 2, v{vL15}")
    e(f"v_cmp_eq_u32 vcc, v{vt}, v{vG}")
    e(f"v_mul_u32_u24 v{vt+1}, 20, v{vt}")
    e(f"v_and_b32 v{vt+2}, 3, v{vL15}")
    e(f"v_add_u32 v{vt+1}, v{vt+1}, v{vt+2}")
    e(f"v_mul_u32_u24 v{vt+1}, 80, v{vt+1}")
    e(f"v_add_u32 v{vt+1}, {K2_KV0}, v{vt+1}")
    e(f"v_mov_b32 v{vt+2}, {K2_Z0}")
    e(f"v_cndmask_b32 v{vt+1}, v{vt+2}, v{vt+1}, vcc")
    e("s_waitcnt lgkmcnt(0)")
    e("s_barrier")
    for ch in range(5):
        for st in range(5):
            e(f"ds_read_b128 {vr(AK+(ch*5+st)*4,4)}, v{vt+1} offset:{ch*320 + st*16}")
    e(f"s_lshl_b32 s{sT}, s{sW}, 4")
    e(f"v_add_u32 v{vt+2}, s{sT}, v{vL15}")
    e(f"v_mul_u32_u24 v{vt+2}, 144, v{vt+2}")
    e(f"v_add_u32 v{vt+2}, {K2_O0}, v{vt+2}")
    e(f"v_mul_u32_u24 v{vt+3}, 36, v{vG}")
    e(f"v_add_u32 v{vt+3}, v{vt+3}, v{vt+2}")
    e(f"v_lshl_add_u32 v{vt+2}, v{vG}, 4, v{vt+2}")
    e(f"v_cmp_eq_u32 vcc, 0, v{vG}")
    e(f"v_mov_b32 v{vt+4}, 0x{OOB:x}")
    e(f"s_add_u32 s{sT}, s{sOF}, {WS_OA}")
    e(f"v_cndmask_b32 v{vt+4}, v{vt+4}, v{vL16}, vcc")
    N = P
    for ch in range(5):
        e(f"s_waitcnt lgkmcnt({min(15, 20 - 5*ch)})")
        for st in range(5):
            mfma(e, N + ch * 4, AK + (ch * 5 + st) * 4, PH + st * 4, "0" if st == 0 else None)
    e("s_nop 7")
    e("s_nop 3")
    e(f"v_add_f32 v{vt}, 0x358637bd, v{N+18}")
    e(f"v_rcp_f32 v{vt}, v{vt}")
    e("s_nop 0")
    for i in range(0, 18, 2):
        e(f"v_pk_mul_f32 {vr(N+i,2)}, {vr(N+i,2)}, {vr(vt,2)} op_sel_hi:[1,0]")
    OP = AW
    for i in range(9):
        e(f"v_cvt_pk_bf16_f32 v{OP+i}, v{N+2*i}, v{N+2*i+1}")
    for i in range(4):
        e(f"ds_write2_b32 v{vt+3}, v{OP+2*i}, v{OP+2*i+1} offset0:{2*i} offset1:{2*i+1}")
    e(f"ds_write_b32 v{vt+3}, v{OP+8} offset:32")
    e("s_waitcnt lgkmcnt(0)")
    CO = AW + 12
    for i in range(3):
        e(f"ds_read_b128 {vr(CO+4*i,4)}, v{vt+2} offset:{64*i}")
    for i in range(3):
        e(f"s_waitcnt lgkmcnt({2-i})")
        e(f"buffer_store_dwordx4 {vr(CO+4*i,4)}, v{vL16 if i < 2 else vt+4}, {sr(sXs,4)}, s{sT} offen offset:{1024*i}")
    stamp_dump(e, sXs, 1, vt, sT)
    e.label("k2_end")
    e("s_endpgm")
    return e.vmax, e.smax


def main():
    global STAMP
    if "--stamp" in sys.argv:
        STAMP = True
        sys.argv.remove("--stamp")
    e = Em()
    hdr = open(f"cdna_kernels/{NAME}.s.ref").read().split("\n")
    head = [l for l in hdr if l.startswith(";") and "@launch" not in l and "Override" not in l and "grid=ceil" not in l]
    out = head[:]
    out.append(f"; @launch kernel=k1_kernel grid=(256,1,1) block=(512,1,1) lds={K1_LDS}")
    out.append(f"; @launch kernel=k2_kernel grid=(256,1,1) block=(512,1,1) lds={GEMM_LDS}")
    out.append(f"; @launch kernel=k3_kernel grid=(256,1,1) block=(256,1,1) lds={GEMM_LDS}")
    out.append('.amdgcn_target "amdgcn-amd-amdhsa--gfx950"')
    out.append(".text")
    res = {}
    for nm, fn in (("k1", gen_k1), ("k2", gen_k2), ("k3", gen_k3)):
        e.L.append(f".globl {nm}_kernel")
        e.L.append(".p2align 8")
        e.L.append(f".type {nm}_kernel,@function")
        res[nm] = fn(e)
    out += e.L
    out.append('.section .rodata,"a"')
    for nm, (vm, sm) in res.items():
        vm4 = (vm + 3) // 4 * 4
        out.append(".p2align 6")
        out.append(f".amdhsa_kernel {nm}_kernel")
        out.append(f"  .amdhsa_next_free_vgpr {vm}")
        out.append(f"  .amdhsa_next_free_sgpr {sm}")
        out.append(f"  .amdhsa_accum_offset {vm4}")
        out.append("  .amdhsa_group_segment_fixed_size 0")
        out.append("  .amdhsa_kernarg_size 80")
        out.append("  .amdhsa_user_sgpr_count 2")
        out.append("  .amdhsa_user_sgpr_kernarg_segment_ptr 1")
        out.append("  .amdhsa_system_sgpr_workgroup_id_x 1")
        out.append(".end_amdhsa_kernel")
    path = sys.argv[1] if len(sys.argv) > 1 else f"cdna_kernels/{NAME}.s"
    open(path, "w").write("\n".join(out) + "\n")
    print(res)


if __name__ == "__main__":
    main()
```

```python
import sys, os

NAME = "concat_heads__linear_kernel_hedgehog__sliding_local_dilated__prompt"
WS_Q = 0x000000
WS_OA = 0x400000
WS_OB = 0x800000
WS_P = 0xC00000
WS_WB = 0xE00000
WS_FL = 0xE80000
WS_BYTES = 0x1000000
X_BYTES = 2048 * 576 * 2
WQKV_BYTES = 576 * 1728 * 2
WO_BYTES = 576 * 576 * 2
WPHI_BYTES = 32 * 18 * 18 * 2
OUT_BYTES = 2048 * 1152 * 2
OOB = 0x80000000
LOG2E = 0x3FB8AA3B


class Em:
    def __init__(self):
        self.L = []
        self.vn = 0
        self.sn = 0
        self.vmax = 0
        self.smax = 0
        self.lab = 0

    def __call__(self, s):
        self.L.append("  " + s)

    def c(self, s):
        self.L.append("  ; " + s)

    def label(self, s):
        self.L.append(s + ":")

    def newlab(self, p="L"):
        self.lab += 1
        return f"{p}_{self.lab}"

    def v(self, n=1, al=0):
        if al == 0:
            al = 2 if n >= 2 else 1
        self.vn = (self.vn + al - 1) // al * al
        r = self.vn
        self.vn += n
        self.vmax = max(self.vmax, self.vn)
        assert self.vn <= 256, "out of vgprs"
        return r

    def s(self, n=1, al=1):
        if n == 2:
            al = max(al, 2)
        if n >= 4:
            al = max(al, 4)
        self.sn = (self.sn + al - 1) // al * al
        r = self.sn
        self.sn += n
        self.smax = max(self.smax, self.sn)
        assert self.sn <= 102, "out of sgprs"
        return r

    def reset(self):
        self.vn = 0
        self.sn = 0
        self.vmax = 0
        self.smax = 0


STAMP = False
WS_ST = 0xF00000

def stamp_init(e):
    if not STAMP: return
    e.stp = e.s(20, 4)
    e.stn = 0

def stamp(e):
    if not STAMP: return
    i = e.stn
    e.stn += 1
    assert i < 9
    if i == 0:
        e(f"s_memrealtime {sr(e.stp + 18, 2)}")
    e(f"s_memtime {sr(e.stp + 2*i, 2)}")
    e("s_waitcnt lgkmcnt(0)")

def stamp_dump(e, sWs, kidx, vt, sT):
    if not STAMP: return
    e("s_waitcnt vmcnt(0) lgkmcnt(0)")
    stamp(e)
    e(f"v_lshrrev_b32 v{vt}, 6, v0")
    e(f"v_lshlrev_b32 v{vt}, 6, v{vt}")
    e(f"s_lshl_b32 s{sT}, s2, 9")
    e(f"s_add_u32 s{sT}, s{sT}, {WS_ST + kidx*256*512}")
    e(f"v_and_b32 v{vt+1}, 63, v0")
    e(f"v_cmp_eq_u32 vcc, 0, v{vt+1}")
    e(f"v_mov_b32 v{vt+2}, 0x{OOB:x}")
    e("s_nop 1")
    e(f"v_cndmask_b32 v{vt}, v{vt+2}, v{vt}, vcc")
    for i in range(12):
        src = e.stp + 2*i if i < 9 else e.stp + 18
        e(f"v_mov_b32 v{vt+1}, s{src}")
        e(f"buffer_store_dword v{vt+1}, v{vt}, {sr(sWs,4)}, s{sT} offen offset:{4*i}")
    e("s_waitcnt vmcnt(0)")

def vr(a, n):
    return f"v[{a}:{a+n-1}]" if n > 1 else f"v{a}"


def sr(a, n):
    return f"s[{a}:{a+n-1}]" if n > 1 else f"s{a}"


def srd(e, d, base, nbytes):
    e(f"s_mov_b32 s{d}, s{base}")
    e(f"s_and_b32 s{d+1}, s{base+1}, 0xffff")
    e(f"s_mov_b32 s{d+2}, {nbytes}")
    e(f"s_mov_b32 s{d+3}, 0x00020000")


def mfma(e, d, a, b, c=None):
    cs = vr(d, 4) if c is None else c
    e(f"v_mfma_f32_16x16x32_bf16 {vr(d,4)}, {vr(a,4)}, {vr(b,4)}, {cs}")


WB_PITCH = 208
WB_BYTES = 5 * 16 * WB_PITCH


def wb_issue_loads(e, sPhi, sHg, vTid, vE, vD, tmp):
    sB = sHg
    for i in range(3):
        e(f"v_add_u32 v{vE+i}, {512*i}, v{vTid}")
        e(f"v_lshlrev_b32 v{tmp}, 1, v{vE+i}")
        if i == 2:
            e(f"v_cmp_gt_u32 vcc, 1296, v{vE+i}")
            e(f"v_mov_b32 v{tmp+1}, 0x{OOB:x}")
            e("s_nop 1")
            e(f"v_cndmask_b32 v{tmp}, v{tmp+1}, v{tmp}, vcc")
        e(f"buffer_load_ushort v{vD+i}, v{tmp}, {sr(sPhi,4)}, s{sB} offen")


def lds_zero(e, base, nbytes, vTid, tmp4, nthreads=512):
    z = tmp4
    a = tmp4 + 4
    for i in range(4):
        e(f"v_mov_b32 v{z+i}, 0")
    n16 = nbytes // 16
    rounds = (n16 + nthreads - 1) // nthreads
    e(f"v_lshlrev_b32 v{a}, 4, v{vTid}")
    if base:
        e(f"v_add_u32 v{a}, {base}, v{a}")
    for r in range(rounds):
        if (r + 1) * nthreads <= n16:
            e(f"ds_write_b128 v{a}, {vr(z,4)} offset:{r*nthreads*16}")
        else:
            last = (n16 - 1 - r * nthreads) * 16 + base
            e(f"v_min_u32 v{a+1}, {last}, v{a}")
            e(f"ds_write_b128 v{a+1}, {vr(z,4)} offset:{r*nthreads*16}")


def wb_scatter(e, WB0, DUMP, vE, vD, t):
    for i in range(3):
        E = vE + i
        e(f"v_mul_u32_u24 v{t}, 3237, v{E}")
        e(f"v_lshrrev_b32 v{t}, 20, v{t}")
        e(f"v_mul_u32_u24 v{t+1}, 324, v{t}")
        e(f"v_sub_u32 v{t+1}, v{E}, v{t+1}")
        e(f"v_mul_u32_u24 v{t+2}, 3641, v{t+1}")
        e(f"v_lshrrev_b32 v{t+2}, 16, v{t+2}")
        e(f"v_mul_u32_u24 v{t+3}, 18, v{t+2}")
        e(f"v_sub_u32 v{t+3}, v{t+1}, v{t+3}")
        e(f"v_lshrrev_b32 v{t+4}, 2, v{t+3}")
        e(f"v_lshlrev_b32 v{t+4}, 4, v{t+4}")
        e(f"v_lshl_add_u32 v{t+4}, v{t}, 2, v{t+4}")
        e(f"v_and_b32 v{t+3}, 3, v{t+3}")
        e(f"v_add_u32 v{t+4}, v{t+4}, v{t+3}")
        e(f"v_mul_u32_u24 v{t+4}, {WB_PITCH}, v{t+4}")
        e(f"v_mul_u32_u24 v{t}, 18, v{t}")
        e(f"v_add_u32 v{t}, v{t}, v{t+2}")
        e(f"v_lshl_add_u32 v{t+4}, v{t}, 1, v{t+4}")
        if i == 2:
            e(f"v_cmp_gt_u32 vcc, 1296, v{E}")
            e(f"v_mov_b32 v{t}, {DUMP - WB0}")
            e("s_nop 1")
            e(f"v_cndmask_b32 v{t+4}, v{t}, v{t+4}, vcc")
        if WB0:
            e(f"v_add_u32 v{t+4}, {WB0}, v{t+4}")
        e(f"ds_write_b16 v{t+4}, v{vD+i}")


def softmax_pm(e, P, E1, E2, OUT, t, sL):
    mx, mn = t, t + 1
    e(f"v_max3_f32 v{mx}, v{P}, v{P+1}, v{P+2}")
    e(f"v_min3_f32 v{mn}, v{P}, v{P+1}, v{P+2}")
    for i in range(3, 17, 2):
        e(f"v_max3_f32 v{mx}, v{mx}, v{P+i}, v{P+i+1}")
        e(f"v_min3_f32 v{mn}, v{mn}, v{P+i}, v{P+i+1}")
    e(f"v_max_f32 v{mx}, v{mx}, v{P+17}")
    e(f"v_min_f32 v{mn}, v{mn}, v{P+17}")
    cp, cm = t + 2, t + 4
    e(f"v_mul_f32 v{cp}, s{sL}, v{mx}")
    e(f"v_mul_f32 v{cm}, s{sL}, v{mn}")
    for i in range(0, 18, 2):
        e(f"v_pk_fma_f32 {vr(E1+i,2)}, {vr(P+i,2)}, {sr(sL,2)}, {vr(cp,2)} op_sel_hi:[1,1,0] neg_lo:[0,0,1] neg_hi:[0,0,1]")
        e(f"v_pk_fma_f32 {vr(E2+i,2)}, {vr(P+i,2)}, {sr(sL,2)}, {vr(cm,2)} op_sel_hi:[1,1,0] neg_lo:[1,0,0] neg_hi:[1,0,0]")
    for i in range(18):
        e(f"v_exp_f32 v{E1+i}, v{E1+i}")
        e(f"v_exp_f32 v{E2+i}, v{E2+i}")
    s1, s2 = t + 2, t + 4
    e(f"v_pk_add_f32 {vr(s1,2)}, {vr(E1,2)}, {vr(E1+2,2)}")
    e(f"v_pk_add_f32 {vr(s2,2)}, {vr(E2,2)}, {vr(E2+2,2)}")
    for i in range(4, 18, 2):
        e(f"v_pk_add_f32 {vr(s1,2)}, {vr(s1,2)}, {vr(E1+i,2)}")
        e(f"v_pk_add_f32 {vr(s2,2)}, {vr(s2,2)}, {vr(E2+i,2)}")
    e(f"v_add_f32 v{s1}, v{s1}, v{s1+1}")
    e(f"v_add_f32 v{s2}, v{s2}, v{s2+1}")
    e(f"v_rcp_f32 v{s1}, v{s1}")
    e(f"v_rcp_f32 v{s2}, v{s2}")
    e("s_nop 0")
    for i in range(0, 18, 2):
        e(f"v_pk_mul_f32 {vr(E1+i,2)}, {vr(E1+i,2)}, {vr(s1,2)} op_sel_hi:[1,0]")
        e(f"v_pk_mul_f32 {vr(E2+i,2)}, {vr(E2+i,2)}, {vr(s2,2)} op_sel_hi:[1,0]")
    for i in range(0, 18, 2):
        e(f"v_cvt_pk_bf16_f32 v{OUT+i//2}, v{E1+i}, v{E1+i+1}")
        e(f"v_cvt_pk_bf16_f32 v{OUT+9+i//2}, v{E2+i}, v{E2+i+1}")


def chunk_decode(e, sTile, vq, vS, vC):
    e(f"s_lshl_b32 s{sTile+1}, s{sTile}, 2")
    e(f"v_add_u32 v{vC}, s{sTile+1}, v{vq}")
    e(f"v_min_u32 v{vC}, 26, v{vC}")
    e(f"v_mul_u32_u24 v{vS}, 57, v{vC}")
    e(f"v_lshrrev_b32 v{vS}, 9, v{vS}")
    e(f"v_mul_u32_u24 v{vS+1}, 9, v{vS}")
    e(f"v_sub_u32 v{vC}, v{vC}, v{vS+1}")


WSLOT = 16384
XR0 = 4 * WSLOT
XSLOT = 18432
K1_WB0 = XR0 + 3 * XSLOT
K1_ONES = K1_WB0 + WB_BYTES
K1_DUMP2 = K1_ONES + 16
K1_LDS = K1_DUMP2 + 16
TA_PITCH = 304
PHI0 = 40960
PHI_PITCH = 336
TB_PITCH = 496
OB0 = 73728


def chunk_of(T, g):
    p = 4 * T + g
    pad = p > 26
    p = min(p, 26)
    return p // 9, p % 9, pad


def lit(fn, T):
    return sum((fn(*chunk_of(T, g)) & 0xff) << (8 * g) for g in range(4))


LITW = [lit(lambda s, c, p: 18 * ((s + 1) % 3) + c, T) for T in range(7)]
LITA = [lit(lambda s, c, p: 36 if (s == 2 or p) else 18 * s + c, T) for T in range(7)]
LITQ = [lit(lambda s, c, p: c if (s == 2 and not p) else 255, T) for T in range(7)]
LITB = [lit(lambda s, c, p: 5 if p else 20 * ((s + 1) % 3) + (c if c < 5 else c + 1), T) for T in range(7)]


def wb_issue_loads2(e, sPhi, sB, vTid, vE, vD, tmp, nth):
    n = (1296 + nth - 1) // nth
    for i in range(n):
        e(f"v_add_u32 v{vE+i}, {nth*i}, v{vTid}")
        e(f"v_lshlrev_b32 v{tmp}, 1, v{vE+i}")
        if (i + 1) * nth > 1296:
            e(f"v_cmp_gt_u32 vcc, 1296, v{vE+i}")
            e(f"v_mov_b32 v{tmp+1}, 0x{OOB:x}")
            e("s_nop 1")
            e(f"v_cndmask_b32 v{tmp}, v{tmp+1}, v{tmp}, vcc")
        e(f"buffer_load_ushort v{vD+i}, v{tmp}, {sr(sPhi,4)}, s{sB} offen")
    return n


def wb_scatter2(e, WB0, DUMPA, vE, vD, t, nth):
    n = (1296 + nth - 1) // nth
    for i in range(n):
        E = vE + i
        e(f"v_mul_u32_u24 v{t}, 3237, v{E}")
        e(f"v_lshrrev_b32 v{t}, 20, v{t}")
        e(f"v_mul_u32_u24 v{t+1}, 324, v{t}")
        e(f"v_sub_u32 v{t+1}, v{E}, v{t+1}")
        e(f"v_mul_u32_u24 v{t+2}, 3641, v{t+1}")
        e(f"v_lshrrev_b32 v{t+2}, 16, v{t+2}")
        e(f"v_mul_u32_u24 v{t+3}, 18, v{t+2}")
        e(f"v_sub_u32 v{t+3}, v{t+1}, v{t+3}")
        e(f"v_lshrrev_b32 v{t+4}, 2, v{t+3}")
        e(f"v_lshlrev_b32 v{t+4}, 4, v{t+4}")
        e(f"v_lshl_add_u32 v{t+4}, v{t}, 2, v{t+4}")
        e(f"v_and_b32 v{t+3}, 3, v{t+3}")
        e(f"v_add_u32 v{t+4}, v{t+4}, v{t+3}")
        e(f"v_mul_u32_u24 v{t+4}, {WB_PITCH}, v{t+4}")
        e(f"v_mul_u32_u24 v{t}, 18, v{t}")
        e(f"v_add_u32 v{t}, v{t}, v{t+2}")
        e(f"v_lshl_add_u32 v{t+4}, v{t}, 1, v{t+4}")
        if (i + 1) * nth > 1296:
            e(f"v_cmp_gt_u32 vcc, 1296, v{E}")
            e(f"v_mov_b32 v{t}, {DUMPA - WB0}")
            e("s_nop 1")
            e(f"v_cndmask_b32 v{t+4}, v{t}, v{t+4}, vcc")
        if WB0:
            e(f"v_add_u32 v{t+4}, {WB0}, v{t+4}")
        e(f"ds_write_b16 v{t+4}, v{vD+i}")


def interleave(e, mf, other, start=1, per=1):
    oi = 0
    for i, m in enumerate(mf):
        e(m)
        if i >= start - 1:
            for _ in range(per):
                if oi < len(other):
                    e(other[oi]); oi += 1
    while oi < len(other):
        e(other[oi]); oi += 1


def mf(d, a, b, c=None):
    cs = vr(d, 4) if c is None else c
    return f"v_mfma_f32_16x16x32_bf16 {vr(d,4)}, {vr(a,4)}, {vr(b,4)}, {cs}"


def gen_k1(e):
    e.reset()
    e.s(3)
    e.label("k1_kernel")
    Lend = "k1_end"
    e("s_cmp_ge_u32 s2, 256")
    e(f"s_cbranch_scc1 {Lend}")
    stamp_init(e); stamp(e)
    sPA = e.s(4)
    sPB = e.s(4)
    sPP = e.s(4)
    sPW = e.s(2)
    sPO = e.s(2)
    e(f"s_load_dwordx4 {sr(sPA,4)}, s[0:1], 0")
    e(f"s_load_dwordx4 {sr(sPB,4)}, s[0:1], 32")
    e(f"s_load_dwordx4 {sr(sPP,4)}, s[0:1], 16")
    e(f"s_load_dwordx2 {sr(sPW,2)}, s[0:1], 72")
    e(f"s_load_dwordx2 {sr(sPO,2)}, s[0:1], 48")
    sJ, sI, sBr, sRb, sHg, sW, sMi, sNi = [e.s() for _ in range(8)]
    sT = e.s(4)
    e(f"s_and_b32 s{sJ}, s2, 7")
    e(f"s_lshr_b32 s{sI}, s2, 3")
    e(f"s_lshr_b32 s{sBr}, s{sJ}, 2")
    e(f"s_lshr_b32 s{sT}, s{sJ}, 1")
    e(f"s_and_b32 s{sT}, s{sT}, 1")
    e(f"s_lshl_b32 s{sT}, s{sT}, 3")
    e(f"s_lshr_b32 s{sRb}, s{sI}, 2")
    e(f"s_add_u32 s{sRb}, s{sRb}, s{sT}")
    e(f"s_and_b32 s{sT}, s{sJ}, 1")
    e(f"s_lshl_b32 s{sT}, s{sT}, 2")
    e(f"s_and_b32 s{sHg}, s{sI}, 3")
    e(f"s_add_u32 s{sHg}, s{sHg}, s{sT}")
    vTid = e.v()
    vL, vL15, vG, vR4, vC4 = [e.v() for _ in range(5)]
    vt = e.v(8, 2)
    e(f"v_lshrrev_b32 v{vt}, 6, v0")
    e(f"v_and_b32 v{vL}, 63, v0")
    e(f"v_readfirstlane_b32 s{sW}, v{vt}")
    e(f"v_and_b32 v{vL15}, 15, v0")
    e(f"v_lshrrev_b32 v{vG}, 4, v{vL}")
    e(f"v_bfe_u32 v{vR4}, v0, 2, 2")
    e(f"v_and_b32 v{vC4}, 3, v0")
    e(f"s_and_b32 s{sMi}, s{sW}, 1")
    e(f"s_bfe_u32 s{sNi}, s{sW}, 0x10001")
    sX = e.s(4)
    sWq = e.s(4)
    sWs = e.s(4)
    sPhi = e.s(4)
    sRow0 = e.s()
    sTl = e.s(2)
    sIt = e.s()
    sDl = e.s()
    sSl = e.s()
    sWlim, sXh, sLx, sHf = e.s(), e.s(), e.s(), e.s()
    e(f"s_lshl_b32 s{sRow0}, s{sRb}, 7")

    def make_srds():
        e("s_waitcnt lgkmcnt(0)")
        e(f"s_cmp_eq_u32 s{sBr}, 0")
        for i in range(4):
            e(f"s_cselect_b32 s{sPA+i}, s{sPA+i}, s{sPB+i}")
        srd(e, sX, sPA, X_BYTES)
        srd(e, sWq, sPA + 2, WQKV_BYTES)
        srd(e, sWs, sPW, WS_BYTES)
        srd(e, sPhi, sPP, WPHI_BYTES)
    vbase = e.vn
    ACC = e.v(124, 4)
    FW = e.v(56, 4)
    FX = e.v(40, 4)
    vRA = e.v(11)
    vtop = e.vn
    vPF = e.v(2)
    stn0 = getattr(e, "stn", 0)

    def loader():
        sLw = sMi
        sWoff, sM0, sXo = sNi, sSl, sDl
        e(f"s_sub_u32 s{sLw}, s{sW}, 4")
        vD = vbase
        vXo = vbase + 2
        vWE = vbase + 4
        vWD = vbase + 10
        tmp = vbase + 16
        vT2 = vbase + 24
        e(f"v_and_b32 v{vt}, 7, v{vL}")
        e(f"v_xor_b32 v{vt}, v{vt}, v{vG}")
        e(f"v_lshrrev_b32 v{vt+1}, 3, v{vL}")
        e(f"v_mul_u32_u24 v{vt+1}, 1152, v{vt+1}")
        e(f"v_lshl_add_u32 v{vXo}, v{vt}, 4, v{vt+1}")
        e(f"v_xor_b32 v{vXo+1}, 64, v{vXo}")
        e(f"s_and_b32 s{sT}, s{sLw}, 1")
        e(f"s_lshl_b32 s{sT}, s{sT}, 3")
        e(f"s_mul_i32 s{sT+1}, s{sHg}, 144")
        for hf in range(2):
            p, r, c, sg = vt, vt + 1, vt + 2, vt + 3
            e(f"s_sub_u32 s{sT+2}, {64*hf}, s{sT}")
            e(f"v_add_u32 v{p}, s{sT+2}, v{vL}")
            e(f"v_and_b32 v{vt+4}, 0xff, v{p}")
            e(f"v_mul_u32_u24 v{r}, 2185, v{vt+4}")
            e(f"v_lshrrev_b32 v{r}, 16, v{r}")
            e(f"v_mul_u32_u24 v{c}, 30, v{r}")
            e(f"v_sub_u32 v{c}, v{vt+4}, v{c}")
            e(f"v_mul_u32_u24 v{sg}, 57, v{c}")
            e(f"v_lshrrev_b32 v{sg}, 9, v{sg}")
            e(f"v_mul_u32_u24 v{vt+4}, 9, v{sg}")
            e(f"v_sub_u32 v{vt+4}, v{c}, v{vt+4}")
            e(f"v_mul_u32_u24 v{r}, 3456, v{r}")
            e(f"v_mul_u32_u24 v{sg}, 1152, v{sg}")
            e(f"v_add3_u32 v{r}, v{r}, v{sg}, s{sT+1}")
            e(f"v_lshl_add_u32 v{r}, v{vt+4}, 4, v{r}")
            e(f"v_cmp_gt_u32 vcc, 120, v{p}")
            e(f"v_cmp_gt_u32 s[{sT+2}:{sT+3}], 27, v{c}")
            e(f"v_mov_b32 v{vt+5}, 0x{OOB:x}")
            e(f"s_and_b64 vcc, vcc, s[{sT+2}:{sT+3}]")
            e("s_nop 1")
            e(f"v_cndmask_b32 v{vD+hf}, v{vt+5}, v{r}, vcc")
        sBlk = sT + 2
        sXs_ = sT + 3
        e(f"s_lshr_b32 s{sT}, s{sI}, 2")
        e(f"s_and_b32 s{sT+1}, s{sI}, 3")
        e(f"s_lshl_b32 s{sT+1}, s{sT+1}, 1")
        e(f"s_add_u32 s{sBlk}, s{sT}, s{sT+1}")
        e(f"s_sub_u32 s{sT}, s{sBlk}, 9")
        e(f"s_cmp_ge_u32 s{sBlk}, 9")
        e(f"s_cselect_b32 s{sBlk}, s{sT}, s{sBlk}")
        e(f"s_mul_i32 s{sWoff}, s{sBlk}, {64*3456}")
        e(f"s_mul_i32 s{sT}, s{sLw}, {2*13824}")
        e(f"s_add_u32 s{sWoff}, s{sWoff}, s{sT}")
        e(f"s_add_u32 s{sWlim}, s{sT}, {576*3456}")
        e(f"s_lshl_b32 s{sM0}, s{sLw}, 12")
        e(f"s_lshl_b32 s{sT}, s{sLw}, 4")
        e(f"s_add_u32 s{sT}, s{sT}, s{sRow0}")
        e(f"s_mul_i32 s{sXo}, s{sT}, 1152")
        e(f"s_sub_u32 s{sT}, s{sRow0}, 16")
        e(f"s_max_i32 s{sT}, s{sT}, 0")
        e(f"s_mul_i32 s{sXh}, s{sT}, 1152")
        e(f"s_lshl_b32 s{sLx}, s{sLw}, 11")
        e(f"s_add_u32 s{sLx}, s{sLx}, 2048")
        e(f"s_mov_b32 s{sXs_}, {XR0}")
        e(f"s_mov_b32 s{sIt}, 0")
        e(f"s_cmp_eq_u32 s{sLw}, 0")
        e(f"s_cselect_b32 s{sHf}, s{sBr}, 0")
        make_srds()

        def issue_x(hh, lim):
            e(f"s_lshl_b32 s{sTl}, s{sBlk}, 7")
            e(f"s_cmp_lt_u32 s{sIt}, {lim}")
            e(f"s_cselect_b32 s{sTl}, s{sTl}, 0x{OOB:x}")
            e(f"s_add_u32 s{sTl+1}, s{sXs_}, s{sLx}")
            for i in range(2):
                e(f"s_add_u32 m0, s{sTl+1}, {hh*8192 + i*1024}")
                e(f"s_add_u32 s{sT}, s{sTl}, s{sXo}")
                if hh or i:
                    e(f"s_add_u32 s{sT}, s{sT}, {(hh*64 + i*8)*1152}")
                e(f"buffer_load_dwordx4 v{vXo+i}, {sr(sX,4)}, s{sT} offen lds")
            lab = e.newlab("k1h")
            e(f"s_cmp_eq_u32 s{sHf}, 0")
            e(f"s_cbranch_scc1 {lab}")
            e(f"s_add_u32 m0, s{sXs_}, {hh*1024}")
            e(f"s_add_u32 s{sT}, s{sTl}, s{sXh}")
            if hh:
                e(f"s_add_u32 s{sT}, s{sT}, {8*1152}")
            e(f"buffer_load_dwordx4 v{vXo+hh}, {sr(sX,4)}, s{sT} offen lds")
            e.label(lab)
            if hh:
                e(f"s_add_u32 s{sBlk}, s{sBlk}, 1")
                e(f"s_cmp_eq_u32 s{sBlk}, 9")
                e(f"s_cselect_b32 s{sBlk}, 0, s{sBlk}")
                e(f"s_add_u32 s{sXs_}, s{sXs_}, {XSLOT}")
                e(f"s_cmp_eq_u32 s{sXs_}, {XR0 + 3*XSLOT}")
                e(f"s_cselect_b32 s{sXs_}, {XR0}, s{sXs_}")

        def issue(par):
            e(f"s_cmp_lt_u32 s{sIt}, 18")
            e(f"s_cselect_b32 s{sTl+1}, s{sWoff}, 0x{OOB:x}")
            for j in range(2):
                for hf in range(2):
                    e(f"s_add_u32 m0, s{sM0}, {j*2048 + hf*1024}")
                    e(f"s_add_u32 s{sTl}, s{sTl+1}, {j*13824}")
                    e(f"buffer_load_dwordx4 v{vD+hf}, {sr(sWq,4)}, s{sTl} offen lds")
            issue_x(par ^ 1, 17)
            e(f"s_add_u32 s{sWoff}, s{sWoff}, {32*3456}")
            e(f"s_sub_u32 s{sTl}, s{sWoff}, {576*3456}")
            e(f"s_cmp_ge_u32 s{sWoff}, s{sWlim}")
            e(f"s_cselect_b32 s{sWoff}, s{sTl}, s{sWoff}")
            e(f"s_add_u32 s{sM0}, s{sM0}, {WSLOT}")
            e(f"s_and_b32 s{sM0}, s{sM0}, 0xffff")
            e(f"s_add_u32 s{sIt}, s{sIt}, 1")

        issue_x(0, 17)
        e("s_branch k1_l_i0")
        e.label("k1_l_loop")
        e(f"s_cmp_eq_u32 s{sIt}, 2")
        e("s_cbranch_scc1 k1_l_first")
        e("s_waitcnt vmcnt(12)")
        e("s_barrier")
        e.label("k1_l_i0")
        issue(0)
        e(f"s_cmp_lt_u32 s{sIt}, 4")
        e("s_cbranch_scc1 k1_l_i1")
        e("s_waitcnt vmcnt(12)")
        e("s_barrier")
        e.label("k1_l_i1")
        issue(1)
        e(f"s_cmp_eq_u32 s{sIt}, 4")
        e("s_cbranch_scc1 k1_l_scat")
        e.label("k1_l_cont")
        e(f"s_cmp_lt_u32 s{sIt}, 22")
        e("s_cbranch_scc1 k1_l_loop")
        e.stn = stn0 + 2 if STAMP else 0
        stamp(e)
        e("s_waitcnt vmcnt(0) lgkmcnt(0)")
        e("s_barrier")
        stamp(e)
        e(f"s_cmp_eq_u32 s{sBr}, 0")
        e("s_cbranch_scc1 k1_A_epi")
        e("s_branch k1_B_epi")
        e.label("k1_l_first")
        e.stn = stn0
        stamp(e)
        e(f"s_cmp_lg_u32 s{sBr}, 0")
        e("s_cbranch_scc1 k1_l_first2")
        e(f"v_subrev_u32 v{vT2}, 256, v0")
        e(f"s_mul_i32 s{sT}, s{sHg}, {4*324*2}")
        wb_issue_loads2(e, sPhi, sT, vT2, vWE, vWD, vt, 256)
        lds_zero(e, K1_WB0, WB_BYTES, vT2, tmp, 256)
        e(f"v_mov_b32 v{tmp}, 0x3f803f80")
        e(f"v_mov_b32 v{tmp+1}, 0x3f803f80")
        e(f"v_mov_b32 v{tmp+2}, {K1_ONES}")
        e(f"ds_write_b64 v{tmp+2}, {vr(tmp,2)}")
        e("s_waitcnt vmcnt(12) lgkmcnt(0)")
        e("s_barrier")
        stamp(e)
        e("s_branch k1_l_i0")
        e.label("k1_l_first2")
        e("s_waitcnt vmcnt(6)")
        e("s_barrier")
        e.stn = stn0 + 1 if STAMP else 0
        stamp(e)
        e("s_branch k1_l_i0")
        e.label("k1_l_scat")
        e(f"s_cmp_lg_u32 s{sBr}, 0")
        e("s_cbranch_scc1 k1_l_cont")
        e("s_waitcnt vmcnt(12)")
        wb_scatter2(e, K1_WB0, K1_DUMP2, vWE, vWD, tmp, 256)
        e("s_branch k1_l_cont")

    def lit_sel(dst, L, t, isB):
        if isB:
            e(f"s_cmp_eq_u32 s{sMi}, 0")
            e(f"s_cselect_b32 s{dst}, 0x{L[t]:x}, 0x{L[(t+3)%7]:x}") if False else (
                e(f"s_mov_b32 s{dst}, 0x{L[t]:x}"), e(f"s_mov_b32 s{dst+1}, 0x{L[(t+3)%7]:x}"),
                e(f"s_cselect_b32 s{dst}, s{dst}, s{dst+1}"))
        else:
            e(f"s_mov_b32 s{dst}, 0x{L[t]:x}")

    def compute(isB):
        tag = "B" if isB else "A"
        nrt = 5 if isB else 4
        stamp(e)
        def pf():
            return []
        base = vt + 6
        e(f"v_lshlrev_b32 v{base}, 12, v{vG}")
        e(f"v_and_b32 v{vt}, 1, v{vG}")
        e(f"v_lshl_add_u32 v{base}, v{vt}, 7, v{base}")
        e(f"v_mul_u32_u24 v{vt}, 480, v{vR4}")
        e(f"s_mul_i32 s{sT+2}, s{sNi}, 72")
        e(f"v_add3_u32 v{base}, v{base}, v{vt}, s{sT+2}")
        e(f"v_lshlrev_b32 v{vt+1}, 3, v{vC4}")
        for t in range(7):
            lit_sel(sT, LITW, t, isB)
            e(f"v_bfe_u32 v{vt}, s{sT}, v{vt+1}, 8")
            e(f"v_lshl_add_u32 v{vRA+t}, v{vt}, 3, v{base}")
        e(f"v_lshrrev_b32 v{vt}, 1, v{vL15}")
        e(f"v_xor_b32 v{vt}, v{vt}, v{vG}")
        e(f"v_lshlrev_b32 v{vt+1}, 7, v{vL15}")
        e(f"v_lshl_add_u32 v{vt}, v{vt}, 4, v{vt+1}")
        e(f"v_add_u32 v{vRA+9}, {XR0}, v{vt}")
        e(f"v_xor_b32 v{vRA+10}, 64, v{vRA+9}")
        e(f"s_lshl_b32 s{sT}, s{sMi}, 13")
        e(f"s_add_u32 s{sT}, s{sT}, 2048")
        e(f"v_add_u32 v{vRA+7}, s{sT}, v{vRA+9}")
        e(f"v_add_u32 v{vRA+8}, s{sT}, v{vRA+10}")
        for i in range(124 if isB else 112):
            e(f"v_mov_b32 v{ACC+i}, 0")

        def reads(fb):
            L = []
            for rt in range(4):
                L.append(f"ds_read_b128 {vr(FX + fb*20 + rt*4, 4)}, v{vRA+7+fb} offset:{rt*2048}")
            if isB:
                L.append(f"ds_read_b128 {vr(FX + fb*20 + 16, 4)}, v{vRA+9+fb}")
            for t in range(7):
                for h in range(2):
                    L.append(f"ds_read_b64_tr_b16 {vr(FW + fb*28 + t*4 + h*2, 2)}, v{vRA+t} offset:{h*2048}")
            return L

        def adv(fb):
            L = []
            if fb == 0:
                L += [f"s_add_u32 s{sSl}, s{sSl}, 1", f"s_cmp_eq_u32 s{sSl}, 3",
                      f"s_cselect_b32 s{sDl}, s{sTl}, s{sTl+1}", f"s_cselect_b32 s{sSl}, 0, s{sSl}"]
                for t in ([7, 9, 8, 10] if isB else [7, 8]):
                    L.append(f"v_add_u32 v{vRA+t}, s{sDl}, v{vRA+t}")
            for t in range(7):
                L.append(f"v_add_u32 v{vRA+t}, {WSLOT}, v{vRA+t}")
                L.append(f"v_and_b32 v{vRA+t}, 0xffff, v{vRA+t}")
            return L

        e(f"s_mov_b32 s{sTl}, {(-XSLOT*2) & 0xffffffff}")
        e(f"s_mov_b32 s{sTl+1}, {XSLOT}")
        e(f"s_mov_b32 s{sSl}, 0")
        e(f"s_mov_b32 s{sIt}, 0")
        e("s_barrier")
        stamp(e)
        for r in reads(0):
            e(r)
        for r in pf() + pf():
            e(r)
        Lp = f"k1_{tag}_cloop"
        e.label(Lp)
        for fb in range(2):
            e("s_waitcnt lgkmcnt(0)")
            e("s_barrier")
            M = []
            for t in range(7):
                for rt in range(4):
                    M.append(mf(ACC + (t * 4 + rt) * 4, FW + fb * 28 + t * 4, FX + fb * 20 + rt * 4))
                if isB and t < 3:
                    M.append(mf(ACC + 112 + t * 4, FW + fb * 28 + t * 4, FX + fb * 20 + 16))
            a = adv(fb ^ 1)
            oth = a + reads(fb ^ 1)
            tailx = pf() if fb == 0 else []
            oi = 0
            for i, m in enumerate(M):
                e(m)
                n = 3 if oi < len(a) else 1
                for _ in range(n):
                    if oi < len(oth):
                        e(oth[oi]); oi += 1
            assert oi == len(oth)
            for r in tailx:
                e(r)
        e(f"s_add_u32 s{sIt}, s{sIt}, 1")
        e(f"s_cmp_lt_u32 s{sIt}, 9")
        e(f"s_cbranch_scc1 {Lp}")
        stamp(e)
        e("s_waitcnt lgkmcnt(0)")
        e("s_barrier")
        stamp(e)

    def prefetch_wo():
        e(f"s_cmp_lt_u32 s{sI}, 16")
        e(f"s_cselect_b32 s{sPB}, s{sPP+2}, s{sPO}")
        e(f"s_cselect_b32 s{sPB+1}, s{sPP+3}, s{sPO+1}")
        e(f"s_and_b32 s{sTl+1}, s{sI}, 15")
        e(f"s_mul_i32 s{sTl+1}, s{sTl+1}, 324")
        e(f"s_mul_i32 s{sTl}, s{sW}, 41")
        e(f"s_add_u32 s{sTl+1}, s{sTl+1}, s{sTl}")
        e(f"v_min_u32 v{vt}, 40, v{vL}")
        e(f"v_add_u32 v{vt}, s{sTl+1}, v{vt}")
        e(f"v_lshlrev_b32 v{vt}, 7, v{vt}")
        srd(e, sX, sPB, WO_BYTES)
        e(f"buffer_load_dword v{vPF}, v{vt}, {sr(sX,4)}, 0 offen")

    e(f"s_cmp_lt_u32 s{sW}, 4")
    e("s_cbranch_scc1 k1_comp")
    loader()
    e.label("k1_comp")
    e.stn = stn0
    if os.environ.get('CODEPF', '1') != '0':
        e(f"s_and_b32 s{sT}, s{sI}, 7")
        e(f"s_cmp_lg_u32 s{sT}, 0")
        e("s_cbranch_scc1 k1_nopf")
        e(f"s_getpc_b64 {sr(sX,2)}")
        e.label("k1_pc")
        e(f"s_sub_u32 s{sX}, s{sX}, k1_pc - k1_kernel")
        e(f"s_subb_u32 s{sX+1}, s{sX+1}, 0")
        e(f"s_and_b32 s{sX+1}, s{sX+1}, 0xffff")
        e(f"s_mov_b32 s{sX+2}, code_end - k1_kernel")
        e(f"s_mov_b32 s{sX+3}, 0x00020000")
        e(f"v_lshlrev_b32 v{vt}, 7, v0")
        e(f"buffer_load_dword v{vPF}, v{vt}, {sr(sX,4)}, 0 offen")
        e.label("k1_nopf")
    make_srds()
    e(f"s_cmp_eq_u32 s{sBr}, 1")
    e("s_cbranch_scc1 k1_B")
    compute(False)
    PK = FW
    for u in range(28):
        a = ACC + u * 4
        e(f"v_cvt_pk_bf16_f32 v{PK+2*u}, v{a}, v{a+1}")
        e(f"v_cvt_pk_bf16_f32 v{PK+2*u+1}, v{a+2}, v{a+3}")
    vRowL = vt + 6
    vG8 = vt + 7
    e(f"s_lshl_b32 s{sT+2}, s{sMi}, 6")
    e(f"v_add_u32 v{vt}, s{sT+2}, v{vL15}")
    e(f"v_mul_u32_u24 v{vRowL}, {TA_PITCH}, v{vt}")
    e(f"s_mul_i32 s{sT+3}, s{sNi}, 72")
    e(f"v_add_u32 v{vRowL}, s{sT+3}, v{vRowL}")
    e(f"v_lshlrev_b32 v{vG8}, 3, v{vG}")
    for t in range(5):
        e(f"s_mov_b32 s{sT}, 0x{LITA[t]:x}")
        e(f"v_bfe_u32 v{vt}, s{sT}, v{vG8}, 8")
        e(f"v_lshl_add_u32 v{vt}, v{vt}, 3, v{vRowL}")
        if t == 4:
            e(f"v_cmp_lt_u32 vcc, 1, v{vG}")
            e(f"v_subrev_u32 v{vt+1}, s{sT+3}, v{vt}")
            e("s_nop 0")
            e(f"v_cndmask_b32 v{vt}, v{vt}, v{vt+1}, vcc")
        for rt in range(4):
            e(f"ds_write_b64 v{vt}, {vr(PK + (t*4+rt)*2, 2)} offset:{rt*16*TA_PITCH}")
    e(f"s_lshl_b32 s{sT}, s{sRb}, 3")
    e(f"s_lshl_b32 s{sT+1}, s{sMi}, 2")
    e(f"s_add_u32 s{sT}, s{sT}, s{sT+1}")
    e(f"s_mul_i32 s{sT}, s{sT}, 72")
    e(f"s_mul_i32 s{sT+1}, s{sHg}, 9")
    e(f"s_add_u32 s{sT}, s{sT}, s{sT+1}")
    e(f"s_lshl_b32 s{sT}, s{sT}, 8")
    e(f"s_add_u32 s{sT}, s{sT}, {WS_Q}")
    e(f"s_mul_i32 s{sT+2}, s{sNi}, 9")
    for t in range(4, 7):
        e(f"s_mov_b32 s{sT+1}, 0x{LITQ[t]:x}")
        e(f"v_bfe_u32 v{vt}, s{sT+1}, v{vG8}, 8")
        e(f"v_cmp_ne_u32 vcc, 255, v{vt}")
        e(f"v_add_u32 v{vt}, s{sT+2}, v{vt}")
        e(f"v_lshrrev_b32 v{vt+1}, 1, v{vt}")
        e(f"v_and_b32 v{vt}, 1, v{vt}")
        e(f"v_lshlrev_b32 v{vt+1}, 8, v{vt+1}")
        e(f"v_lshl_add_u32 v{vt+1}, v{vt}, 3, v{vt+1}")
        e(f"v_lshl_add_u32 v{vt+1}, v{vL15}, 4, v{vt+1}")
        e(f"v_mov_b32 v{vt+2}, 0x{OOB:x}")
        e(f"v_cndmask_b32 v{vt+3+(t-4)}, v{vt+2}, v{vt+1}, vcc")
    for rt in range(4):
        e(f"s_add_u32 s{sT+1}, s{sT}, {rt*18432}")
        for t in range(4, 7):
            e(f"buffer_store_dwordx2 {vr(PK + (t*4+rt)*2, 2)}, v{vt+3+(t-4)}, {sr(sWs,4)}, s{sT+1} offen")
    e.label("k1_A_epi")
    prefetch_wo()
    e(f"s_cmp_lg_u32 s{sRb}, 0")
    e("s_cbranch_scc1 k1_A_nodump")
    e(f"v_lshlrev_b32 v{vt}, 4, v0")
    e(f"v_add_u32 v{vt+1}, {K1_WB0}, v{vt}")
    e(f"v_min_u32 v{vt+2}, {WB_BYTES - 16 - 16384}, v{vt}")
    e(f"v_add_u32 v{vt+3}, {K1_WB0}, v{vt+2}")
    DW = ACC + 112
    e(f"ds_read_b128 {vr(DW,4)}, v{vt+1}")
    e(f"ds_read_b128 {vr(DW+4,4)}, v{vt+1} offset:8192")
    e(f"ds_read_b128 {vr(DW+8,4)}, v{vt+3} offset:16384")
    e(f"s_mul_i32 s{sTl}, s{sHg}, {WB_BYTES}")
    e(f"s_add_u32 s{sTl}, s{sTl}, {WS_WB}")
    e(f"s_add_u32 s{sTl+1}, s{sTl}, 8192")
    e("s_waitcnt lgkmcnt(0)")
    e(f"buffer_store_dwordx4 {vr(DW,4)}, v{vt}, {sr(sWs,4)}, s{sTl} offen")
    e(f"buffer_store_dwordx4 {vr(DW+4,4)}, v{vt}, {sr(sWs,4)}, s{sTl+1} offen")
    e(f"s_add_u32 s{sTl+1}, s{sTl}, 16384")
    e(f"buffer_store_dwordx4 {vr(DW+8,4)}, v{vt+2}, {sr(sWs,4)}, s{sTl+1} offen")
    e(f"s_cmp_lg_u32 s{sHg}, 0")
    e("s_cbranch_scc1 k1_A_nodump")
    e(f"v_lshlrev_b32 v{vt+4}, 3, v0")
    e(f"v_mov_b32 v{vt+2}, 0")
    e(f"v_mov_b32 v{vt+3}, 0")
    e(f"s_mov_b32 s{sTl}, {WS_FL}")
    e(f"buffer_store_dwordx2 {vr(vt+2,2)}, v{vt+4}, {sr(sWs,4)}, s{sTl} offen")
    e.label("k1_A_nodump")
    e("s_waitcnt lgkmcnt(0)")
    e("s_barrier")
    stamp(e)
    XR = ACC + 64
    BK = FX
    AW = ACC
    P = FX + 12
    e(f"s_lshl_b32 s{sT}, s{sW}, 4")
    e(f"v_add_u32 v{vt}, s{sT}, v{vL15}")
    e(f"v_mul_u32_u24 v{vt+1}, {TA_PITCH}, v{vt}")
    e(f"v_lshl_add_u32 v{vt+1}, v{vG}, 4, v{vt+1}")
    for st in range(3):
        e(f"ds_read_b128 {vr(BK+st*4,4)}, v{vt+1} offset:{st*64}")
    e(f"v_mul_u32_u24 v{vt+2}, {WB_PITCH}, v{vL15}")
    e(f"v_lshl_add_u32 v{vt+2}, v{vG}, 4, v{vt+2}")
    e(f"v_add_u32 v{vt+3}, {K1_WB0}, v{vt+2}")
    for cf in range(5):
        for st in range(3):
            e(f"ds_read_b128 {vr(AW+(cf*3+st)*4,4)}, v{vt+3} offset:{cf*16*WB_PITCH + st*64}")
    sL = e.s(2)
    e(f"s_mov_b32 s{sL}, 0x{LOG2E:x}")
    e(f"s_mov_b32 s{sL+1}, 0x{LOG2E:x}")
    for cf in range(5):
        e(f"s_waitcnt lgkmcnt({12 - 3*cf})")
        for st in range(3):
            mfma(e, P + cf * 4, AW + (cf * 3 + st) * 4, BK + st * 4, "0" if st == 0 else None)
    e("s_nop 7")
    E1 = XR
    E2 = XR + 18
    PH = XR + 36
    softmax_pm(e, P, E1, E2, PH, XR + 56 - 4 + 4, sL) if False else softmax_pm(e, P, E1, E2, PH, FW, sL)
    e(f"v_mul_u32_u24 v{vt+1}, {PHI_PITCH}, v{vt}")
    e(f"v_mul_u32_u24 v{vt+2}, 80, v{vG}")
    e(f"v_add_u32 v{vt+1}, v{vt+1}, v{vt+2}")
    for i in range(4):
        e(f"ds_write_b128 v{vt+1}, {vr(PH+i*4,4)} offset:{PHI0 + i*16}")
    e(f"ds_write_b64 v{vt+1}, {vr(PH+16,2)} offset:{PHI0 + 64}")
    sHh, sXx = sT + 2, sT + 3
    e(f"s_lshr_b32 s{sHh}, s{sW}, 1")
    e(f"s_and_b32 s{sXx}, s{sW}, 1")
    e(f"v_lshl_add_u32 v{vt}, v{vG}, 3, v{vR4}")
    e(f"v_mul_u32_u24 v{vt+1}, {PHI_PITCH}, v{vt}")
    e(f"v_lshl_add_u32 v{vt+1}, v{vC4}, 3, v{vt+1}")
    e(f"s_mul_i32 s{sT}, s{sHh}, 80")
    e(f"s_add_u32 s{sT}, s{sT}, {PHI0}")
    e(f"v_add_u32 v{vt+1}, s{sT}, v{vt+1}")
    e(f"v_mul_u32_u24 v{vt+2}, {TA_PITCH}, v{vt}")
    e(f"s_lshr_b32 s{sT}, s{sHh}, 1")
    e(f"s_mul_i32 s{sT}, s{sT}, 72")
    e(f"s_add_u32 s{sT}, s{sT}, 144")
    e(f"s_and_b32 s{sT+1}, s{sHh}, 1")
    e(f"s_mul_i32 s{sT+1}, s{sT+1}, 40")
    e(f"s_cmp_eq_u32 s{sXx}, 0")
    e(f"s_cselect_b32 s{sT+1}, s{sT+1}, 32")
    e(f"s_add_u32 s{sT}, s{sT}, s{sT+1}")
    e(f"v_lshl_add_u32 v{vt+3}, v{vC4}, 3, v{vt+2}")
    e(f"v_add_u32 v{vt+3}, s{sT}, v{vt+3}")
    sMask = e.s(2)
    e(f"v_cmp_lt_u32 {sr(sMask,2)}, 0, v{vC4}")
    e(f"s_cmp_eq_u32 s{sXx}, 0")
    e(f"s_cselect_b64 {sr(sMask,2)}, 0, {sr(sMask,2)}")
    e(f"v_mov_b32 v{vt+4}, {K1_ONES}")
    BA = FW + 8
    for ks in range(4):
        for h in range(2):
            off = (ks * 32 + h * 4)
            e(f"v_add_u32 v{BA+ks*2+h}, {off*TA_PITCH}, v{vt+3}")
            e(f"v_cndmask_b32 v{BA+ks*2+h}, v{BA+ks*2+h}, v{vt+4}, {sr(sMask,2)}")
    e("s_waitcnt lgkmcnt(0)")
    e("s_barrier")
    stamp(e)
    AF = ACC
    BF = ACC + 48
    KV = FX
    for ks in range(4):
        for h in range(2):
            off = (ks * 32 + h * 4)
            e(f"ds_read_b64_tr_b16 {vr(BF+ks*4+h*2,2)}, v{BA+ks*2+h}")
            for ft in range(3):
                e(f"ds_read_b64_tr_b16 {vr(AF+(ks*3+ft)*4+h*2,2)}, v{vt+1} offset:{off*PHI_PITCH + ft*32}")
    e(f"s_and_b32 s{sT+1}, s{sHh}, 1")
    e(f"s_lshl_b32 s{sT}, s{sT+1}, 1")
    e(f"v_add_u32 v{vt}, s{sT}, v{vL15}")
    e(f"v_subrev_u32 v{vt+1}, s{sT}, v{vL15}")
    e(f"s_xor_b32 s{sT+1}, s{sT+1}, 1")
    e(f"s_lshl_b32 s{sT+1}, s{sT+1}, 4")
    e(f"v_cmp_gt_u32 vcc, 2, v{vt+1}")
    e(f"v_add_u32 v{vt+1}, s{sT+1}, v{vt+1}")
    e(f"v_mov_b32 v{vt+2}, 0x10000")
    e("s_nop 0")
    e(f"v_cndmask_b32 v{vt+1}, v{vt+2}, v{vt+1}, vcc")
    e(f"v_cmp_eq_u32 vcc, 4, v{vL15}")
    e("s_nop 1")
    e(f"v_cndmask_b32 v{vt+1}, v{vt+1}, 18, vcc")
    e(f"s_cmp_eq_u32 s{sXx}, 0")
    e(f"s_cselect_b64 vcc, -1, 0")
    e("s_nop 1")
    e(f"v_cndmask_b32 v{vt}, v{vt+1}, v{vt}, vcc")
    e(f"v_mul_u32_u24 v{vt}, 144, v{vt}")
    e(f"v_lshl_add_u32 v{vt}, v{vG}, 4, v{vt}")
    e(f"s_lshl_b32 s{sT}, s{sRb}, 5")
    e(f"s_lshl_b32 s{sT+1}, s{sHg}, 2")
    e(f"s_add_u32 s{sT}, s{sT}, s{sT+1}")
    e(f"s_add_u32 s{sT}, s{sT}, s{sHh}")
    e(f"s_mul_i32 s{sT}, s{sT}, 2736")
    e(f"s_add_u32 s{sT}, s{sT}, {WS_P}")
    e(f"v_cmp_eq_u32 vcc, 0, v{vG}")
    e(f"v_mov_b32 v{vt+2}, 0x{OOB:x}")
    e("s_nop 1")
    e(f"v_cndmask_b32 v{vt+1}, v{vt+2}, v{vt}, vcc")
    for ks in range(4):
        e(f"s_waitcnt lgkmcnt({min(15, 24 - 8*ks)})" if ks < 3 else "s_waitcnt lgkmcnt(0)")
        for ft in range(3):
            mfma(e, KV + ft * 4, AF + (ks * 3 + ft) * 4, BF + ks * 4, "0" if ks == 0 else None)
    e("s_nop 7")
    e("s_nop 1")
    e(f"buffer_store_dwordx4 {vr(KV,4)}, v{vt}, {sr(sWs,4)}, s{sT} offen")
    e(f"buffer_store_dwordx4 {vr(KV+4,4)}, v{vt}, {sr(sWs,4)}, s{sT} offen offset:64")
    e(f"buffer_store_dwordx4 {vr(KV+8,4)}, v{vt+1}, {sr(sWs,4)}, s{sT} offen offset:128")
    stamp_dump(e, sWs, 0, vt, sT)
    e("s_endpgm")
    e.label("k1_B")
    e.stn = stn0
    compute(True)
    PK = FW
    for u in range(31):
        a = ACC + u * 4
        e(f"v_cvt_pk_bf16_f32 v{PK+2*u}, v{a}, v{a+1}")
        e(f"v_cvt_pk_bf16_f32 v{PK+2*u+1}, v{a+2}, v{a+3}")
    vRowL = vt + 6
    vG8 = vt + 7
    e(f"v_mul_u32_u24 v{vRowL}, {TB_PITCH}, v{vL15}")
    e(f"s_mul_i32 s{sT+3}, s{sNi}, 80")
    e(f"v_add_u32 v{vRowL}, s{sT+3}, v{vRowL}")
    e(f"v_lshlrev_b32 v{vG8}, 3, v{vG}")
    sMo = sT + 2
    e(f"s_lshl_b32 s{sMo}, s{sMi}, 6")
    e(f"s_add_u32 s{sMo}, s{sMo}, 16")
    e(f"s_mul_i32 s{sMo}, s{sMo}, {TB_PITCH}")
    for t in range(7):
        lit_sel(sT, LITB, t, True)
        e(f"v_bfe_u32 v{vt}, s{sT}, v{vG8}, 8")
        e(f"v_lshl_add_u32 v{vt}, v{vt}, 3, v{vRowL}")
        e(f"v_add_u32 v{vt+1}, s{sMo}, v{vt}")
        for rt in range(4):
            e(f"ds_write_b64 v{vt+1}, {vr(PK + (t*4+rt)*2, 2)} offset:{rt*16*TB_PITCH}")
        if t < 3:
            e(f"ds_write_b64 v{vt}, {vr(PK + (28+t)*2, 2)}")
    e.label("k1_B_epi")
    prefetch_wo()
    base = ACC
    Q = base
    KK = base + 10
    VV = base + 90
    LG = base + 170
    assert LG + 8 <= vtop
    O = KK
    AL = KK + 20
    AH = KK + 28
    vM, vR, vS = vt + 4, vt + 5, vt + 6
    e(f"s_and_b32 s{sT}, s{sW}, 3")
    e(f"s_lshr_b32 s{sT+1}, s{sW}, 2")
    e(f"s_lshl_b32 s{sT+1}, s{sT+1}, 6")
    e(f"v_add_u32 v{vS}, s{sT+1}, v{vL}")
    e(f"v_add_u32 v{vt}, 2, v{vS}")
    e(f"v_mul_u32_u24 v{vt}, {TB_PITCH}, v{vt}")
    e(f"s_lshr_b32 s{sT+2}, s{sT}, 1")
    e(f"s_mul_i32 s{sT+2}, s{sT+2}, 80")
    e(f"s_and_b32 s{sT+3}, s{sT}, 1")
    e(f"s_mul_i32 s{sTl}, s{sT+3}, 48")
    e(f"s_add_u32 s{sTl}, s{sTl}, s{sT+2}")
    e(f"v_add_u32 v{vM}, s{sTl}, v{vt}")
    e(f"s_lshl_b32 s{sTl}, s{sT+3}, 2")
    e(f"s_add_u32 s{sTl}, s{sTl}, s{sT+2}")
    e(f"s_add_u32 s{sTl}, s{sTl}, 32")
    e(f"v_add_u32 v{vR}, s{sTl}, v{vt}")
    vO = vt + 7
    e(f"v_mul_u32_u24 v{vO}, 144, v{vS}")
    e(f"s_mul_i32 s{sTl}, s{sT}, 36")
    e(f"s_add_u32 s{sTl}, s{sTl}, {OB0}")
    e(f"v_add_u32 v{vO}, s{sTl}, v{vO}")
    e(f"v_add_u32 v{vS}, s{sRow0}, v{vS}")
    sMk = e.s(16, 2)
    for w in range(1, 8):
        e(f"v_cmp_le_u32 {sr(sMk+2*w,2)}, {2*w}, v{vS}")
    e("s_waitcnt lgkmcnt(0)")
    e("s_barrier")
    stamp(e)

    def rdseg(dst, typ, w):
        off = (14 - 2 * w) * TB_PITCH + typ * 160
        e(f"ds_read_b128 {vr(dst,4)}, v{vM} offset:{off}")
        e(f"ds_read_b128 {vr(dst+4,4)}, v{vM} offset:{off+16}")
        e(f"ds_read_b32 v{dst+8}, v{vR} offset:{off}")

    rdseg(Q, 0, 0)
    for w in range(8):
        rdseg(KK + w * 10, 1, w)
    for w in range(8):
        e(f"v_mov_b32 v{LG+w}, 0")
    e("s_waitcnt lgkmcnt(12)")
    for w in range(4):
        rdseg(VV + w * 10, 2, w)
    for p in range(9):
        for w in range(4):
            e(f"v_dot2c_f32_bf16 v{LG+w}, v{Q+p}, v{KK+w*10+p}")
    e("s_waitcnt lgkmcnt(12)")
    for w in range(4, 8):
        rdseg(VV + w * 10, 2, w)
    for p in range(9):
        for w in range(4, 8):
            e(f"v_dot2c_f32_bf16 v{LG+w}, v{Q+p}, v{KK+w*10+p}")
    e(f"v_mov_b32 v{vt}, 0xf149f2ca")
    e("s_nop 2")
    for w in range(1, 8):
        e(f"v_cndmask_b32 v{LG+w}, v{vt}, v{LG+w}, {sr(sMk+2*w,2)}")
    e(f"v_max3_f32 v{vt}, v{LG}, v{LG+1}, v{LG+2}")
    e(f"v_max3_f32 v{vt}, v{vt}, v{LG+3}, v{LG+4}")
    e(f"v_max3_f32 v{vt}, v{vt}, v{LG+5}, v{LG+6}")
    e(f"v_max_f32 v{vt}, v{vt}, v{LG+7}")
    import struct, math
    cval = struct.unpack("<I", struct.pack("<f", (18 ** -0.5) * math.log2(math.e)))[0]
    e(f"s_mov_b32 s{sT+2}, 0x{cval:x}")
    e(f"v_mul_f32 v{vt}, s{sT+2}, v{vt}")
    for w in range(8):
        e(f"v_fma_f32 v{LG+w}, v{LG+w}, s{sT+2}, -v{vt}")
    for w in range(8):
        e(f"v_exp_f32 v{LG+w}, v{LG+w}")
    e("s_nop 0")
    e(f"v_add_f32 v{vt}, v{LG}, v{LG+1}")
    for w in range(2, 8):
        e(f"v_add_f32 v{vt}, v{vt}, v{LG+w}")
    e(f"v_rcp_f32 v{vt}, v{vt}")
    for i in range(18):
        e(f"v_mov_b32 v{O+i}, 0")
    for w in range(8):
        e(f"v_mul_f32 v{LG+w}, v{LG+w}, v{vt}")
    for w in range(8):
        e(f"v_cvt_pk_bf16_f32 v{AL+w}, v{LG+w}, 0")
        e(f"v_cvt_pk_bf16_f32 v{AH+w}, 0, v{LG+w}")
    e("s_waitcnt lgkmcnt(0)")
    for w in range(8):
        for p in range(9):
            e(f"v_dot2c_f32_bf16 v{O+2*p}, v{AL+w}, v{VV+w*10+p}")
            e(f"v_dot2c_f32_bf16 v{O+2*p+1}, v{AH+w}, v{VV+w*10+p}")
    e("s_nop 2")
    OP = Q
    for p in range(9):
        e(f"v_cvt_pk_bf16_f32 v{OP+p}, v{O+2*p}, v{O+2*p+1}")
    e(f"s_lshl_b32 s{sTl}, s{sT+3}, 2")
    e(f"v_add_u32 v{vt}, s{sTl}, v{vO}")
    for i in range(4):
        e(f"ds_write_b64 v{vt}, {vr(OP+2*i,2)} offset:{8*i}")
    e(f"s_xor_b32 s{sT+3}, s{sT+3}, 1")
    e(f"s_lshl_b32 s{sT+3}, s{sT+3}, 5")
    e(f"v_add_u32 v{vt+1}, s{sT+3}, v{vO}")
    e(f"ds_write_b32 v{vt+1}, v{OP+8}")
    e(f"s_lshl_b32 s{sT}, s{sW}, 4")
    e(f"v_add_u32 v{vt}, s{sT}, v{vL15}")
    e(f"v_mul_u32_u24 v{vt}, 144, v{vt}")
    e(f"v_lshl_add_u32 v{vt}, v{vG}, 4, v{vt}")
    e(f"v_add_u32 v{vt}, {OB0}, v{vt}")
    e(f"v_lshlrev_b32 v{vt+1}, 4, v{vL}")
    e(f"v_cmp_eq_u32 vcc, 0, v{vG}")
    e(f"v_mov_b32 v{vt+2}, 0x{OOB:x}")
    e(f"s_lshl_b32 s{sT}, s{sRb}, 3")
    e(f"s_add_u32 s{sT}, s{sT}, s{sW}")
    e(f"v_cndmask_b32 v{vt+2}, v{vt+2}, v{vt+1}, vcc")
    e(f"s_mul_i32 s{sT}, s{sT}, 72")
    e(f"s_mul_i32 s{sT+1}, s{sHg}, 9")
    e(f"s_add_u32 s{sT}, s{sT}, s{sT+1}")
    e(f"s_lshl_b32 s{sT}, s{sT}, 8")
    e(f"s_add_u32 s{sT}, s{sT}, {WS_OB}")
    e("s_waitcnt lgkmcnt(0)")
    e("s_barrier")
    CO = KK
    for i in range(3):
        e(f"ds_read_b128 {vr(CO+4*i,4)}, v{vt} offset:{64*i}")
    for i in range(3):
        e(f"s_waitcnt lgkmcnt({2-i})")
        e(f"buffer_store_dwordx4 {vr(CO+4*i,4)}, v{vt+1 if i < 2 else vt+2}, {sr(sWs,4)}, s{sT} offen offset:{1024*i}")
    stamp_dump(e, sWs, 0, vt, sT)
    e("s_endpgm")
    e.label(Lend)
    e("s_endpgm")
    return e.vmax, e.smax


GEMM_LDS = 576 * 128


def gemm_pre(e, NW, sRbk, sNb, sW, vL, vL15, vG, vR4, vC4, vt, sT):
    g = {}
    sRt, sRot = e.s(), e.s()
    e(f"s_mul_i32 s{sRt}, s{sRbk}, {NW}")
    e(f"s_add_u32 s{sRt}, s{sRt}, s{sW}")
    e(f"s_lshl_b32 s{sRot}, s{sRbk}, 1")
    e(f"s_add_u32 s{sRot}, s{sRot}, s{sNb}")
    e(f"s_mul_i32 s{sT}, s{sRot}, 7282")
    e(f"s_lshr_b32 s{sT}, s{sT}, 16")
    e(f"s_mul_i32 s{sT}, s{sT}, 9")
    e(f"s_sub_u32 s{sRot}, s{sRot}, s{sT}")
    vX = e.v()
    e(f"v_lshlrev_b32 v{vX}, 4, v{vL}")
    vD = e.v(2)
    e(f"v_and_b32 v{vt}, 1, v{vG}")
    e(f"v_lshlrev_b32 v{vt}, 1, v{vt}")
    e(f"v_and_b32 v{vt+1}, 7, v{vL}")
    e(f"v_xor_b32 v{vt}, v{vt}, v{vt+1}")
    e(f"v_lshrrev_b32 v{vt+1}, 3, v{vL}")
    e(f"v_mul_u32_u24 v{vt+1}, 1152, v{vt+1}")
    e(f"v_lshl_add_u32 v{vD}, v{vt}, 4, v{vt+1}")
    e(f"v_xor_b32 v{vD+1}, 64, v{vD}")
    g.update(sRt=sRt, sRot=sRot, vX=vX, vD=vD)
    return g


W2OFF = GEMM_LDS
STG0 = 2 * GEMM_LDS
K23_LDS = STG0 + 8 * 2048


def out_stage(e, ACC, PKd, sW, sRt, sOcol, sOut, vL, vL15, vG, vt, sT):
    for t in range(4):
        a = ACC + t * 4
        d = PKd + t * 2
        e(f"v_cvt_pk_bf16_f32 v{d}, v{a}, v{a+1}")
        e(f"v_cvt_pk_bf16_f32 v{d+1}, v{a+2}, v{a+3}")
    e(f"s_lshl_b32 s{sT}, s{sW}, 11")
    e(f"s_add_u32 s{sT}, s{sT}, {STG0}")
    e(f"v_lshrrev_b32 v{vt}, 1, v{vG}")
    e(f"v_and_b32 v{vt+1}, 7, v{vL15}")
    e(f"v_xor_b32 v{vt}, v{vt}, v{vt+1}")
    e(f"v_lshlrev_b32 v{vt}, 4, v{vt}")
    e(f"v_lshl_add_u32 v{vt}, v{vL15}, 7, v{vt}")
    e(f"v_and_b32 v{vt+1}, 1, v{vG}")
    e(f"v_lshl_add_u32 v{vt}, v{vt+1}, 3, v{vt}")
    e(f"v_add_u32 v{vt}, s{sT}, v{vt}")
    for t in range(4):
        if t:
            e(f"v_xor_b32 v{vt+1}, {t*32}, v{vt}")
        e(f"ds_write_b64 v{vt+1 if t else vt}, {vr(PKd+t*2,2)}")
    e(f"v_lshrrev_b32 v{vt+2}, 3, v{vL}")
    e(f"v_and_b32 v{vt+3}, 7, v{vL}")
    e(f"v_xor_b32 v{vt+4}, v{vt+3}, v{vt+2}")
    e(f"v_lshlrev_b32 v{vt+4}, 4, v{vt+4}")
    e(f"v_lshl_add_u32 v{vt+4}, v{vt+2}, 7, v{vt+4}")
    e(f"v_add_u32 v{vt+4}, s{sT}, v{vt+4}")
    e(f"s_lshl_b32 s{sT+1}, s{sRt}, 4")
    e(f"v_add_u32 v{vt+2}, s{sT+1}, v{vt+2}")
    e(f"v_mul_u32_u24 v{vt+2}, 2304, v{vt+2}")
    e(f"v_lshl_add_u32 v{vt+2}, v{vt+3}, 4, v{vt+2}")
    e(f"s_add_u32 s{sT+1}, s{sOcol}, {8*2304}")
    e("s_waitcnt lgkmcnt(0)")
    e(f"ds_read_b128 {vr(PKd+8,4)}, v{vt+4}")
    e(f"ds_read_b128 {vr(PKd+12,4)}, v{vt+4} offset:1024")
    e("s_waitcnt lgkmcnt(1)")
    e(f"buffer_store_dwordx4 {vr(PKd+8,4)}, v{vt+2}, {sr(sOut,4)}, s{sOcol} offen")
    e("s_waitcnt lgkmcnt(0)")
    e(f"buffer_store_dwordx4 {vr(PKd+12,4)}, v{vt+2}, {sr(sOut,4)}, s{sT+1} offen")


def rd_addr(e, vRA, base, vG, vR4, vC4, vt):
    e(f"v_lshl_add_u32 v{vt}, v{vG}, 3, v{vR4}")
    e(f"v_lshlrev_b32 v{vt}, 7, v{vt}")
    e(f"v_lshl_add_u32 v{vt}, v{vC4}, 3, v{vt}")
    e(f"v_lshrrev_b32 v{vt+1}, 1, v{vR4}")
    e(f"v_and_b32 v{vt+2}, 1, v{vG}")
    e(f"v_lshl_add_u32 v{vt+1}, v{vt+2}, 1, v{vt+1}")
    e(f"v_lshl_add_u32 v{vRA}, v{vt+1}, 5, v{vt}")
    if base:
        e(f"v_add_u32 v{vRA}, {base}, v{vRA}")
    for t in range(1, 4):
        e(f"v_xor_b32 v{vRA+t}, {t<<5}, v{vRA}")


def grp_src(e, sG, sRot, sCol, sT):
    e(f"s_lshr_b32 s{sT}, s{sG}, 2")
    e(f"s_add_u32 s{sT}, s{sT}, s{sRot}")
    e(f"s_sub_u32 s{sT+1}, s{sT}, 9")
    e(f"s_cmp_ge_u32 s{sT}, 9")
    e(f"s_cselect_b32 s{sT}, s{sT+1}, s{sT}")
    e(f"s_lshl_b32 s{sT}, s{sT}, 2")
    e(f"s_and_b32 s{sT+1}, s{sG}, 3")
    e(f"s_add_u32 s{sT}, s{sT}, s{sT+1}")
    e(f"s_mul_i32 s{sT}, s{sT}, 18432")
    e(f"s_add_u32 s{sT}, s{sT}, s{sCol}")


def gemm_body(e, g, NW, sCol, sXoff, sOcol, sW, sXs, sWo, sOut, vL, vL15, vG, vR4, vC4, vt, sT, w2issue):
    sRt, sRot, vX, vD = g["sRt"], g["sRot"], g["vX"], g["vD"]
    nct = 4
    nph = (36 + NW - 1) // NW
    kslist = []
    ksdone = 0
    for ph in range(nph):
        ksnew = min(36, (ph + 1) * NW) // 2
        kslist.append(list(range(ksdone, ksnew)))
        ksdone = ksnew
    mxk = max(len(k) for k in kslist)
    cnt = [2 + len(k) for k in kslist] + [0, 0, 0, 0]
    XR = e.v(72, 4)
    ACC = e.v(4 * nct, 4)
    F = e.v(mxk * nct * 4, 4)
    vRA = e.v(4)
    sM0, sG, sXb, sXk, sXc = e.s(), e.s(), e.s(), e.s(), e.s()
    e(f"s_lshl_b32 s{sM0}, s{sW}, 11")
    e(f"s_mov_b32 s{sG}, s{sW}")
    e(f"s_mul_i32 s{sXb}, s{sRt}, 18432")
    e(f"s_add_u32 s{sXb}, s{sXb}, s{sXoff}")
    e(f"s_lshl_b32 s{sXk}, s{sRot}, 11")

    def issue(ph):
        if ph >= nph:
            return
        for ks in kslist[ph]:
            if ks % 2 == 0:
                e(f"s_add_u32 s{sXc}, s{sXb}, s{sXk}")
            e(f"buffer_load_dwordx4 {vr(XR+ks*4,4)}, v{vX}, {sr(sXs,4)}, s{sXc} offen offset:{(ks%2)*1024}")
            if ks % 2 == 1:
                e(f"s_add_u32 s{sXk}, s{sXk}, 2048")
                e(f"s_cmp_eq_u32 s{sXk}, 18432")
                e(f"s_cselect_b32 s{sXk}, 0, s{sXk}")
        grp_src(e, sG, sRot, sCol, sT)
        if (ph + 1) * NW > 36:
            e(f"s_cmp_lt_u32 s{sG}, 36")
            e(f"s_cselect_b32 s{sT}, s{sT}, 0x{OOB:x}")
            e(f"s_cselect_b32 s{sT+1}, s{sM0}, {STG0 - ph*NW*2048}")
        else:
            e(f"s_mov_b32 s{sT+1}, s{sM0}")
        e(f"s_add_u32 m0, s{sT+1}, {ph*NW*2048}")
        e(f"s_add_u32 s{sG}, s{sG}, {NW}")
        e(f"buffer_load_dwordx4 v{vD}, {sr(sWo,4)}, s{sT} offen lds")
        e(f"s_add_u32 m0, s{sT+1}, {ph*NW*2048 + 1024}")
        e(f"s_add_u32 s{sT}, s{sT}, {8*1152}")
        e(f"buffer_load_dwordx4 v{vD+1}, {sr(sWo,4)}, s{sT} offen lds")

    DEPTH = int(os.environ.get('GDEPTH', '2'))
    for ph in range(DEPTH):
        issue(ph)
    stamp(e)
    rd_addr(e, vRA, 0, vG, vR4, vC4, vt)
    for i in range(4 * nct):
        e(f"v_mov_b32 v{ACC+i}, 0")
    rebased = False
    for ph in range(nph):
        rem = sum(cnt[ph + 1: min(nph, ph + DEPTH)])
        e(f"s_waitcnt vmcnt({rem})")
        e("s_barrier")
        if ph in (0, nph - 1): stamp(e)
        kss = kslist[ph]
        for i, ks in enumerate(kss):
            if ks >= 12 and not rebased:
                for t in range(4):
                    e(f"v_add_u32 v{vRA+t}, {12*4096}, v{vRA+t}")
                rebased = True
            o = (ks - 12 if ks >= 12 else ks) * 4096
            for t in range(nct):
                for h in range(2):
                    e(f"ds_read_b64_tr_b16 {vr(F+(i*nct+t)*4+h*2,2)}, v{vRA+t} offset:{o + h*512}")
        issue(ph + DEPTH)
        if ph == nph - 1:
            w2issue()
        tot = len(kss) * nct * 2
        for i, ks in enumerate(kss):
            for t in range(nct):
                left = tot - 2 * (i * nct + t + 1)
                if t % 2 == 0:
                    e(f"s_waitcnt lgkmcnt({min(15, left - 2)})")
                mfma(e, ACC + t * 4, F + (i * nct + t) * 4, XR + ks * 4)
    e("s_nop 7")
    out_stage(e, ACC, F, sW, sRt, sOcol, sOut, vL, vL15, vG, vt, sT)


def common_ids(e):
    vTid = e.v()
    vL, vL15, vG, vR4, vC4 = [e.v() for _ in range(5)]
    vt = e.v(8, 2)
    sW = e.s()
    e(f"v_lshrrev_b32 v{vt}, 6, v0")
    e(f"v_and_b32 v{vL}, 63, v0")
    e(f"v_readfirstlane_b32 s{sW}, v{vt}")
    e(f"v_and_b32 v{vL15}, 15, v0")
    e(f"v_lshrrev_b32 v{vG}, 4, v{vL}")
    e(f"v_bfe_u32 v{vR4}, v0, 2, 2")
    e(f"v_and_b32 v{vC4}, 3, v0")
    return vL, vL15, vG, vR4, vC4, vt, sW


def div9(e, sQ, sR, sU):
    e(f"s_mul_i32 s{sQ}, s{sU}, 7282")
    e(f"s_lshr_b32 s{sQ}, s{sQ}, 16")
    e(f"s_mul_i32 s{sR}, s{sQ}, 9")
    e(f"s_sub_u32 s{sR}, s{sU}, s{sR}")


K2_GRID = 256
P2_NW = 6


K2_WB0 = 0
K2_KV0 = 17408
K2_Z0 = K2_KV0 + 6400
K2_ZEND = K2_Z0 + 1536
K2_DUMP = K2_ZEND
K2_O0 = K2_ZEND + 64


def gen_k2(e):
    e.reset()
    e.s(3)
    e.label("k2_kernel")
    e(f"s_cmp_ge_u32 s2, {K2_GRID}")
    e("s_cbranch_scc1 k2_end")
    stamp_init(e); stamp(e)
    sPA = e.s(2)
    sPB = e.s(4)
    sPD = e.s(4)
    e(f"s_load_dwordx2 {sr(sPA,2)}, s[0:1], 24")
    e(f"s_load_dwordx4 {sr(sPB,4)}, s[0:1], 48")
    e(f"s_load_dwordx4 {sr(sPD,4)}, s[0:1], 64")
    sT = e.s(4)
    sJ, sI = e.s(), e.s()
    e(f"s_and_b32 s{sJ}, s2, 7")
    e(f"s_lshr_b32 s{sI}, s2, 3")
    vL, vL15, vG, vR4, vC4, vt, sW = common_ids(e)
    sXs, sWo, sOut, sW2, sDbg = e.s(4), e.s(4), e.s(4), e.s(4), e.s(4)
    sU, sRbk2, sNb2 = e.s(), e.s(), e.s()
    e(f"s_mul_i32 s{sU}, s{sJ}, 28")
    e(f"s_add_u32 s{sU}, s{sU}, s{sI}")
    e(f"s_cmp_lt_u32 s{sI}, 28")
    e(f"s_cselect_b32 s{sU}, s{sU}, 255")
    e(f"s_mul_i32 s{sRbk2}, s{sU}, 6554")
    e(f"s_lshr_b32 s{sRbk2}, s{sRbk2}, 16")
    e(f"s_mul_i32 s{sNb2}, s{sRbk2}, 10")
    e(f"s_sub_u32 s{sNb2}, s{sU}, s{sNb2}")
    g2 = gemm_pre(e, P2_NW, sRbk2, sNb2, sW, vL, vL15, vG, vR4, vC4, vt, sT)
    sCol2, sXoff2, sOcol2 = e.s(), e.s(), e.s()
    e(f"s_lshl_b32 s{sCol2}, s{sNb2}, 7")
    e(f"s_mov_b32 s{sXoff2}, {WS_OA}")
    e(f"s_movk_i32 s{sT}, {1152 + 1024}")
    e(f"s_cmp_eq_u32 s{sNb2}, 9")
    e(f"s_cselect_b32 s{sOcol2}, s{sT}, s{sCol2}")
    e(f"s_cselect_b32 s{sCol2}, 1024, s{sCol2}")
    e(f"s_cselect_b32 s{sXoff2}, {WS_OB}, s{sXoff2}")

    def srds():
        e("s_waitcnt lgkmcnt(0)")
        srd(e, sXs, sPD + 2, WS_BYTES)
        srd(e, sWo, sPB, WO_BYTES)
        srd(e, sOut, sPB + 2, OUT_BYTES)
        srd(e, sDbg, sPD, 256)
        e(f"s_cmp_eq_u32 s{sNb2}, 9")
        e(f"s_cselect_b32 s{sPA}, s{sPB}, s{sPA}")
        e(f"s_cselect_b32 s{sPA+1}, s{sPB+1}, s{sPA+1}")
        srd(e, sW2, sPA, WO_BYTES)

    sG2 = e.s()

    def w2issue():
        e(f"s_lshr_b32 s{sG2}, s{sW}, 1")
        e(f"s_and_b32 s{sT+2}, s{sW}, 1")
        e(f"s_cmp_eq_u32 s{sT+2}, 0")
        e(f"s_cselect_b64 vcc, -1, 0")
        e(f"s_mul_i32 s{sT+3}, s{sT+2}, {8*1152}")
        e(f"s_cmp_lt_u32 s{sU}, 220")
        e(f"s_cselect_b32 s{sT+3}, s{sT+3}, 0x{OOB:x}")
        e(f"v_cndmask_b32 v{vW2}, v{g2['vD']+1}, v{g2['vD']}, vcc")
        e(f"s_lshl_b32 s{sT+2}, s{sT+2}, 10")
        e(f"s_add_u32 s{sT+2}, s{sT+2}, {W2OFF}")
        lp = e.newlab("k2wl")
        e.label(lp)
        grp_src(e, sG2, g2["sRot"], sCol2, sT)
        e(f"s_lshl_b32 s{sT+1}, s{sG2}, 11")
        e(f"s_add_u32 m0, s{sT+1}, s{sT+2}")
        e(f"s_add_u32 s{sT}, s{sT}, s{sT+3}")
        e(f"s_add_u32 s{sG2}, s{sG2}, 4")
        e(f"buffer_load_dwordx4 v{vW2}, {sr(sW2,4)}, s{sT} offen lds")
        e(f"s_cmp_lt_u32 s{sG2}, 36")
        e(f"s_cbranch_scc1 {lp}")

    vW2 = e.v()
    vmark, smark = e.vn, e.sn
    e(f"s_cmp_lt_u32 s{sI}, 16")
    e("s_cbranch_scc1 k2_A")
    stn0 = getattr(e, "stn", 0)
    sRbk, sNb = e.s(), e.s()
    e(f"s_sub_u32 s{sT}, s{sI}, 16")
    e(f"s_lshr_b32 s{sT+1}, s{sT}, 3")
    e(f"s_lshl_b32 s{sRbk}, s{sJ}, 1")
    e(f"s_add_u32 s{sRbk}, s{sRbk}, s{sT+1}")
    e(f"s_and_b32 s{sNb}, s{sT}, 7")
    g = {"vX": g2["vX"], "vD": g2["vD"], "sRt": e.s(), "sRot": e.s()}
    e(f"s_lshl_b32 s{g['sRt']}, s{sRbk}, 3")
    e(f"s_add_u32 s{g['sRt']}, s{g['sRt']}, s{sW}")
    e(f"s_lshl_b32 s{g['sRot']}, s{sRbk}, 1")
    e(f"s_add_u32 s{g['sRot']}, s{g['sRot']}, s{sNb}")
    e(f"s_mul_i32 s{sT}, s{g['sRot']}, 7282")
    e(f"s_lshr_b32 s{sT}, s{sT}, 16")
    e(f"s_mul_i32 s{sT}, s{sT}, 9")
    e(f"s_sub_u32 s{g['sRot']}, s{g['sRot']}, s{sT}")
    sCol, sXoff, sOcol = e.s(), e.s(), e.s()
    e(f"s_lshl_b32 s{sCol}, s{sNb}, 7")
    e(f"s_mov_b32 s{sXoff}, {WS_OB}")
    e(f"s_add_u32 s{sOcol}, s{sCol}, 1152")
    srds()
    gemm_body(e, g, 8, sCol, sXoff, sOcol, sW, sXs, sWo, sOut, vL, vL15, vG, vR4, vC4, vt, sT, w2issue)
    if STAMP:
        e.stn = stn0 + 4
    e("s_branch k2_P2")
    e.label("k2_A")
    e.stn = stn0
    e.vn, e.sn = vmark, smark
    sHg, sRb = sJ, sI
    sOF = e.s()
    vL16 = e.v()
    vU = e.v(2)
    BQ = e.v(12, 4)
    e(f"s_lshl_b32 s{sOF}, s{sRb}, 3")
    e(f"s_add_u32 s{sOF}, s{sOF}, s{sW}")
    e(f"s_mul_i32 s{sOF}, s{sOF}, 72")
    e(f"s_mul_i32 s{sT}, s{sHg}, 9")
    e(f"s_add_u32 s{sOF}, s{sOF}, s{sT}")
    e(f"s_lshl_b32 s{sOF}, s{sOF}, 8")
    e(f"v_lshlrev_b32 v{vL16}, 4, v{vL}")
    srds()
    e(f"s_mul_i32 s{sT}, s{sHg}, {WB_BYTES}")
    e(f"s_lshl_b32 s{sT+1}, s{sW}, 10")
    e(f"s_add_u32 s{sT}, s{sT}, s{sT+1}")
    e(f"s_add_u32 s{sT}, s{sT}, {WS_WB}")
    for i in range(3):
        e(f"s_add_u32 m0, s{sT+1}, {K2_WB0 + i*8192}")
        e(f"s_add_u32 s{sT+2}, s{sT}, {i*8192}")
        if i == 2:
            e(f"s_cmp_eq_u32 s{sW}, 0")
            e(f"s_cselect_b32 s{sT+2}, s{sT+2}, 0x{OOB:x}")
            e(f"s_cselect_b32 s{sT+3}, m0, {K2_O0}")
            e(f"s_mov_b32 m0, s{sT+3}")
            e("s_nop 0")
        e(f"buffer_load_dwordx4 v{vL16}, {sr(sXs,4)}, s{sT+2} offen lds")
    e(f"s_add_u32 s{sT}, s{sOF}, {WS_Q}")
    for st in range(3):
        e(f"buffer_load_dwordx4 {vr(BQ+st*4,4)}, v{vL16}, {sr(sXs,4)}, s{sT} offen offset:{st*1024}")
    PR = e.v(128, 4)
    AW = e.v(60, 4)
    P = e.v(20, 4)
    e(f"v_lshlrev_b32 v{vU}, 4, v0")
    e(f"v_add_u32 v{vU+1}, {512*16}, v{vU}")
    e(f"v_cmp_gt_u32 vcc, 172, v0")
    e(f"v_mov_b32 v{vt}, 0x{OOB:x}")
    sPb, sPk = e.s(), e.s()
    e(f"s_mul_i32 s{sPb}, s{sHg}, {4*2736}")
    e(f"v_cndmask_b32 v{vU+1}, v{vt}, v{vU+1}, vcc")
    e(f"s_add_u32 s{sPb}, s{sPb}, {WS_P}")
    e(f"s_mul_i32 s{sPk}, s{sRb}, {32*2736}")

    def pload(dst, vaddr):
        e(f"s_add_u32 s{sT+1}, s{sPb}, s{sPk}")
        e(f"buffer_load_dwordx4 {vr(dst,4)}, v{vaddr}, {sr(sXs,4)}, s{sT+1} offen")
        e(f"s_add_u32 s{sPk}, s{sPk}, {32*2736}")
        e(f"s_cmp_eq_u32 s{sPk}, {16*32*2736}")
        e(f"s_cselect_b32 s{sPk}, 0, s{sPk}")
    w2issue()
    for rb in range(8):
        pload(PR + rb * 4, vU)
    lds_zero(e, K2_KV0, K2_ZEND - K2_KV0, 0, AW)
    for i in range(64):
        e(f"v_mov_b32 v{PR+64+i}, 0")
    e("s_waitcnt vmcnt(20) lgkmcnt(0)")
    e("s_barrier")
    stamp(e)
    e(f"v_mul_u32_u24 v{vt+2}, {WB_PITCH}, v{vL15}")
    e(f"v_lshl_add_u32 v{vt+2}, v{vG}, 4, v{vt+2}")
    for cf in range(5):
        for st in range(3):
            e(f"ds_read_b128 {vr(AW+(cf*3+st)*4,4)}, v{vt+2} offset:{K2_WB0 + cf*16*WB_PITCH + st*64}")
    for rb in range(8, 12):
        pload(PR + rb * 4, vU)
    sL = e.s(2)
    e(f"s_mov_b32 s{sL}, 0x{LOG2E:x}")
    e(f"s_mov_b32 s{sL+1}, 0x{LOG2E:x}")
    e("s_waitcnt vmcnt(21)")
    for cf in range(5):
        e(f"s_waitcnt lgkmcnt({12 - 3*cf})")
        for st in range(3):
            mfma(e, P + cf * 4, AW + (cf * 3 + st) * 4, BQ + st * 4, "0" if st == 0 else None)
    for rb in range(12, 16):
        pload(PR + rb * 4, vU)
    e(f"s_cmp_ge_u32 s{sW}, 3")
    e("s_cbranch_scc1 k2_A_skip")
    for rb in range(16):
        pload(PR + 64 + rb * 4, vU + 1)
    e.label("k2_A_skip")
    stamp(e)
    E1 = AW
    E2 = AW + 18
    PH = AW + 36
    softmax_pm(e, P, E1, E2, PH, vt, sL)
    e(f"v_mov_b32 v{PH+18}, 0")
    e(f"v_mov_b32 v{PH+19}, 0")
    KA = AW
    for h in range(2):
        u = vt
        e(f"v_add_u32 v{u}, {512*h}, v0")
        e(f"v_mul_u32_u24 v{vt+1}, 6133, v{u}")
        e(f"v_lshrrev_b32 v{vt+1}, 20, v{vt+1}")
        e(f"v_mul_u32_u24 v{vt+2}, 171, v{vt+1}")
        e(f"v_sub_u32 v{vt+2}, v{u}, v{vt+2}")
        e(f"v_mul_u32_u24 v{vt+3}, 7282, v{vt+2}")
        e(f"v_lshrrev_b32 v{vt+3}, 16, v{vt+3}")
        e(f"v_mul_u32_u24 v{vt+4}, 9, v{vt+3}")
        e(f"v_sub_u32 v{vt+4}, v{vt+2}, v{vt+4}")
        e(f"v_mul_u32_u24 v{vt+1}, 20, v{vt+1}")
        e(f"v_add_u32 v{vt+1}, v{vt+1}, v{vt+3}")
        e(f"v_mul_u32_u24 v{vt+1}, 80, v{vt+1}")
        e(f"v_lshl_add_u32 v{KA+h}, v{vt+4}, 3, v{vt+1}")
        if h == 1:
            e(f"v_cmp_gt_u32 vcc, 172, v0")
            e(f"v_mov_b32 v{vt+2}, {K2_DUMP - K2_KV0}")
            e("s_nop 1")
            e(f"v_cndmask_b32 v{KA+h}, v{vt+2}, v{KA+h}, vcc")
    e(f"v_lshrrev_b32 v{vt}, 2, v{vL15}")
    e(f"v_cmp_eq_u32 vcc, v{vt}, v{vG}")
    e(f"v_mul_u32_u24 v{vt+1}, 20, v{vt}")
    e(f"v_and_b32 v{vt+2}, 3, v{vL15}")
    e(f"v_add_u32 v{vt+1}, v{vt+1}, v{vt+2}")
    e(f"v_mul_u32_u24 v{vt+1}, 80, v{vt+1}")
    e(f"v_add_u32 v{vt+1}, {K2_KV0}, v{vt+1}")
    e(f"v_mov_b32 v{vt+2}, {K2_Z0}")
    e(f"v_cndmask_b32 v{vt+1}, v{vt+2}, v{vt+1}, vcc")
    e(f"s_lshl_b32 s{sT}, s{sW}, 4")
    e(f"v_add_u32 v{vt+2}, s{sT}, v{vL15}")
    e(f"v_mul_u32_u24 v{vt+2}, 144, v{vt+2}")
    e(f"v_add_u32 v{vt+2}, {K2_O0}, v{vt+2}")
    e(f"v_mul_u32_u24 v{vt+3}, 36, v{vG}")
    e(f"v_add_u32 v{vt+3}, v{vt+3}, v{vt+2}")
    e(f"v_lshl_add_u32 v{vt+2}, v{vG}, 4, v{vt+2}")
    e(f"v_cmp_eq_u32 vcc, 0, v{vG}")
    e(f"v_mov_b32 v{vt+4}, 0x{OOB:x}")
    e(f"s_add_u32 s{sT}, s{sOF}, {WS_OA}")
    e(f"v_cndmask_b32 v{vt+4}, v{vt+4}, v{vL16}, vcc")
    stamp(e)
    e("s_waitcnt vmcnt(0)")
    stamp(e)
    e(f"s_mov_b32 s{sOF}, s{sT}")
    for h in range(2):
        a = PR + h * 64
        for st in (8, 4, 2, 1):
            for rb in range(st):
                x = a + rb * 4
                y = a + (rb + st) * 4
                e(f"v_pk_add_f32 {vr(x,2)}, {vr(x,2)}, {vr(y,2)}")
                e(f"v_pk_add_f32 {vr(x+2,2)}, {vr(x+2,2)}, {vr(y+2,2)}")
        e(f"v_cvt_pk_bf16_f32 v{a}, v{a}, v{a+1}")
        e(f"v_cvt_pk_bf16_f32 v{a+1}, v{a+2}, v{a+3}")
        e(f"ds_write_b64 v{KA+h}, {vr(a,2)} offset:{K2_KV0}")
    AK = PR
    e("s_waitcnt lgkmcnt(0)")
    e("s_barrier")
    for ch in range(5):
        for st in range(5):
            e(f"ds_read_b128 {vr(AK+(ch*5+st)*4,4)}, v{vt+1} offset:{ch*320 + st*16}")
    N = P
    for ch in (4, 0, 1, 2, 3) if False else range(5):
        e(f"s_waitcnt lgkmcnt({min(15, 20 - 5*ch)})")
        for st in range(5):
            mfma(e, N + ch * 4, AK + (ch * 5 + st) * 4, PH + st * 4, "0" if st == 0 else None)
    e("s_nop 7")
    e("s_nop 3")
    e(f"v_add_f32 v{vt}, 0x358637bd, v{N+18}")
    e(f"v_rcp_f32 v{vt}, v{vt}")
    e("s_nop 0")
    for i in range(0, 18, 2):
        e(f"v_pk_mul_f32 {vr(N+i,2)}, {vr(N+i,2)}, {vr(vt,2)} op_sel_hi:[1,0]")
    OP = AW
    for i in range(9):
        e(f"v_cvt_pk_bf16_f32 v{OP+i}, v{N+2*i}, v{N+2*i+1}")
    for i in range(4):
        e(f"ds_write2_b32 v{vt+3}, v{OP+2*i}, v{OP+2*i+1} offset0:{2*i} offset1:{2*i+1}")
    e(f"ds_write_b32 v{vt+3}, v{OP+8} offset:32")
    e("s_waitcnt lgkmcnt(0)")
    CO = AW + 12
    for i in range(3):
        e(f"ds_read_b128 {vr(CO+4*i,4)}, v{vt+2} offset:{64*i}")
    for i in range(3):
        e(f"s_waitcnt lgkmcnt({2-i})")
        e(f"buffer_store_dwordx4 {vr(CO+4*i,4)}, v{vL16 if i < 2 else vt+4}, {sr(sXs,4)}, s{sOF} offen offset:{1024*i} sc1")
    e("s_waitcnt vmcnt(0)")
    e("s_barrier")
    e(f"s_cmp_lg_u32 s{sW}, 0")
    e("s_cbranch_scc1 k2_P2")
    e(f"v_cmp_eq_u32 vcc, 0, v{vL}")
    e(f"v_mov_b32 v{vt}, 0x{OOB:x}")
    e(f"v_mov_b32 v{vt+1}, 1")
    e(f"s_lshl_b32 s{sT}, s{sRb}, 8")
    e(f"s_lshl_b32 s{sT+1}, s{sHg}, 2")
    e(f"s_add_u32 s{sT}, s{sT}, s{sT+1}")
    e(f"s_add_u32 s{sT}, s{sT}, {WS_FL}")
    e(f"v_cndmask_b32 v{vt}, v{vt}, 0, vcc")
    e(f"buffer_store_dword v{vt+1}, v{vt}, {sr(sXs,4)}, s{sT} offen sc1")
    e.label("k2_P2")
    e.vn, e.sn = vmark, smark
    stamp(e)
    e(f"s_cmp_ge_u32 s{sU}, 220")
    e("s_cbranch_scc1 k2_fin")
    XR = e.v(72, 4)
    ACC = e.v(16, 4)
    F = e.v(48, 4)
    vRA = e.v(4)
    rd_addr(e, vRA, W2OFF, vG, vR4, vC4, vt)
    for i in range(16):
        e(f"v_mov_b32 v{ACC+i}, 0")
    sXb, sXk, sXc, sCnt = e.s(), e.s(), e.s(), e.s()
    e(f"s_mul_i32 s{sXb}, s{g2['sRt']}, 18432")
    e(f"s_add_u32 s{sXb}, s{sXb}, s{sXoff2}")
    e(f"s_lshl_b32 s{sXk}, s{g2['sRot']}, 11")
    e(f"s_cmp_lg_u32 s{sW}, 0")
    e("s_cbranch_scc1 k2_P2b")
    e(f"s_cmp_eq_u32 s{sNb2}, 9")
    e("s_cbranch_scc1 k2_P2b")
    e(f"s_mul_i32 s{sT}, s{sRbk2}, 96")
    e(f"s_add_u32 s{sT+1}, s{sT}, 95")
    e(f"s_min_u32 s{sT+1}, s{sT+1}, 2047")
    e(f"s_lshr_b32 s{sT}, s{sT}, 7")
    e(f"s_lshr_b32 s{sT+1}, s{sT+1}, 7")
    e(f"s_lshl_b32 s{sT}, s{sT}, 8")
    e(f"s_lshl_b32 s{sT+1}, s{sT+1}, 8")
    e(f"v_and_b32 v{vt}, 7, v{vL}")
    e(f"v_lshlrev_b32 v{vt}, 2, v{vt}")
    e(f"v_cmp_gt_u32 vcc, 8, v{vL15}")
    e(f"v_mov_b32 v{vt+1}, s{sT}")
    e(f"v_mov_b32 v{vt+2}, s{sT+1}")
    e(f"v_cndmask_b32 v{vt+1}, v{vt+2}, v{vt+1}, vcc")
    e(f"v_add_u32 v{vt}, v{vt}, v{vt+1}")
    e(f"s_mov_b32 s{sT}, {WS_FL}")
    e(f"s_mov_b32 s{sCnt}, 0")
    e.label("k2_poll")
    e(f"buffer_load_dword v{vt+1}, v{vt}, {sr(sXs,4)}, s{sT} offen sc1")
    e("s_waitcnt vmcnt(0)")
    e(f"v_cmp_ne_u32 vcc, 1, v{vt+1}")
    e(f"s_add_u32 s{sCnt}, s{sCnt}, 1")
    e(f"s_cmp_ge_u32 s{sCnt}, 100000")
    e("s_cbranch_scc1 k2_P2b")
    e("s_cbranch_vccz k2_P2b")
    e(f"s_sleep {os.environ.get('PSLEEP', '6')}")
    e("s_branch k2_poll")
    e.label("k2_P2b")
    e("s_waitcnt vmcnt(0)")
    e("s_barrier")
    stamp(e)
    e(f"s_cmp_ge_u32 s{sW}, {P2_NW}")
    e("s_cbranch_scc1 k2_fin")
    for ks in range(18):
        if ks % 2 == 0:
            e(f"s_add_u32 s{sXc}, s{sXb}, s{sXk}")
        e(f"buffer_load_dwordx4 {vr(XR+ks*4,4)}, v{g2['vX']}, {sr(sXs,4)}, s{sXc} offen offset:{(ks%2)*1024} sc1")
        if ks % 2 == 1:
            e(f"s_add_u32 s{sXk}, s{sXk}, 2048")
            e(f"s_cmp_eq_u32 s{sXk}, 18432")
            e(f"s_cselect_b32 s{sXk}, 0, s{sXk}")

    def rdk(ks):
        if ks == 12:
            for t in range(4):
                e(f"v_add_u32 v{vRA+t}, {12*4096}, v{vRA+t}")
        o = (ks - 12 if ks >= 12 else ks) * 4096
        for t in range(4):
            for h in range(2):
                e(f"ds_read_b64_tr_b16 {vr(F+((ks%3)*4+t)*4+h*2,2)}, v{vRA+t} offset:{o + h*512}")
    rdk(0); rdk(1)
    for ks in range(18):
        if ks + 2 < 18:
            rdk(ks + 2)
        nl = min(2, 17 - ks) * 8
        e(f"s_waitcnt vmcnt({17-ks}) lgkmcnt({min(15, nl)})")
        for t in range(4):
            mfma(e, ACC + t * 4, F + ((ks % 3) * 4 + t) * 4, XR + ks * 4)
    e("s_nop 7")
    out_stage(e, ACC, F, sW, g2["sRt"], sOcol2, sOut, vL, vL15, vG, vt, sT)
    e.label("k2_fin")
    stamp_dump(e, sXs, 1, vt, sT)
    e.label("k2_end")
    e("s_endpgm")
    return e.vmax, e.smax


def main():
    global STAMP
    if "--stamp" in sys.argv:
        STAMP = True
        sys.argv.remove("--stamp")
    e = Em()
    hdr = open(f"cdna_kernels/{NAME}.s.ref").read().split("\n")
    head = [l for l in hdr if l.startswith(";") and "@launch" not in l and "Override" not in l and "grid=ceil" not in l]
    out = head[:]
    out.append(f"; @launch kernel=k1_kernel grid=(256,1,1) block=(512,1,1) lds={K1_LDS}")
    out.append(f"; @launch kernel=k2_kernel grid=({K2_GRID},1,1) block=(512,1,1) lds={K23_LDS}")
    out.append('.amdgcn_target "amdgcn-amd-amdhsa--gfx950"')
    out.append(".text")
    res = {}
    for nm, fn in (("k1", gen_k1), ("k2", gen_k2)):
        e.L.append(f".globl {nm}_kernel")
        e.L.append(".p2align 8")
        e.L.append(f".type {nm}_kernel,@function")
        res[nm] = fn(e)
    out += e.L
    out.append("code_end:")
    out.append("  s_endpgm")
    out.append('.section .rodata,"a"')
    for nm, (vm, sm) in res.items():
        vm4 = (vm + 3) // 4 * 4
        out.append(".p2align 6")
        out.append(f".amdhsa_kernel {nm}_kernel")
        out.append(f"  .amdhsa_next_free_vgpr {vm}")
        out.append(f"  .amdhsa_next_free_sgpr {sm}")
        out.append(f"  .amdhsa_accum_offset {vm4}")
        out.append("  .amdhsa_group_segment_fixed_size 0")
        out.append("  .amdhsa_kernarg_size 80")
        out.append("  .amdhsa_user_sgpr_count 2")
        out.append("  .amdhsa_user_sgpr_kernarg_segment_ptr 1")
        out.append("  .amdhsa_system_sgpr_workgroup_id_x 1")
        out.append(".end_amdhsa_kernel")
    path = sys.argv[1] if len(sys.argv) > 1 else f"cdna_kernels/{NAME}.s"
    open(path, "w").write("\n".join(out) + "\n")
    print(res)


if __name__ == "__main__":
    main()
```

```python
import sys, os

NAME = "concat_heads__linear_kernel_hedgehog__sliding_local_dilated__prompt"
WS_Q = 0x000000
WS_OA = 0x400000
WS_OB = 0x800000
WS_P = 0xC00000
WS_WB = 0xE00000
WS_FL = 0xE80000
WS_BYTES = 0x1000000
X_BYTES = 2048 * 576 * 2
WQKV_BYTES = 576 * 1728 * 2
WO_BYTES = 576 * 576 * 2
WPHI_BYTES = 32 * 18 * 18 * 2
OUT_BYTES = 2048 * 1152 * 2
OOB = 0x80000000
LOG2E = 0x3FB8AA3B


class Em:
    def __init__(self):
        self.L = []
        self.vn = 0
        self.sn = 0
        self.vmax = 0
        self.smax = 0
        self.lab = 0

    def __call__(self, s):
        self.L.append("  " + s)

    def c(self, s):
        self.L.append("  ; " + s)

    def label(self, s):
        self.L.append(s + ":")

    def newlab(self, p="L"):
        self.lab += 1
        return f"{p}_{self.lab}"

    def v(self, n=1, al=0):
        if al == 0:
            al = 2 if n >= 2 else 1
        self.vn = (self.vn + al - 1) // al * al
        r = self.vn
        self.vn += n
        self.vmax = max(self.vmax, self.vn)
        assert self.vn <= 256, "out of vgprs"
        return r

    def s(self, n=1, al=1):
        if n == 2:
            al = max(al, 2)
        if n >= 4:
            al = max(al, 4)
        self.sn = (self.sn + al - 1) // al * al
        r = self.sn
        self.sn += n
        self.smax = max(self.smax, self.sn)
        assert self.sn <= 102, "out of sgprs"
        return r

    def reset(self):
        self.vn = 0
        self.sn = 0
        self.vmax = 0
        self.smax = 0


STAMP = False
WS_ST = 0xF00000

def stamp_init(e):
    if not STAMP: return
    e.stp = e.s(20, 4)
    e.stn = 0

def stamp(e):
    if not STAMP: return
    i = e.stn
    e.stn += 1
    assert i < 9
    if i == 0:
        e(f"s_memrealtime {sr(e.stp + 18, 2)}")
    e(f"s_memtime {sr(e.stp + 2*i, 2)}")
    e("s_waitcnt lgkmcnt(0)")

def stamp_dump(e, sWs, kidx, vt, sT):
    if not STAMP: return
    e("s_waitcnt vmcnt(0) lgkmcnt(0)")
    stamp(e)
    e(f"v_lshrrev_b32 v{vt}, 6, v0")
    e(f"v_lshlrev_b32 v{vt}, 6, v{vt}")
    e(f"s_lshl_b32 s{sT}, s2, 9")
    e(f"s_add_u32 s{sT}, s{sT}, {WS_ST + kidx*256*512}")
    e(f"v_and_b32 v{vt+1}, 63, v0")
    e(f"v_cmp_eq_u32 vcc, 0, v{vt+1}")
    e(f"v_mov_b32 v{vt+2}, 0x{OOB:x}")
    e("s_nop 1")
    e(f"v_cndmask_b32 v{vt}, v{vt+2}, v{vt}, vcc")
    for i in range(12):
        src = e.stp + 2*i if i < 9 else e.stp + 18
        e(f"v_mov_b32 v{vt+1}, s{src}")
        e(f"buffer_store_dword v{vt+1}, v{vt}, {sr(sWs,4)}, s{sT} offen offset:{4*i}")
    e("s_waitcnt vmcnt(0)")

def vr(a, n):
    return f"v[{a}:{a+n-1}]" if n > 1 else f"v{a}"


def sr(a, n):
    return f"s[{a}:{a+n-1}]" if n > 1 else f"s{a}"


def srd(e, d, base, nbytes):
    e(f"s_mov_b32 s{d}, s{base}")
    e(f"s_and_b32 s{d+1}, s{base+1}, 0xffff")
    e(f"s_mov_b32 s{d+2}, {nbytes}")
    e(f"s_mov_b32 s{d+3}, 0x00020000")


def mfma(e, d, a, b, c=None):
    cs = vr(d, 4) if c is None else c
    e(f"v_mfma_f32_16x16x32_bf16 {vr(d,4)}, {vr(a,4)}, {vr(b,4)}, {cs}")


WB_PITCH = 208
WB_BYTES = 5 * 16 * WB_PITCH


def wb_issue_loads(e, sPhi, sHg, vTid, vE, vD, tmp):
    sB = sHg
    for i in range(3):
        e(f"v_add_u32 v{vE+i}, {512*i}, v{vTid}")
        e(f"v_lshlrev_b32 v{tmp}, 1, v{vE+i}")
        if i == 2:
            e(f"v_cmp_gt_u32 vcc, 1296, v{vE+i}")
            e(f"v_mov_b32 v{tmp+1}, 0x{OOB:x}")
            e("s_nop 1")
            e(f"v_cndmask_b32 v{tmp}, v{tmp+1}, v{tmp}, vcc")
        e(f"buffer_load_ushort v{vD+i}, v{tmp}, {sr(sPhi,4)}, s{sB} offen")


def lds_zero(e, base, nbytes, vTid, tmp4, nthreads=512):
    z = tmp4
    a = tmp4 + 4
    for i in range(4):
        e(f"v_mov_b32 v{z+i}, 0")
    n16 = nbytes // 16
    rounds = (n16 + nthreads - 1) // nthreads
    e(f"v_lshlrev_b32 v{a}, 4, v{vTid}")
    if base:
        e(f"v_add_u32 v{a}, {base}, v{a}")
    for r in range(rounds):
        if (r + 1) * nthreads <= n16:
            e(f"ds_write_b128 v{a}, {vr(z,4)} offset:{r*nthreads*16}")
        else:
            last = (n16 - 1 - r * nthreads) * 16 + base
            e(f"v_min_u32 v{a+1}, {last}, v{a}")
            e(f"ds_write_b128 v{a+1}, {vr(z,4)} offset:{r*nthreads*16}")


def wb_scatter(e, WB0, DUMP, vE, vD, t):
    for i in range(3):
        E = vE + i
        e(f"v_mul_u32_u24 v{t}, 3237, v{E}")
        e(f"v_lshrrev_b32 v{t}, 20, v{t}")
        e(f"v_mul_u32_u24 v{t+1}, 324, v{t}")
        e(f"v_sub_u32 v{t+1}, v{E}, v{t+1}")
        e(f"v_mul_u32_u24 v{t+2}, 3641, v{t+1}")
        e(f"v_lshrrev_b32 v{t+2}, 16, v{t+2}")
        e(f"v_mul_u32_u24 v{t+3}, 18, v{t+2}")
        e(f"v_sub_u32 v{t+3}, v{t+1}, v{t+3}")
        e(f"v_lshrrev_b32 v{t+4}, 2, v{t+3}")
        e(f"v_lshlrev_b32 v{t+4}, 4, v{t+4}")
        e(f"v_lshl_add_u32 v{t+4}, v{t}, 2, v{t+4}")
        e(f"v_and_b32 v{t+3}, 3, v{t+3}")
        e(f"v_add_u32 v{t+4}, v{t+4}, v{t+3}")
        e(f"v_mul_u32_u24 v{t+4}, {WB_PITCH}, v{t+4}")
        e(f"v_mul_u32_u24 v{t}, 18, v{t}")
        e(f"v_add_u32 v{t}, v{t}, v{t+2}")
        e(f"v_lshl_add_u32 v{t+4}, v{t}, 1, v{t+4}")
        if i == 2:
            e(f"v_cmp_gt_u32 vcc, 1296, v{E}")
            e(f"v_mov_b32 v{t}, {DUMP - WB0}")
            e("s_nop 1")
            e(f"v_cndmask_b32 v{t+4}, v{t}, v{t+4}, vcc")
        if WB0:
            e(f"v_add_u32 v{t+4}, {WB0}, v{t+4}")
        e(f"ds_write_b16 v{t+4}, v{vD+i}")


def softmax_pm(e, P, E1, E2, OUT, t, sL):
    mx, mn = t, t + 1
    e(f"v_max3_f32 v{mx}, v{P}, v{P+1}, v{P+2}")
    e(f"v_min3_f32 v{mn}, v{P}, v{P+1}, v{P+2}")
    for i in range(3, 17, 2):
        e(f"v_max3_f32 v{mx}, v{mx}, v{P+i}, v{P+i+1}")
        e(f"v_min3_f32 v{mn}, v{mn}, v{P+i}, v{P+i+1}")
    e(f"v_max_f32 v{mx}, v{mx}, v{P+17}")
    e(f"v_min_f32 v{mn}, v{mn}, v{P+17}")
    cp, cm = t + 2, t + 4
    e(f"v_mul_f32 v{cp}, s{sL}, v{mx}")
    e(f"v_mul_f32 v{cm}, s{sL}, v{mn}")
    for i in range(0, 18, 2):
        e(f"v_pk_fma_f32 {vr(E1+i,2)}, {vr(P+i,2)}, {sr(sL,2)}, {vr(cp,2)} op_sel_hi:[1,1,0] neg_lo:[0,0,1] neg_hi:[0,0,1]")
        e(f"v_pk_fma_f32 {vr(E2+i,2)}, {vr(P+i,2)}, {sr(sL,2)}, {vr(cm,2)} op_sel_hi:[1,1,0] neg_lo:[1,0,0] neg_hi:[1,0,0]")
    for i in range(18):
        e(f"v_exp_f32 v{E1+i}, v{E1+i}")
        e(f"v_exp_f32 v{E2+i}, v{E2+i}")
    s1, s2 = t + 2, t + 4
    e(f"v_pk_add_f32 {vr(s1,2)}, {vr(E1,2)}, {vr(E1+2,2)}")
    e(f"v_pk_add_f32 {vr(s2,2)}, {vr(E2,2)}, {vr(E2+2,2)}")
    for i in range(4, 18, 2):
        e(f"v_pk_add_f32 {vr(s1,2)}, {vr(s1,2)}, {vr(E1+i,2)}")
        e(f"v_pk_add_f32 {vr(s2,2)}, {vr(s2,2)}, {vr(E2+i,2)}")
    e(f"v_add_f32 v{s1}, v{s1}, v{s1+1}")
    e(f"v_add_f32 v{s2}, v{s2}, v{s2+1}")
    e(f"v_rcp_f32 v{s1}, v{s1}")
    e(f"v_rcp_f32 v{s2}, v{s2}")
    e("s_nop 0")
    for i in range(0, 18, 2):
        e(f"v_pk_mul_f32 {vr(E1+i,2)}, {vr(E1+i,2)}, {vr(s1,2)} op_sel_hi:[1,0]")
        e(f"v_pk_mul_f32 {vr(E2+i,2)}, {vr(E2+i,2)}, {vr(s2,2)} op_sel_hi:[1,0]")
    for i in range(0, 18, 2):
        e(f"v_cvt_pk_bf16_f32 v{OUT+i//2}, v{E1+i}, v{E1+i+1}")
        e(f"v_cvt_pk_bf16_f32 v{OUT+9+i//2}, v{E2+i}, v{E2+i+1}")


def chunk_decode(e, sTile, vq, vS, vC):
    e(f"s_lshl_b32 s{sTile+1}, s{sTile}, 2")
    e(f"v_add_u32 v{vC}, s{sTile+1}, v{vq}")
    e(f"v_min_u32 v{vC}, 26, v{vC}")
    e(f"v_mul_u32_u24 v{vS}, 57, v{vC}")
    e(f"v_lshrrev_b32 v{vS}, 9, v{vS}")
    e(f"v_mul_u32_u24 v{vS+1}, 9, v{vS}")
    e(f"v_sub_u32 v{vC}, v{vC}, v{vS+1}")


WSLOT = 16384
XR0 = 4 * WSLOT
XSLOT = 18432
K1_WB0 = XR0 + 3 * XSLOT
K1_ONES = K1_WB0 + WB_BYTES
K1_DUMP2 = K1_ONES + 16
K1_LDS = K1_DUMP2 + 16
TA_PITCH = 304
PHI0 = 40960
PHI_PITCH = 336
TB_PITCH = 496
OB0 = 73728


def chunk_of(T, g):
    p = 4 * T + g
    pad = p > 26
    p = min(p, 26)
    return p // 9, p % 9, pad


def lit(fn, T):
    return sum((fn(*chunk_of(T, g)) & 0xff) << (8 * g) for g in range(4))


LITW = [lit(lambda s, c, p: 18 * ((s + 1) % 3) + c, T) for T in range(7)]
LITA = [lit(lambda s, c, p: 36 if (s == 2 or p) else 18 * s + c, T) for T in range(7)]
LITQ = [lit(lambda s, c, p: c if (s == 2 and not p) else 255, T) for T in range(7)]
LITB = [lit(lambda s, c, p: 5 if p else 20 * ((s + 1) % 3) + (c if c < 5 else c + 1), T) for T in range(7)]


def wb_issue_loads2(e, sPhi, sB, vTid, vE, vD, tmp, nth):
    n = (1296 + nth - 1) // nth
    for i in range(n):
        e(f"v_add_u32 v{vE+i}, {nth*i}, v{vTid}")
        e(f"v_lshlrev_b32 v{tmp}, 1, v{vE+i}")
        if (i + 1) * nth > 1296:
            e(f"v_cmp_gt_u32 vcc, 1296, v{vE+i}")
            e(f"v_mov_b32 v{tmp+1}, 0x{OOB:x}")
            e("s_nop 1")
            e(f"v_cndmask_b32 v{tmp}, v{tmp+1}, v{tmp}, vcc")
        e(f"buffer_load_ushort v{vD+i}, v{tmp}, {sr(sPhi,4)}, s{sB} offen")
    return n


def wb_scatter2(e, WB0, DUMPA, vE, vD, t, nth):
    n = (1296 + nth - 1) // nth
    for i in range(n):
        E = vE + i
        e(f"v_mul_u32_u24 v{t}, 3237, v{E}")
        e(f"v_lshrrev_b32 v{t}, 20, v{t}")
        e(f"v_mul_u32_u24 v{t+1}, 324, v{t}")
        e(f"v_sub_u32 v{t+1}, v{E}, v{t+1}")
        e(f"v_mul_u32_u24 v{t+2}, 3641, v{t+1}")
        e(f"v_lshrrev_b32 v{t+2}, 16, v{t+2}")
        e(f"v_mul_u32_u24 v{t+3}, 18, v{t+2}")
        e(f"v_sub_u32 v{t+3}, v{t+1}, v{t+3}")
        e(f"v_lshrrev_b32 v{t+4}, 2, v{t+3}")
        e(f"v_lshlrev_b32 v{t+4}, 4, v{t+4}")
        e(f"v_lshl_add_u32 v{t+4}, v{t}, 2, v{t+4}")
        e(f"v_and_b32 v{t+3}, 3, v{t+3}")
        e(f"v_add_u32 v{t+4}, v{t+4}, v{t+3}")
        e(f"v_mul_u32_u24 v{t+4}, {WB_PITCH}, v{t+4}")
        e(f"v_mul_u32_u24 v{t}, 18, v{t}")
        e(f"v_add_u32 v{t}, v{t}, v{t+2}")
        e(f"v_lshl_add_u32 v{t+4}, v{t}, 1, v{t+4}")
        if (i + 1) * nth > 1296:
            e(f"v_cmp_gt_u32 vcc, 1296, v{E}")
            e(f"v_mov_b32 v{t}, {DUMPA - WB0}")
            e("s_nop 1")
            e(f"v_cndmask_b32 v{t+4}, v{t}, v{t+4}, vcc")
        if WB0:
            e(f"v_add_u32 v{t+4}, {WB0}, v{t+4}")
        e(f"ds_write_b16 v{t+4}, v{vD+i}")


def interleave(e, mf, other, start=1, per=1):
    oi = 0
    for i, m in enumerate(mf):
        e(m)
        if i >= start - 1:
            for _ in range(per):
                if oi < len(other):
                    e(other[oi]); oi += 1
    while oi < len(other):
        e(other[oi]); oi += 1


def mf(d, a, b, c=None):
    cs = vr(d, 4) if c is None else c
    return f"v_mfma_f32_16x16x32_bf16 {vr(d,4)}, {vr(a,4)}, {vr(b,4)}, {cs}"


def gen_k1(e):
    e.reset()
    e.s(3)
    e.label("k1_kernel")
    Lend = "k1_end"
    e("s_cmp_ge_u32 s2, 256")
    e(f"s_cbranch_scc1 {Lend}")
    stamp_init(e); stamp(e)
    sPA = e.s(4)
    sPB = e.s(4)
    sPP = e.s(4)
    sPW = e.s(2)
    sPO = e.s(2)
    e(f"s_load_dwordx4 {sr(sPA,4)}, s[0:1], 0")
    e(f"s_load_dwordx4 {sr(sPB,4)}, s[0:1], 32")
    e(f"s_load_dwordx4 {sr(sPP,4)}, s[0:1], 16")
    e(f"s_load_dwordx2 {sr(sPW,2)}, s[0:1], 72")
    e(f"s_load_dwordx2 {sr(sPO,2)}, s[0:1], 48")
    sJ, sI, sBr, sRb, sHg, sW, sMi, sNi = [e.s() for _ in range(8)]
    sT = e.s(4)
    e(f"s_and_b32 s{sJ}, s2, 7")
    e(f"s_lshr_b32 s{sI}, s2, 3")
    e(f"s_lshr_b32 s{sBr}, s{sJ}, 2")
    e(f"s_lshr_b32 s{sT}, s{sJ}, 1")
    e(f"s_and_b32 s{sT}, s{sT}, 1")
    e(f"s_lshl_b32 s{sT}, s{sT}, 3")
    e(f"s_lshr_b32 s{sRb}, s{sI}, 2")
    e(f"s_add_u32 s{sRb}, s{sRb}, s{sT}")
    e(f"s_and_b32 s{sT}, s{sJ}, 1")
    e(f"s_lshl_b32 s{sT}, s{sT}, 2")
    e(f"s_and_b32 s{sHg}, s{sI}, 3")
    e(f"s_add_u32 s{sHg}, s{sHg}, s{sT}")
    vTid = e.v()
    vL, vL15, vG, vR4, vC4 = [e.v() for _ in range(5)]
    vt = e.v(8, 2)
    e(f"v_lshrrev_b32 v{vt}, 6, v0")
    e(f"v_and_b32 v{vL}, 63, v0")
    e(f"v_readfirstlane_b32 s{sW}, v{vt}")
    e(f"v_and_b32 v{vL15}, 15, v0")
    e(f"v_lshrrev_b32 v{vG}, 4, v{vL}")
    e(f"v_bfe_u32 v{vR4}, v0, 2, 2")
    e(f"v_and_b32 v{vC4}, 3, v0")
    e(f"s_and_b32 s{sMi}, s{sW}, 1")
    e(f"s_bfe_u32 s{sNi}, s{sW}, 0x10001")
    sX = e.s(4)
    sWq = e.s(4)
    sWs = e.s(4)
    sPhi = e.s(4)
    sRow0 = e.s()
    sTl = e.s(2)
    sIt = e.s()
    sDl = e.s()
    sSl = e.s()
    sWlim, sXh, sLx, sHf = e.s(), e.s(), e.s(), e.s()
    e(f"s_lshl_b32 s{sRow0}, s{sRb}, 7")

    def make_srds():
        e("s_waitcnt lgkmcnt(0)")
        e(f"s_cmp_eq_u32 s{sBr}, 0")
        for i in range(4):
            e(f"s_cselect_b32 s{sPA+i}, s{sPA+i}, s{sPB+i}")
        nl = os.environ.get('K1NOLOAD', '0') != '0'
        srd(e, sX, sPA, 0 if nl else X_BYTES)
        srd(e, sWq, sPA + 2, 0 if nl else WQKV_BYTES)
        srd(e, sWs, sPW, WS_BYTES)
        srd(e, sPhi, sPP, WPHI_BYTES)
    vbase = e.vn
    ACC = e.v(124, 4)
    FW = e.v(56, 4)
    FX = e.v(40, 4)
    vRA = e.v(11)
    vtop = e.vn
    vPF = e.v(2)
    stn0 = getattr(e, "stn", 0)

    def loader():
        sLw = sMi
        sWoff, sM0, sXo = sNi, sSl, sDl
        e(f"s_sub_u32 s{sLw}, s{sW}, 4")
        vD = vbase
        vXo = vbase + 2
        vWE = vbase + 4
        vWD = vbase + 10
        tmp = vbase + 16
        vT2 = vbase + 24
        e(f"v_and_b32 v{vt}, 7, v{vL}")
        e(f"v_xor_b32 v{vt}, v{vt}, v{vG}")
        e(f"v_lshrrev_b32 v{vt+1}, 3, v{vL}")
        e(f"v_mul_u32_u24 v{vt+1}, 1152, v{vt+1}")
        e(f"v_lshl_add_u32 v{vXo}, v{vt}, 4, v{vt+1}")
        e(f"v_xor_b32 v{vXo+1}, 64, v{vXo}")
        e(f"s_and_b32 s{sT}, s{sLw}, 1")
        e(f"s_lshl_b32 s{sT}, s{sT}, 3")
        e(f"s_mul_i32 s{sT+1}, s{sHg}, 144")
        for hf in range(2):
            p, r, c, sg = vt, vt + 1, vt + 2, vt + 3
            e(f"s_sub_u32 s{sT+2}, {64*hf}, s{sT}")
            e(f"v_add_u32 v{p}, s{sT+2}, v{vL}")
            e(f"v_and_b32 v{vt+4}, 0xff, v{p}")
            e(f"v_mul_u32_u24 v{r}, 2185, v{vt+4}")
            e(f"v_lshrrev_b32 v{r}, 16, v{r}")
            e(f"v_mul_u32_u24 v{c}, 30, v{r}")
            e(f"v_sub_u32 v{c}, v{vt+4}, v{c}")
            e(f"v_mul_u32_u24 v{sg}, 57, v{c}")
            e(f"v_lshrrev_b32 v{sg}, 9, v{sg}")
            e(f"v_mul_u32_u24 v{vt+4}, 9, v{sg}")
            e(f"v_sub_u32 v{vt+4}, v{c}, v{vt+4}")
            e(f"v_mul_u32_u24 v{r}, 3456, v{r}")
            e(f"v_mul_u32_u24 v{sg}, 1152, v{sg}")
            e(f"v_add3_u32 v{r}, v{r}, v{sg}, s{sT+1}")
            e(f"v_lshl_add_u32 v{r}, v{vt+4}, 4, v{r}")
            e(f"v_cmp_gt_u32 vcc, 120, v{p}")
            e(f"v_cmp_gt_u32 s[{sT+2}:{sT+3}], 27, v{c}")
            e(f"v_mov_b32 v{vt+5}, 0x{OOB:x}")
            e(f"s_and_b64 vcc, vcc, s[{sT+2}:{sT+3}]")
            e("s_nop 1")
            e(f"v_cndmask_b32 v{vD+hf}, v{vt+5}, v{r}, vcc")
        sBlk = sT + 2
        sXs_ = sT + 3
        e(f"s_lshr_b32 s{sT}, s{sI}, 2")
        e(f"s_and_b32 s{sT+1}, s{sI}, 3")
        e(f"s_lshl_b32 s{sT+1}, s{sT+1}, 1")
        e(f"s_add_u32 s{sBlk}, s{sT}, s{sT+1}")
        e(f"s_sub_u32 s{sT}, s{sBlk}, 9")
        e(f"s_cmp_ge_u32 s{sBlk}, 9")
        e(f"s_cselect_b32 s{sBlk}, s{sT}, s{sBlk}")
        e(f"s_mul_i32 s{sWoff}, s{sBlk}, {64*3456}")
        e(f"s_mul_i32 s{sT}, s{sLw}, {2*13824}")
        e(f"s_add_u32 s{sWoff}, s{sWoff}, s{sT}")
        e(f"s_add_u32 s{sWlim}, s{sT}, {576*3456}")
        e(f"s_lshl_b32 s{sM0}, s{sLw}, 12")
        e(f"s_lshl_b32 s{sT}, s{sLw}, 4")
        e(f"s_add_u32 s{sT}, s{sT}, s{sRow0}")
        e(f"s_mul_i32 s{sXo}, s{sT}, 1152")
        e(f"s_sub_u32 s{sT}, s{sRow0}, 16")
        e(f"s_max_i32 s{sT}, s{sT}, 0")
        e(f"s_mul_i32 s{sXh}, s{sT}, 1152")
        e(f"s_lshl_b32 s{sLx}, s{sLw}, 11")
        e(f"s_add_u32 s{sLx}, s{sLx}, 2048")
        e(f"s_mov_b32 s{sXs_}, {XR0}")
        e(f"s_mov_b32 s{sIt}, 0")
        e(f"s_cmp_eq_u32 s{sLw}, 0")
        e(f"s_cselect_b32 s{sHf}, s{sBr}, 0")
        make_srds()

        def issue_x(hh, lim):
            e(f"s_lshl_b32 s{sTl}, s{sBlk}, 7")
            e(f"s_cmp_lt_u32 s{sIt}, {lim}")
            e(f"s_cselect_b32 s{sTl}, s{sTl}, 0x{OOB:x}")
            e(f"s_add_u32 s{sTl+1}, s{sXs_}, s{sLx}")
            for i in range(2):
                e(f"s_add_u32 m0, s{sTl+1}, {hh*8192 + i*1024}")
                e(f"s_add_u32 s{sT}, s{sTl}, s{sXo}")
                if hh or i:
                    e(f"s_add_u32 s{sT}, s{sT}, {(hh*64 + i*8)*1152}")
                e(f"buffer_load_dwordx4 v{vXo+i}, {sr(sX,4)}, s{sT} offen lds")
            lab = e.newlab("k1h")
            e(f"s_cmp_eq_u32 s{sHf}, 0")
            e(f"s_cbranch_scc1 {lab}")
            e(f"s_add_u32 m0, s{sXs_}, {hh*1024}")
            e(f"s_add_u32 s{sT}, s{sTl}, s{sXh}")
            if hh:
                e(f"s_add_u32 s{sT}, s{sT}, {8*1152}")
            e(f"buffer_load_dwordx4 v{vXo+hh}, {sr(sX,4)}, s{sT} offen lds")
            e.label(lab)
            if hh:
                e(f"s_add_u32 s{sBlk}, s{sBlk}, 1")
                e(f"s_cmp_eq_u32 s{sBlk}, 9")
                e(f"s_cselect_b32 s{sBlk}, 0, s{sBlk}")
                e(f"s_add_u32 s{sXs_}, s{sXs_}, {XSLOT}")
                e(f"s_cmp_eq_u32 s{sXs_}, {XR0 + 3*XSLOT}")
                e(f"s_cselect_b32 s{sXs_}, {XR0}, s{sXs_}")

        def issue(par):
            e(f"s_cmp_lt_u32 s{sIt}, 18")
            e(f"s_cselect_b32 s{sTl+1}, s{sWoff}, 0x{OOB:x}")
            for j in range(2):
                for hf in range(2):
                    e(f"s_add_u32 m0, s{sM0}, {j*2048 + hf*1024}")
                    e(f"s_add_u32 s{sTl}, s{sTl+1}, {j*13824}")
                    e(f"buffer_load_dwordx4 v{vD+hf}, {sr(sWq,4)}, s{sTl} offen lds")
            issue_x(par ^ 1, 17)
            e(f"s_add_u32 s{sWoff}, s{sWoff}, {32*3456}")
            e(f"s_sub_u32 s{sTl}, s{sWoff}, {576*3456}")
            e(f"s_cmp_ge_u32 s{sWoff}, s{sWlim}")
            e(f"s_cselect_b32 s{sWoff}, s{sTl}, s{sWoff}")
            e(f"s_add_u32 s{sM0}, s{sM0}, {WSLOT}")
            e(f"s_and_b32 s{sM0}, s{sM0}, 0xffff")
            e(f"s_add_u32 s{sIt}, s{sIt}, 1")

        issue_x(0, 17)
        e("s_branch k1_l_i0")
        e.label("k1_l_loop")
        e(f"s_cmp_eq_u32 s{sIt}, 2")
        e("s_cbranch_scc1 k1_l_first")
        e("s_waitcnt vmcnt(12)")
        e("s_barrier")
        e.label("k1_l_i0")
        issue(0)
        e(f"s_cmp_lt_u32 s{sIt}, 4")
        e("s_cbranch_scc1 k1_l_i1")
        e("s_waitcnt vmcnt(12)")
        e("s_barrier")
        e.label("k1_l_i1")
        issue(1)
        e(f"s_cmp_eq_u32 s{sIt}, 4")
        e("s_cbranch_scc1 k1_l_scat")
        e.label("k1_l_cont")
        e(f"s_cmp_lt_u32 s{sIt}, 22")
        e("s_cbranch_scc1 k1_l_loop")
        e.stn = stn0 + 2 if STAMP else 0
        stamp(e)
        e("s_waitcnt vmcnt(0) lgkmcnt(0)")
        e("s_barrier")
        stamp(e)
        e(f"s_cmp_eq_u32 s{sBr}, 0")
        e("s_cbranch_scc1 k1_A_epi")
        e("s_branch k1_B_epi")
        e.label("k1_l_first")
        e.stn = stn0
        stamp(e)
        e(f"s_cmp_lg_u32 s{sBr}, 0")
        e("s_cbranch_scc1 k1_l_first2")
        e(f"v_subrev_u32 v{vT2}, 256, v0")
        e(f"s_mul_i32 s{sT}, s{sHg}, {4*324*2}")
        wb_issue_loads2(e, sPhi, sT, vT2, vWE, vWD, vt, 256)
        lds_zero(e, K1_WB0, WB_BYTES, vT2, tmp, 256)
        e(f"v_mov_b32 v{tmp}, 0x3f803f80")
        e(f"v_mov_b32 v{tmp+1}, 0x3f803f80")
        e(f"v_mov_b32 v{tmp+2}, {K1_ONES}")
        e(f"ds_write_b64 v{tmp+2}, {vr(tmp,2)}")
        e("s_waitcnt vmcnt(12) lgkmcnt(0)")
        e("s_barrier")
        stamp(e)
        e("s_branch k1_l_i0")
        e.label("k1_l_first2")
        e("s_waitcnt vmcnt(6)")
        e("s_barrier")
        e.stn = stn0 + 1 if STAMP else 0
        stamp(e)
        e("s_branch k1_l_i0")
        e.label("k1_l_scat")
        e(f"s_cmp_lg_u32 s{sBr}, 0")
        e("s_cbranch_scc1 k1_l_cont")
        e("s_waitcnt vmcnt(12)")
        wb_scatter2(e, K1_WB0, K1_DUMP2, vWE, vWD, tmp, 256)
        e("s_branch k1_l_cont")

    def lit_sel(dst, L, t, isB):
        if isB:
            e(f"s_cmp_eq_u32 s{sMi}, 0")
            e(f"s_cselect_b32 s{dst}, 0x{L[t]:x}, 0x{L[(t+3)%7]:x}") if False else (
                e(f"s_mov_b32 s{dst}, 0x{L[t]:x}"), e(f"s_mov_b32 s{dst+1}, 0x{L[(t+3)%7]:x}"),
                e(f"s_cselect_b32 s{dst}, s{dst}, s{dst+1}"))
        else:
            e(f"s_mov_b32 s{dst}, 0x{L[t]:x}")

    def compute(isB):
        tag = "B" if isB else "A"
        nrt = 5 if isB else 4
        stamp(e)
        def pf():
            return []
        base = vt + 6
        e(f"v_lshlrev_b32 v{base}, 12, v{vG}")
        e(f"v_and_b32 v{vt}, 1, v{vG}")
        e(f"v_lshl_add_u32 v{base}, v{vt}, 7, v{base}")
        e(f"v_mul_u32_u24 v{vt}, 480, v{vR4}")
        e(f"s_mul_i32 s{sT+2}, s{sNi}, 72")
        e(f"v_add3_u32 v{base}, v{base}, v{vt}, s{sT+2}")
        e(f"v_lshlrev_b32 v{vt+1}, 3, v{vC4}")
        for t in range(7):
            lit_sel(sT, LITW, t, isB)
            e(f"v_bfe_u32 v{vt}, s{sT}, v{vt+1}, 8")
            e(f"v_lshl_add_u32 v{vRA+t}, v{vt}, 3, v{base}")
        e(f"v_lshrrev_b32 v{vt}, 1, v{vL15}")
        e(f"v_xor_b32 v{vt}, v{vt}, v{vG}")
        e(f"v_lshlrev_b32 v{vt+1}, 7, v{vL15}")
        e(f"v_lshl_add_u32 v{vt}, v{vt}, 4, v{vt+1}")
        e(f"v_add_u32 v{vRA+9}, {XR0}, v{vt}")
        e(f"v_xor_b32 v{vRA+10}, 64, v{vRA+9}")
        e(f"s_lshl_b32 s{sT}, s{sMi}, 13")
        e(f"s_add_u32 s{sT}, s{sT}, 2048")
        e(f"v_add_u32 v{vRA+7}, s{sT}, v{vRA+9}")
        e(f"v_add_u32 v{vRA+8}, s{sT}, v{vRA+10}")

        def reads(st):
            fb = st & 1
            xo = ((st >> 1) % 3) * XSLOT
            wo = (st % 4) * WSLOT
            L = []
            for rt in range(4):
                L.append(f"ds_read_b128 {vr(FX + fb*20 + rt*4, 4)}, v{vRA+7+fb} offset:{xo + rt*2048}")
            if isB:
                L.append(f"ds_read_b128 {vr(FX + fb*20 + 16, 4)}, v{vRA+9+fb} offset:{xo}")
            for t in range(7):
                for h in range(2):
                    L.append(f"ds_read_b64_tr_b16 {vr(FW + fb*28 + t*4 + h*2, 2)}, v{vRA+t} offset:{wo + h*2048}")
            return L

        e("s_barrier")
        stamp(e)
        for r in reads(0):
            e(r)
        for st in range(18):
            fb = st & 1
            e("s_waitcnt lgkmcnt(0)")
            e("s_barrier")
            M = []
            for t in range(7):
                for rt in range(4):
                    M.append(mf(ACC + (t * 4 + rt) * 4, FW + fb * 28 + t * 4, FX + fb * 20 + rt * 4, "0" if st == 0 else None))
                if isB and t < 3:
                    M.append(mf(ACC + 112 + t * 4, FW + fb * 28 + t * 4, FX + fb * 20 + 16, "0" if st == 0 else None))
            oth = reads(st + 1) if st < 17 else []
            oi = 0
            for i, m in enumerate(M):
                if os.environ.get('K1NOMFMA', '0') == '0':
                    e(m)
                if oi < len(oth):
                    e(oth[oi]); oi += 1
            assert oi == len(oth)
        stamp(e)
        e("s_waitcnt lgkmcnt(0)")
        e("s_barrier")
        stamp(e)

    def prefetch_wo():
        e(f"s_cmp_lt_u32 s{sI}, 16")
        e(f"s_cselect_b32 s{sPB}, s{sPP+2}, s{sPO}")
        e(f"s_cselect_b32 s{sPB+1}, s{sPP+3}, s{sPO+1}")
        e(f"s_and_b32 s{sTl+1}, s{sI}, 15")
        e(f"s_mul_i32 s{sTl+1}, s{sTl+1}, 324")
        e(f"s_mul_i32 s{sTl}, s{sW}, 41")
        e(f"s_add_u32 s{sTl+1}, s{sTl+1}, s{sTl}")
        e(f"v_min_u32 v{vt}, 40, v{vL}")
        e(f"v_add_u32 v{vt}, s{sTl+1}, v{vt}")
        e(f"v_lshlrev_b32 v{vt}, 7, v{vt}")
        srd(e, sX, sPB, WO_BYTES)
        e(f"buffer_load_dword v{vPF}, v{vt}, {sr(sX,4)}, 0 offen")

    e(f"s_cmp_lt_u32 s{sW}, 4")
    e("s_cbranch_scc1 k1_comp")
    loader()
    e.label("k1_comp")
    e.stn = stn0
    if os.environ.get('CODEPF', '1') != '0':
        e(f"s_and_b32 s{sT}, s{sI}, 7")
        e(f"s_cmp_lg_u32 s{sT}, 0")
        e("s_cbranch_scc1 k1_nopf")
        e(f"s_getpc_b64 {sr(sX,2)}")
        e.label("k1_pc")
        e(f"s_sub_u32 s{sX}, s{sX}, k1_pc - k1_kernel")
        e(f"s_subb_u32 s{sX+1}, s{sX+1}, 0")
        e(f"s_and_b32 s{sX+1}, s{sX+1}, 0xffff")
        e(f"s_mov_b32 s{sX+2}, code_end - k1_kernel")
        e(f"s_mov_b32 s{sX+3}, 0x00020000")
        e(f"v_lshlrev_b32 v{vt}, 7, v0")
        e(f"buffer_load_dword v{vPF}, v{vt}, {sr(sX,4)}, 0 offen")
        e(f"s_mov_b32 s{sT}, 32768")
        e(f"buffer_load_dword v{vPF}, v{vt}, {sr(sX,4)}, s{sT} offen")
        e.label("k1_nopf")
    make_srds()
    e(f"s_cmp_eq_u32 s{sBr}, 1")
    e("s_cbranch_scc1 k1_B")
    compute(False)
    PK = FW
    for u in range(28):
        a = ACC + u * 4
        e(f"v_cvt_pk_bf16_f32 v{PK+2*u}, v{a}, v{a+1}")
        e(f"v_cvt_pk_bf16_f32 v{PK+2*u+1}, v{a+2}, v{a+3}")
    vRowL = vt + 6
    vG8 = vt + 7
    e(f"s_lshl_b32 s{sT+2}, s{sMi}, 6")
    e(f"v_add_u32 v{vt}, s{sT+2}, v{vL15}")
    e(f"v_mul_u32_u24 v{vRowL}, {TA_PITCH}, v{vt}")
    e(f"s_mul_i32 s{sT+3}, s{sNi}, 72")
    e(f"v_add_u32 v{vRowL}, s{sT+3}, v{vRowL}")
    e(f"v_lshlrev_b32 v{vG8}, 3, v{vG}")
    for t in range(5):
        e(f"s_mov_b32 s{sT}, 0x{LITA[t]:x}")
        e(f"v_bfe_u32 v{vt}, s{sT}, v{vG8}, 8")
        e(f"v_lshl_add_u32 v{vt}, v{vt}, 3, v{vRowL}")
        if t == 4:
            e(f"v_cmp_lt_u32 vcc, 1, v{vG}")
            e(f"v_subrev_u32 v{vt+1}, s{sT+3}, v{vt}")
            e("s_nop 0")
            e(f"v_cndmask_b32 v{vt}, v{vt}, v{vt+1}, vcc")
        for rt in range(4):
            e(f"ds_write_b64 v{vt}, {vr(PK + (t*4+rt)*2, 2)} offset:{rt*16*TA_PITCH}")
    e(f"s_lshl_b32 s{sT}, s{sRb}, 3")
    e(f"s_lshl_b32 s{sT+1}, s{sMi}, 2")
    e(f"s_add_u32 s{sT}, s{sT}, s{sT+1}")
    e(f"s_mul_i32 s{sT}, s{sT}, 72")
    e(f"s_mul_i32 s{sT+1}, s{sHg}, 9")
    e(f"s_add_u32 s{sT}, s{sT}, s{sT+1}")
    e(f"s_lshl_b32 s{sT}, s{sT}, 8")
    e(f"s_add_u32 s{sT}, s{sT}, {WS_Q}")
    e(f"s_mul_i32 s{sT+2}, s{sNi}, 9")
    for t in range(4, 7):
        e(f"s_mov_b32 s{sT+1}, 0x{LITQ[t]:x}")
        e(f"v_bfe_u32 v{vt}, s{sT+1}, v{vG8}, 8")
        e(f"v_cmp_ne_u32 vcc, 255, v{vt}")
        e(f"v_add_u32 v{vt}, s{sT+2}, v{vt}")
        e(f"v_lshrrev_b32 v{vt+1}, 1, v{vt}")
        e(f"v_and_b32 v{vt}, 1, v{vt}")
        e(f"v_lshlrev_b32 v{vt+1}, 8, v{vt+1}")
        e(f"v_lshl_add_u32 v{vt+1}, v{vt}, 3, v{vt+1}")
        e(f"v_lshl_add_u32 v{vt+1}, v{vL15}, 4, v{vt+1}")
        e(f"v_mov_b32 v{vt+2}, 0x{OOB:x}")
        e(f"v_cndmask_b32 v{vt+3+(t-4)}, v{vt+2}, v{vt+1}, vcc")
    for rt in range(4):
        e(f"s_add_u32 s{sT+1}, s{sT}, {rt*18432}")
        for t in range(4, 7):
            e(f"buffer_store_dwordx2 {vr(PK + (t*4+rt)*2, 2)}, v{vt+3+(t-4)}, {sr(sWs,4)}, s{sT+1} offen")
    e.label("k1_A_epi")
    prefetch_wo()
    e(f"s_cmp_lg_u32 s{sRb}, 0")
    e("s_cbranch_scc1 k1_A_nodump")
    e(f"s_cmp_lg_u32 s{sHg}, 0")
    e("s_cbranch_scc1 k1_A_nodump")
    e(f"v_lshlrev_b32 v{vt+4}, 3, v0")
    e(f"v_mov_b32 v{vt+2}, 0")
    e(f"v_mov_b32 v{vt+3}, 0")
    e(f"s_mov_b32 s{sTl}, {WS_FL}")
    e(f"buffer_store_dwordx2 {vr(vt+2,2)}, v{vt+4}, {sr(sWs,4)}, s{sTl} offen")
    e.label("k1_A_nodump")
    e("s_waitcnt lgkmcnt(0)")
    e("s_barrier")
    stamp(e)
    XR = ACC + 64
    BK = FX
    AW = ACC
    P = FX + 12
    e(f"s_lshl_b32 s{sT}, s{sW}, 4")
    e(f"v_add_u32 v{vt}, s{sT}, v{vL15}")
    e(f"v_mul_u32_u24 v{vt+1}, {TA_PITCH}, v{vt}")
    e(f"v_lshl_add_u32 v{vt+1}, v{vG}, 4, v{vt+1}")
    for st in range(3):
        e(f"ds_read_b128 {vr(BK+st*4,4)}, v{vt+1} offset:{st*64}")
    e(f"v_mul_u32_u24 v{vt+2}, {WB_PITCH}, v{vL15}")
    e(f"v_lshl_add_u32 v{vt+2}, v{vG}, 4, v{vt+2}")
    e(f"v_add_u32 v{vt+3}, {K1_WB0}, v{vt+2}")
    for cf in range(5):
        for st in range(3):
            e(f"ds_read_b128 {vr(AW+(cf*3+st)*4,4)}, v{vt+3} offset:{cf*16*WB_PITCH + st*64}")
    sL = e.s(2)
    e(f"s_mov_b32 s{sL}, 0x{LOG2E:x}")
    e(f"s_mov_b32 s{sL+1}, 0x{LOG2E:x}")
    for cf in range(5):
        e(f"s_waitcnt lgkmcnt({12 - 3*cf})")
        for st in range(3):
            mfma(e, P + cf * 4, AW + (cf * 3 + st) * 4, BK + st * 4, "0" if st == 0 else None)
    e(f"s_lshl_b32 s{sTl}, s{sRb}, 3")
    e(f"s_add_u32 s{sTl}, s{sTl}, s{sW}")
    e(f"s_cmp_lg_u32 s{sTl}, 7")
    e("s_cbranch_scc1 k1_A_nofd")
    e(f"v_lshlrev_b32 v{vt+4}, 4, v{vL}")
    e(f"s_mul_i32 s{sTl}, s{sHg}, 15360")
    e(f"s_add_u32 s{sTl}, s{sTl}, {WS_WB}")
    for f in range(15):
        if f and f % 4 == 0:
            e(f"s_add_u32 s{sTl}, s{sTl}, 4096")
        e(f"buffer_store_dwordx4 {vr(AW+f*4,4)}, v{vt+4}, {sr(sWs,4)}, s{sTl} offen offset:{(f%4)*1024}")
    e.label("k1_A_nofd")
    e("s_nop 7")
    E1 = XR
    E2 = XR + 18
    PH = XR + 36
    softmax_pm(e, P, E1, E2, PH, XR + 56 - 4 + 4, sL) if False else softmax_pm(e, P, E1, E2, PH, FW, sL)
    e(f"v_mul_u32_u24 v{vt+1}, {PHI_PITCH}, v{vt}")
    e(f"v_mul_u32_u24 v{vt+2}, 80, v{vG}")
    e(f"v_add_u32 v{vt+1}, v{vt+1}, v{vt+2}")
    for i in range(4):
        e(f"ds_write_b128 v{vt+1}, {vr(PH+i*4,4)} offset:{PHI0 + i*16}")
    e(f"ds_write_b64 v{vt+1}, {vr(PH+16,2)} offset:{PHI0 + 64}")
    sHh, sXx = sT + 2, sT + 3
    e(f"s_lshr_b32 s{sHh}, s{sW}, 1")
    e(f"s_and_b32 s{sXx}, s{sW}, 1")
    e(f"v_lshl_add_u32 v{vt}, v{vG}, 3, v{vR4}")
    e(f"v_mul_u32_u24 v{vt+1}, {PHI_PITCH}, v{vt}")
    e(f"v_lshl_add_u32 v{vt+1}, v{vC4}, 3, v{vt+1}")
    e(f"s_mul_i32 s{sT}, s{sHh}, 80")
    e(f"s_add_u32 s{sT}, s{sT}, {PHI0}")
    e(f"v_add_u32 v{vt+1}, s{sT}, v{vt+1}")
    e(f"v_mul_u32_u24 v{vt+2}, {TA_PITCH}, v{vt}")
    e(f"s_lshr_b32 s{sT}, s{sHh}, 1")
    e(f"s_mul_i32 s{sT}, s{sT}, 72")
    e(f"s_add_u32 s{sT}, s{sT}, 144")
    e(f"s_and_b32 s{sT+1}, s{sHh}, 1")
    e(f"s_mul_i32 s{sT+1}, s{sT+1}, 40")
    e(f"s_cmp_eq_u32 s{sXx}, 0")
    e(f"s_cselect_b32 s{sT+1}, s{sT+1}, 32")
    e(f"s_add_u32 s{sT}, s{sT}, s{sT+1}")
    e(f"v_lshl_add_u32 v{vt+3}, v{vC4}, 3, v{vt+2}")
    e(f"v_add_u32 v{vt+3}, s{sT}, v{vt+3}")
    sMask = e.s(2)
    e(f"v_cmp_lt_u32 {sr(sMask,2)}, 0, v{vC4}")
    e(f"s_cmp_eq_u32 s{sXx}, 0")
    e(f"s_cselect_b64 {sr(sMask,2)}, 0, {sr(sMask,2)}")
    e(f"v_mov_b32 v{vt+4}, {K1_ONES}")
    BA = FW + 8
    for ks in range(4):
        for h in range(2):
            off = (ks * 32 + h * 4)
            e(f"v_add_u32 v{BA+ks*2+h}, {off*TA_PITCH}, v{vt+3}")
            e(f"v_cndmask_b32 v{BA+ks*2+h}, v{BA+ks*2+h}, v{vt+4}, {sr(sMask,2)}")
    e("s_waitcnt lgkmcnt(0)")
    e("s_barrier")
    stamp(e)
    AF = ACC
    BF = ACC + 48
    KV = FX
    for ks in range(4):
        for h in range(2):
            off = (ks * 32 + h * 4)
            e(f"ds_read_b64_tr_b16 {vr(BF+ks*4+h*2,2)}, v{BA+ks*2+h}")
            for ft in range(3):
                e(f"ds_read_b64_tr_b16 {vr(AF+(ks*3+ft)*4+h*2,2)}, v{vt+1} offset:{off*PHI_PITCH + ft*32}")
    e(f"s_and_b32 s{sT+1}, s{sHh}, 1")
    e(f"s_lshl_b32 s{sT}, s{sT+1}, 1")
    e(f"v_add_u32 v{vt}, s{sT}, v{vL15}")
    e(f"v_subrev_u32 v{vt+1}, s{sT}, v{vL15}")
    e(f"s_xor_b32 s{sT+1}, s{sT+1}, 1")
    e(f"s_lshl_b32 s{sT+1}, s{sT+1}, 4")
    e(f"v_cmp_gt_u32 vcc, 2, v{vt+1}")
    e(f"v_add_u32 v{vt+1}, s{sT+1}, v{vt+1}")
    e(f"v_mov_b32 v{vt+2}, 0x20000")
    e("s_nop 0")
    e(f"v_cndmask_b32 v{vt+1}, v{vt+2}, v{vt+1}, vcc")
    e(f"v_cmp_eq_u32 vcc, 4, v{vL15}")
    e("s_nop 1")
    e(f"v_cndmask_b32 v{vt+1}, v{vt+1}, 18, vcc")
    e(f"s_cmp_eq_u32 s{sXx}, 0")
    e(f"s_cselect_b64 vcc, -1, 0")
    e("s_nop 1")
    e(f"v_cndmask_b32 v{vt}, v{vt+1}, v{vt}, vcc")
    e(f"v_mul_u32_u24 v{vt}, 72, v{vt}")
    e(f"v_lshl_add_u32 v{vt}, v{vG}, 3, v{vt}")
    e(f"s_lshl_b32 s{sT}, s{sRb}, 5")
    e(f"s_lshl_b32 s{sT+1}, s{sHg}, 2")
    e(f"s_add_u32 s{sT}, s{sT}, s{sT+1}")
    e(f"s_add_u32 s{sT}, s{sT}, s{sHh}")
    e(f"s_mul_i32 s{sT}, s{sT}, 1368")
    e(f"s_add_u32 s{sT}, s{sT}, {WS_P}")
    e(f"v_cmp_eq_u32 vcc, 0, v{vG}")
    e(f"v_mov_b32 v{vt+2}, 0x{OOB:x}")
    e("s_nop 1")
    e(f"v_cndmask_b32 v{vt+1}, v{vt+2}, v{vt}, vcc")
    for ks in range(4):
        e(f"s_waitcnt lgkmcnt({min(15, 24 - 8*ks)})" if ks < 3 else "s_waitcnt lgkmcnt(0)")
        for ft in range(3):
            mfma(e, KV + ft * 4, AF + (ks * 3 + ft) * 4, BF + ks * 4, "0" if ks == 0 else None)
    e("s_nop 7")
    e("s_nop 1")
    for ft in range(3):
        e(f"v_cvt_pk_bf16_f32 v{KV+12+2*ft}, v{KV+4*ft}, v{KV+4*ft+1}")
        e(f"v_cvt_pk_bf16_f32 v{KV+13+2*ft}, v{KV+4*ft+2}, v{KV+4*ft+3}")
    e(f"buffer_store_dwordx2 {vr(KV+12,2)}, v{vt}, {sr(sWs,4)}, s{sT} offen")
    e(f"buffer_store_dwordx2 {vr(KV+14,2)}, v{vt}, {sr(sWs,4)}, s{sT} offen offset:32")
    e(f"buffer_store_dwordx2 {vr(KV+16,2)}, v{vt+1}, {sr(sWs,4)}, s{sT} offen offset:64")
    stamp_dump(e, sWs, 0, vt, sT)
    e("s_endpgm")
    e.label("k1_B")
    e.stn = stn0
    compute(True)
    PK = FW
    for u in range(31):
        a = ACC + u * 4
        e(f"v_cvt_pk_bf16_f32 v{PK+2*u}, v{a}, v{a+1}")
        e(f"v_cvt_pk_bf16_f32 v{PK+2*u+1}, v{a+2}, v{a+3}")
    vRowL = vt + 6
    vG8 = vt + 7
    e(f"v_mul_u32_u24 v{vRowL}, {TB_PITCH}, v{vL15}")
    e(f"s_mul_i32 s{sT+3}, s{sNi}, 80")
    e(f"v_add_u32 v{vRowL}, s{sT+3}, v{vRowL}")
    e(f"v_lshlrev_b32 v{vG8}, 3, v{vG}")
    sMo = sT + 2
    e(f"s_lshl_b32 s{sMo}, s{sMi}, 6")
    e(f"s_add_u32 s{sMo}, s{sMo}, 16")
    e(f"s_mul_i32 s{sMo}, s{sMo}, {TB_PITCH}")
    for t in range(7):
        lit_sel(sT, LITB, t, True)
        e(f"v_bfe_u32 v{vt}, s{sT}, v{vG8}, 8")
        e(f"v_lshl_add_u32 v{vt}, v{vt}, 3, v{vRowL}")
        e(f"v_add_u32 v{vt+1}, s{sMo}, v{vt}")
        for rt in range(4):
            e(f"ds_write_b64 v{vt+1}, {vr(PK + (t*4+rt)*2, 2)} offset:{rt*16*TB_PITCH}")
        if t < 3:
            e(f"ds_write_b64 v{vt}, {vr(PK + (28+t)*2, 2)}")
    e.label("k1_B_epi")
    prefetch_wo()
    base = ACC
    Q = base
    KK = base + 10
    VV = base + 90
    LG = base + 170
    assert LG + 8 <= vtop
    O = KK
    AL = KK + 20
    AH = KK + 28
    vM, vR, vS = vt + 4, vt + 5, vt + 6
    e(f"s_and_b32 s{sT}, s{sW}, 3")
    e(f"s_lshr_b32 s{sT+1}, s{sW}, 2")
    e(f"s_lshl_b32 s{sT+1}, s{sT+1}, 6")
    e(f"v_add_u32 v{vS}, s{sT+1}, v{vL}")
    e(f"v_add_u32 v{vt}, 2, v{vS}")
    e(f"v_mul_u32_u24 v{vt}, {TB_PITCH}, v{vt}")
    e(f"s_lshr_b32 s{sT+2}, s{sT}, 1")
    e(f"s_mul_i32 s{sT+2}, s{sT+2}, 80")
    e(f"s_and_b32 s{sT+3}, s{sT}, 1")
    e(f"s_mul_i32 s{sTl}, s{sT+3}, 48")
    e(f"s_add_u32 s{sTl}, s{sTl}, s{sT+2}")
    e(f"v_add_u32 v{vM}, s{sTl}, v{vt}")
    e(f"s_lshl_b32 s{sTl}, s{sT+3}, 2")
    e(f"s_add_u32 s{sTl}, s{sTl}, s{sT+2}")
    e(f"s_add_u32 s{sTl}, s{sTl}, 32")
    e(f"v_add_u32 v{vR}, s{sTl}, v{vt}")
    vO = vt + 7
    e(f"v_mul_u32_u24 v{vO}, 144, v{vS}")
    e(f"s_mul_i32 s{sTl}, s{sT}, 36")
    e(f"s_add_u32 s{sTl}, s{sTl}, {OB0}")
    e(f"v_add_u32 v{vO}, s{sTl}, v{vO}")
    e(f"v_add_u32 v{vS}, s{sRow0}, v{vS}")
    sMk = e.s(16, 2)
    for w in range(1, 8):
        e(f"v_cmp_le_u32 {sr(sMk+2*w,2)}, {2*w}, v{vS}")
    e("s_waitcnt lgkmcnt(0)")
    e("s_barrier")
    stamp(e)

    def rdseg(dst, typ, w):
        off = (14 - 2 * w) * TB_PITCH + typ * 160
        e(f"ds_read_b128 {vr(dst,4)}, v{vM} offset:{off}")
        e(f"ds_read_b128 {vr(dst+4,4)}, v{vM} offset:{off+16}")
        e(f"ds_read_b32 v{dst+8}, v{vR} offset:{off}")

    rdseg(Q, 0, 0)
    for w in range(8):
        rdseg(KK + w * 10, 1, w)
    for w in range(8):
        e(f"v_mov_b32 v{LG+w}, 0")
    e("s_waitcnt lgkmcnt(12)")
    for w in range(4):
        rdseg(VV + w * 10, 2, w)
    for p in range(9):
        for w in range(4):
            e(f"v_dot2c_f32_bf16 v{LG+w}, v{Q+p}, v{KK+w*10+p}")
    e("s_waitcnt lgkmcnt(12)")
    for w in range(4, 8):
        rdseg(VV + w * 10, 2, w)
    for p in range(9):
        for w in range(4, 8):
            e(f"v_dot2c_f32_bf16 v{LG+w}, v{Q+p}, v{KK+w*10+p}")
    e(f"v_mov_b32 v{vt}, 0xf149f2ca")
    e("s_nop 2")
    for w in range(1, 8):
        e(f"v_cndmask_b32 v{LG+w}, v{vt}, v{LG+w}, {sr(sMk+2*w,2)}")
    e(f"v_max3_f32 v{vt}, v{LG}, v{LG+1}, v{LG+2}")
    e(f"v_max3_f32 v{vt}, v{vt}, v{LG+3}, v{LG+4}")
    e(f"v_max3_f32 v{vt}, v{vt}, v{LG+5}, v{LG+6}")
    e(f"v_max_f32 v{vt}, v{vt}, v{LG+7}")
    import struct, math
    cval = struct.unpack("<I", struct.pack("<f", (18 ** -0.5) * math.log2(math.e)))[0]
    e(f"s_mov_b32 s{sT+2}, 0x{cval:x}")
    e(f"v_mul_f32 v{vt}, s{sT+2}, v{vt}")
    for w in range(8):
        e(f"v_fma_f32 v{LG+w}, v{LG+w}, s{sT+2}, -v{vt}")
    for w in range(8):
        e(f"v_exp_f32 v{LG+w}, v{LG+w}")
    e("s_nop 0")
    e(f"v_add_f32 v{vt}, v{LG}, v{LG+1}")
    for w in range(2, 8):
        e(f"v_add_f32 v{vt}, v{vt}, v{LG+w}")
    e(f"v_rcp_f32 v{vt}, v{vt}")
    for i in range(18):
        e(f"v_mov_b32 v{O+i}, 0")
    for w in range(8):
        e(f"v_mul_f32 v{LG+w}, v{LG+w}, v{vt}")
    for w in range(8):
        e(f"v_cvt_pk_bf16_f32 v{AL+w}, v{LG+w}, 0")
        e(f"v_cvt_pk_bf16_f32 v{AH+w}, 0, v{LG+w}")
    e("s_waitcnt lgkmcnt(0)")
    for w in range(8):
        for p in range(9):
            e(f"v_dot2c_f32_bf16 v{O+2*p}, v{AL+w}, v{VV+w*10+p}")
            e(f"v_dot2c_f32_bf16 v{O+2*p+1}, v{AH+w}, v{VV+w*10+p}")
    e("s_nop 2")
    OP = Q
    for p in range(9):
        e(f"v_cvt_pk_bf16_f32 v{OP+p}, v{O+2*p}, v{O+2*p+1}")
    e(f"s_lshl_b32 s{sTl}, s{sT+3}, 2")
    e(f"v_add_u32 v{vt}, s{sTl}, v{vO}")
    for i in range(4):
        e(f"ds_write_b64 v{vt}, {vr(OP+2*i,2)} offset:{8*i}")
    e(f"s_xor_b32 s{sT+3}, s{sT+3}, 1")
    e(f"s_lshl_b32 s{sT+3}, s{sT+3}, 5")
    e(f"v_add_u32 v{vt+1}, s{sT+3}, v{vO}")
    e(f"ds_write_b32 v{vt+1}, v{OP+8}")
    e(f"s_lshl_b32 s{sT}, s{sW}, 4")
    e(f"v_add_u32 v{vt}, s{sT}, v{vL15}")
    e(f"v_mul_u32_u24 v{vt}, 144, v{vt}")
    e(f"v_lshl_add_u32 v{vt}, v{vG}, 4, v{vt}")
    e(f"v_add_u32 v{vt}, {OB0}, v{vt}")
    e(f"v_lshlrev_b32 v{vt+1}, 4, v{vL}")
    e(f"v_cmp_eq_u32 vcc, 0, v{vG}")
    e(f"v_mov_b32 v{vt+2}, 0x{OOB:x}")
    e(f"s_lshl_b32 s{sT}, s{sRb}, 3")
    e(f"s_add_u32 s{sT}, s{sT}, s{sW}")
    e(f"v_cndmask_b32 v{vt+2}, v{vt+2}, v{vt+1}, vcc")
    e(f"s_mul_i32 s{sT}, s{sT}, 72")
    e(f"s_mul_i32 s{sT+1}, s{sHg}, 9")
    e(f"s_add_u32 s{sT}, s{sT}, s{sT+1}")
    e(f"s_lshl_b32 s{sT}, s{sT}, 8")
    e(f"s_add_u32 s{sT}, s{sT}, {WS_OB}")
    e("s_waitcnt lgkmcnt(0)")
    e("s_barrier")
    CO = KK
    for i in range(3):
        e(f"ds_read_b128 {vr(CO+4*i,4)}, v{vt} offset:{64*i}")
    for i in range(3):
        e(f"s_waitcnt lgkmcnt({2-i})")
        e(f"buffer_store_dwordx4 {vr(CO+4*i,4)}, v{vt+1 if i < 2 else vt+2}, {sr(sWs,4)}, s{sT} offen offset:{1024*i}")
    stamp_dump(e, sWs, 0, vt, sT)
    e("s_endpgm")
    e.label(Lend)
    e("s_endpgm")
    return e.vmax, e.smax


GEMM_LDS = 576 * 128


def gemm_pre(e, NW, sRbk, sNb, sW, vL, vL15, vG, vR4, vC4, vt, sT):
    g = {}
    sRt, sRot = e.s(), e.s()
    e(f"s_mul_i32 s{sRt}, s{sRbk}, {NW}")
    e(f"s_add_u32 s{sRt}, s{sRt}, s{sW}")
    e(f"s_lshl_b32 s{sRot}, s{sRbk}, 1")
    e(f"s_add_u32 s{sRot}, s{sRot}, s{sNb}")
    e(f"s_mul_i32 s{sT}, s{sRot}, 7282")
    e(f"s_lshr_b32 s{sT}, s{sT}, 16")
    e(f"s_mul_i32 s{sT}, s{sT}, 9")
    e(f"s_sub_u32 s{sRot}, s{sRot}, s{sT}")
    vX = e.v()
    e(f"v_lshlrev_b32 v{vX}, 4, v{vL}")
    vD = e.v(2)
    e(f"v_and_b32 v{vt}, 1, v{vG}")
    e(f"v_lshlrev_b32 v{vt}, 1, v{vt}")
    e(f"v_and_b32 v{vt+1}, 7, v{vL}")
    e(f"v_xor_b32 v{vt}, v{vt}, v{vt+1}")
    e(f"v_lshrrev_b32 v{vt+1}, 3, v{vL}")
    e(f"v_mul_u32_u24 v{vt+1}, 1152, v{vt+1}")
    e(f"v_lshl_add_u32 v{vD}, v{vt}, 4, v{vt+1}")
    e(f"v_xor_b32 v{vD+1}, 64, v{vD}")
    g.update(sRt=sRt, sRot=sRot, vX=vX, vD=vD)
    return g


W2OFF = GEMM_LDS
STG0 = 2 * GEMM_LDS
K23_LDS = STG0 + 8 * 2048


def out_stage(e, ACC, PKd, sW, sRt, sOcol, sOut, vL, vL15, vG, vt, sT):
    for t in range(4):
        a = ACC + t * 4
        d = PKd + t * 2
        e(f"v_cvt_pk_bf16_f32 v{d}, v{a}, v{a+1}")
        e(f"v_cvt_pk_bf16_f32 v{d+1}, v{a+2}, v{a+3}")
    e(f"s_lshl_b32 s{sT}, s{sW}, 11")
    e(f"s_add_u32 s{sT}, s{sT}, {STG0}")
    e(f"v_lshrrev_b32 v{vt}, 1, v{vG}")
    e(f"v_and_b32 v{vt+1}, 7, v{vL15}")
    e(f"v_xor_b32 v{vt}, v{vt}, v{vt+1}")
    e(f"v_lshlrev_b32 v{vt}, 4, v{vt}")
    e(f"v_lshl_add_u32 v{vt}, v{vL15}, 7, v{vt}")
    e(f"v_and_b32 v{vt+1}, 1, v{vG}")
    e(f"v_lshl_add_u32 v{vt}, v{vt+1}, 3, v{vt}")
    e(f"v_add_u32 v{vt}, s{sT}, v{vt}")
    for t in range(4):
        if t:
            e(f"v_xor_b32 v{vt+1}, {t*32}, v{vt}")
        e(f"ds_write_b64 v{vt+1 if t else vt}, {vr(PKd+t*2,2)}")
    e(f"v_lshrrev_b32 v{vt+2}, 3, v{vL}")
    e(f"v_and_b32 v{vt+3}, 7, v{vL}")
    e(f"v_xor_b32 v{vt+4}, v{vt+3}, v{vt+2}")
    e(f"v_lshlrev_b32 v{vt+4}, 4, v{vt+4}")
    e(f"v_lshl_add_u32 v{vt+4}, v{vt+2}, 7, v{vt+4}")
    e(f"v_add_u32 v{vt+4}, s{sT}, v{vt+4}")
    e(f"s_lshl_b32 s{sT+1}, s{sRt}, 4")
    e(f"v_add_u32 v{vt+2}, s{sT+1}, v{vt+2}")
    e(f"v_mul_u32_u24 v{vt+2}, 2304, v{vt+2}")
    e(f"v_lshl_add_u32 v{vt+2}, v{vt+3}, 4, v{vt+2}")
    e(f"s_add_u32 s{sT+1}, s{sOcol}, {8*2304}")
    e("s_waitcnt lgkmcnt(0)")
    e(f"ds_read_b128 {vr(PKd+8,4)}, v{vt+4}")
    e(f"ds_read_b128 {vr(PKd+12,4)}, v{vt+4} offset:1024")
    e("s_waitcnt lgkmcnt(1)")
    e(f"buffer_store_dwordx4 {vr(PKd+8,4)}, v{vt+2}, {sr(sOut,4)}, s{sOcol} offen")
    e("s_waitcnt lgkmcnt(0)")
    e(f"buffer_store_dwordx4 {vr(PKd+12,4)}, v{vt+2}, {sr(sOut,4)}, s{sT+1} offen")


def rd_addr(e, vRA, base, vG, vR4, vC4, vt):
    e(f"v_lshl_add_u32 v{vt}, v{vG}, 3, v{vR4}")
    e(f"v_lshlrev_b32 v{vt}, 7, v{vt}")
    e(f"v_lshl_add_u32 v{vt}, v{vC4}, 3, v{vt}")
    e(f"v_lshrrev_b32 v{vt+1}, 1, v{vR4}")
    e(f"v_and_b32 v{vt+2}, 1, v{vG}")
    e(f"v_lshl_add_u32 v{vt+1}, v{vt+2}, 1, v{vt+1}")
    e(f"v_lshl_add_u32 v{vRA}, v{vt+1}, 5, v{vt}")
    if base:
        e(f"v_add_u32 v{vRA}, {base}, v{vRA}")
    for t in range(1, 4):
        e(f"v_xor_b32 v{vRA+t}, {t<<5}, v{vRA}")


def grp_src(e, sG, sRot, sCol, sT):
    e(f"s_lshr_b32 s{sT}, s{sG}, 2")
    e(f"s_add_u32 s{sT}, s{sT}, s{sRot}")
    e(f"s_sub_u32 s{sT+1}, s{sT}, 9")
    e(f"s_cmp_ge_u32 s{sT}, 9")
    e(f"s_cselect_b32 s{sT}, s{sT+1}, s{sT}")
    e(f"s_lshl_b32 s{sT}, s{sT}, 2")
    e(f"s_and_b32 s{sT+1}, s{sG}, 3")
    e(f"s_add_u32 s{sT}, s{sT}, s{sT+1}")
    e(f"s_mul_i32 s{sT}, s{sT}, 18432")
    e(f"s_add_u32 s{sT}, s{sT}, s{sCol}")


def gemm_body(e, g, NW, sCol, sXoff, sOcol, sW, sXs, sWo, sOut, vL, vL15, vG, vR4, vC4, vt, sT, w2issue):
    sRt, sRot, vX, vD = g["sRt"], g["sRot"], g["vX"], g["vD"]
    nct = 4
    nph = (36 + NW - 1) // NW
    kslist = []
    ksdone = 0
    for ph in range(nph):
        ksnew = min(36, (ph + 1) * NW) // 2
        kslist.append(list(range(ksdone, ksnew)))
        ksdone = ksnew
    mxk = max(len(k) for k in kslist)
    cnt = [2 + len(k) for k in kslist] + [0, 0, 0, 0]
    XR = e.v(72, 4)
    ACC = e.v(4 * nct, 4)
    F = e.v(mxk * nct * 4, 4)
    vRA = e.v(4)
    sM0, sG, sXb, sXk, sXc = e.s(), e.s(), e.s(), e.s(), e.s()
    e(f"s_lshl_b32 s{sM0}, s{sW}, 11")
    e(f"s_mov_b32 s{sG}, s{sW}")
    e(f"s_mul_i32 s{sXb}, s{sRt}, 18432")
    e(f"s_add_u32 s{sXb}, s{sXb}, s{sXoff}")
    e(f"s_lshl_b32 s{sXk}, s{sRot}, 11")

    def issue(ph):
        if ph >= nph:
            return
        for ks in kslist[ph]:
            if ks % 2 == 0:
                e(f"s_add_u32 s{sXc}, s{sXb}, s{sXk}")
            e(f"buffer_load_dwordx4 {vr(XR+ks*4,4)}, v{vX}, {sr(sXs,4)}, s{sXc} offen offset:{(ks%2)*1024}")
            if ks % 2 == 1:
                e(f"s_add_u32 s{sXk}, s{sXk}, 2048")
                e(f"s_cmp_eq_u32 s{sXk}, 18432")
                e(f"s_cselect_b32 s{sXk}, 0, s{sXk}")
        grp_src(e, sG, sRot, sCol, sT)
        if (ph + 1) * NW > 36:
            e(f"s_cmp_lt_u32 s{sG}, 36")
            e(f"s_cselect_b32 s{sT}, s{sT}, 0x{OOB:x}")
            e(f"s_cselect_b32 s{sT+1}, s{sM0}, {STG0 - ph*NW*2048}")
        else:
            e(f"s_mov_b32 s{sT+1}, s{sM0}")
        e(f"s_add_u32 m0, s{sT+1}, {ph*NW*2048}")
        e(f"s_add_u32 s{sG}, s{sG}, {NW}")
        e(f"buffer_load_dwordx4 v{vD}, {sr(sWo,4)}, s{sT} offen lds")
        e(f"s_add_u32 m0, s{sT+1}, {ph*NW*2048 + 1024}")
        e(f"s_add_u32 s{sT}, s{sT}, {8*1152}")
        e(f"buffer_load_dwordx4 v{vD+1}, {sr(sWo,4)}, s{sT} offen lds")

    DEPTH = int(os.environ.get('GDEPTH', '2'))
    for ph in range(DEPTH):
        issue(ph)
    stamp(e)
    rd_addr(e, vRA, 0, vG, vR4, vC4, vt)
    for i in range(4 * nct):
        e(f"v_mov_b32 v{ACC+i}, 0")
    rebased = False
    for ph in range(nph):
        rem = sum(cnt[ph + 1: min(nph, ph + DEPTH)])
        e(f"s_waitcnt vmcnt({rem})")
        e("s_barrier")
        if ph in (0, nph - 1): stamp(e)
        kss = kslist[ph]
        for i, ks in enumerate(kss):
            if ks >= 12 and not rebased:
                for t in range(4):
                    e(f"v_add_u32 v{vRA+t}, {12*4096}, v{vRA+t}")
                rebased = True
            o = (ks - 12 if ks >= 12 else ks) * 4096
            for t in range(nct):
                for h in range(2):
                    e(f"ds_read_b64_tr_b16 {vr(F+(i*nct+t)*4+h*2,2)}, v{vRA+t} offset:{o + h*512}")
        issue(ph + DEPTH)
        if ph == nph - 1:
            w2issue()
        tot = len(kss) * nct * 2
        for i, ks in enumerate(kss):
            for t in range(nct):
                left = tot - 2 * (i * nct + t + 1)
                if t % 2 == 0:
                    e(f"s_waitcnt lgkmcnt({min(15, left - 2)})")
                mfma(e, ACC + t * 4, F + (i * nct + t) * 4, XR + ks * 4)
    e("s_nop 7")
    out_stage(e, ACC, F, sW, sRt, sOcol, sOut, vL, vL15, vG, vt, sT)


def common_ids(e):
    vTid = e.v()
    vL, vL15, vG, vR4, vC4 = [e.v() for _ in range(5)]
    vt = e.v(8, 2)
    sW = e.s()
    e(f"v_lshrrev_b32 v{vt}, 6, v0")
    e(f"v_and_b32 v{vL}, 63, v0")
    e(f"v_readfirstlane_b32 s{sW}, v{vt}")
    e(f"v_and_b32 v{vL15}, 15, v0")
    e(f"v_lshrrev_b32 v{vG}, 4, v{vL}")
    e(f"v_bfe_u32 v{vR4}, v0, 2, 2")
    e(f"v_and_b32 v{vC4}, 3, v0")
    return vL, vL15, vG, vR4, vC4, vt, sW


def div9(e, sQ, sR, sU):
    e(f"s_mul_i32 s{sQ}, s{sU}, 7282")
    e(f"s_lshr_b32 s{sQ}, s{sQ}, 16")
    e(f"s_mul_i32 s{sR}, s{sQ}, 9")
    e(f"s_sub_u32 s{sR}, s{sU}, s{sR}")


K2_GRID = 256
P2_NW = 6


K2_KV0 = W2OFF + 27 * 2048
K2_Z0 = K2_KV0 + 6400
K2_ZEND = K2_Z0 + 1536
K2_DUMP = K2_ZEND
K2_O0 = K2_ZEND + 64


XRED = int(os.environ.get('XRED', '8'))
W2E = int(os.environ.get('W2E', '0'))


def gen_k2(e):
    e.reset()
    e.s(3)
    e.label("k2_kernel")
    e(f"s_cmp_ge_u32 s2, {K2_GRID}")
    e("s_cbranch_scc1 k2_end")
    stamp_init(e); stamp(e)
    sPA = e.s(2)
    sPB = e.s(4)
    sPW = e.s(2)
    e(f"s_load_dwordx2 {sr(sPA,2)}, s[0:1], 24")
    e(f"s_load_dwordx4 {sr(sPB,4)}, s[0:1], 48")
    e(f"s_load_dwordx2 {sr(sPW,2)}, s[0:1], 72")
    sT = e.s(4)
    sJ, sI = e.s(), e.s()
    e(f"s_and_b32 s{sJ}, s2, 7")
    e(f"s_lshr_b32 s{sI}, s2, 3")
    vL, vL15, vG, vR4, vC4, vt, sW = common_ids(e)
    sXs, sWo, sOut, sW2 = e.s(4), e.s(4), e.s(4), e.s(4)
    sHg, sRb = sJ, sI
    sU, sRbk2, sNb2 = e.s(), e.s(), e.s()
    e(f"s_mul_i32 s{sU}, s{sJ}, 28")
    e(f"s_add_u32 s{sU}, s{sU}, s{sI}")
    e(f"s_cmp_lt_u32 s{sI}, 28")
    e(f"s_cselect_b32 s{sU}, s{sU}, 255")
    e(f"s_mul_i32 s{sRbk2}, s{sU}, 6554")
    e(f"s_lshr_b32 s{sRbk2}, s{sRbk2}, 16")
    e(f"s_mul_i32 s{sNb2}, s{sRbk2}, 10")
    e(f"s_sub_u32 s{sNb2}, s{sU}, s{sNb2}")
    g2 = gemm_pre(e, P2_NW, sRbk2, sNb2, sW, vL, vL15, vG, vR4, vC4, vt, sT)
    vX, vD = g2["vX"], g2["vD"]
    vL16 = vX
    sCol2, sXoff2, sOcol2 = e.s(), e.s(), e.s()
    e(f"s_lshl_b32 s{sCol2}, s{sNb2}, 7")
    e(f"s_mov_b32 s{sXoff2}, {WS_OA}")
    e(f"s_movk_i32 s{sT}, {1152 + 1024}")
    e(f"s_cmp_eq_u32 s{sNb2}, 9")
    e(f"s_cselect_b32 s{sOcol2}, s{sT}, s{sCol2}")
    e(f"s_cselect_b32 s{sCol2}, 1024, s{sCol2}")
    e(f"s_cselect_b32 s{sXoff2}, {WS_OB}, s{sXoff2}")
    sW3, sRt1, sRot1, sCol1, sOcol1 = e.s(), e.s(), e.s(), e.s(), e.s()
    e(f"s_and_b32 s{sW3}, s{sW}, 3")
    e(f"s_lshr_b32 s{sT}, s{sI}, 3")
    e(f"s_lshl_b32 s{sT+1}, s{sJ}, 2")
    e(f"s_add_u32 s{sT}, s{sT}, s{sT+1}")
    e(f"s_and_b32 s{sT+1}, s{sI}, 7")
    e(f"s_lshl_b32 s{sRt1}, s{sT}, 2")
    e(f"s_add_u32 s{sRt1}, s{sRt1}, s{sW3}")
    e(f"s_lshl_b32 s{sRot1}, s{sT}, 1")
    e(f"s_add_u32 s{sRot1}, s{sRot1}, s{sT+1}")
    e(f"s_mul_i32 s{sT}, s{sRot1}, 7282")
    e(f"s_lshr_b32 s{sT}, s{sT}, 16")
    e(f"s_mul_i32 s{sT}, s{sT}, 9")
    e(f"s_sub_u32 s{sRot1}, s{sRot1}, s{sT}")
    e(f"s_lshl_b32 s{sCol1}, s{sT+1}, 7")
    e(f"s_add_u32 s{sOcol1}, s{sCol1}, 1152")
    sOF, sPb, sPk, sG = e.s(), e.s(), e.s(), e.s()
    e(f"s_lshl_b32 s{sOF}, s{sRb}, 2")
    e(f"s_add_u32 s{sOF}, s{sOF}, s{sW3}")
    e(f"s_mul_i32 s{sOF}, s{sOF}, 72")
    e(f"s_mul_i32 s{sT}, s{sHg}, 9")
    e(f"s_add_u32 s{sOF}, s{sOF}, s{sT}")
    e(f"s_lshl_b32 s{sOF}, s{sOF}, 8")
    vU = e.v(2)
    e(f"v_and_b32 v{vt+1}, 255, v0")
    e(f"v_lshlrev_b32 v{vU}, 4, v{vt+1}")
    e(f"v_add_u32 v{vU+1}, {256*16}, v{vU}")
    e(f"v_cmp_gt_u32 vcc, 86, v{vt+1}")
    e(f"v_mov_b32 v{vt}, 0x{OOB:x}")
    e(f"s_mul_i32 s{sPb}, s{sHg}, {4*1368}")
    e(f"v_cndmask_b32 v{vU+1}, v{vt}, v{vU+1}, vcc")
    e(f"s_add_u32 s{sPb}, s{sPb}, {WS_P}")
    e(f"s_and_b32 s{sPk}, s{sRb}, 15")
    e(f"s_mul_i32 s{sPk}, s{sPk}, {32*1368}")
    vKA = e.v(4)
    vmark, smark = e.vn, e.sn
    PR = e.v(128, 4)
    R2 = e.v(92, 4)
    BQ, AW, P = R2, R2 + 12, R2 + 72
    XR1, ACC1, vRA1 = R2, R2 + 72, R2 + 88
    e("s_waitcnt lgkmcnt(0)")
    srd(e, sXs, sPW, WS_BYTES)
    srd(e, sWo, sPB, WO_BYTES)
    srd(e, sOut, sPB + 2, OUT_BYTES)
    e(f"s_cmp_eq_u32 s{sNb2}, 9")
    e(f"s_cselect_b32 s{sPA}, s{sPB}, s{sPA}")
    e(f"s_cselect_b32 s{sPA+1}, s{sPB+1}, s{sPA+1}")
    srd(e, sW2, sPA, WO_BYTES)
    def pload(dst, vaddr):
        e(f"s_add_u32 s{sT+1}, s{sPb}, s{sPk}")
        e(f"buffer_load_dwordx4 {vr(dst,4)}, v{vaddr}, {sr(sXs,4)}, s{sT+1} offen")
        e(f"s_add_u32 s{sPk}, s{sPk}, {32*1368}")
        e(f"s_cmp_eq_u32 s{sPk}, {16*32*1368}")
        e(f"s_cselect_b32 s{sPk}, 0, s{sPk}")
    stamp(e)
    stn1 = getattr(e, "stn", 0)

    sSel = e.s(2)
    e(f"s_mov_b32 s{sSel}, 0x00003f80")
    e(f"s_mov_b32 s{sSel+1}, 0x3f800000")

    def kvaddr(h):
      for hh in range(2):
        u = vt
        e(f"v_and_b32 v{u}, 255, v0")
        e(f"v_lshlrev_b32 v{u}, 1, v{u}")
        if 512*h + hh:
            e(f"v_add_u32 v{u}, {512*h + hh}, v{u}")
        e(f"v_mul_u32_u24 v{vt+1}, 6133, v{u}")
        e(f"v_lshrrev_b32 v{vt+1}, 20, v{vt+1}")
        e(f"v_mul_u32_u24 v{vt+2}, 171, v{vt+1}")
        e(f"v_sub_u32 v{vt+2}, v{u}, v{vt+2}")
        e(f"v_mul_u32_u24 v{vt+3}, 7282, v{vt+2}")
        e(f"v_lshrrev_b32 v{vt+3}, 16, v{vt+3}")
        e(f"v_mul_u32_u24 v{vt+4}, 9, v{vt+3}")
        e(f"v_sub_u32 v{vt+4}, v{vt+2}, v{vt+4}")
        e(f"v_mul_u32_u24 v{vt+1}, 20, v{vt+1}")
        e(f"v_add_u32 v{vt+1}, v{vt+1}, v{vt+3}")
        e(f"v_mul_u32_u24 v{vt+1}, 80, v{vt+1}")
        e(f"v_lshl_add_u32 v{vKA+2*h+hh}, v{vt+4}, 3, v{vt+1}")
        if h == 1:
            e(f"v_cmp_gt_u32 vcc, 684, v{u}")
            e(f"v_mov_b32 v{vt+2}, {K2_DUMP - K2_KV0}")
            e("s_nop 1")
            e(f"v_cndmask_b32 v{vKA+2*h+hh}, v{vt+2}, v{vKA+2*h+hh}, vcc")
        e(f"v_add_u32 v{vKA+2*h+hh}, {K2_KV0}, v{vKA+2*h+hh}")

    def reduce(h):
        a = PR + h * 64
        acc = [PR + (1 - h) * 64 + i for i in range(8)]
        for x in acc:
            e(f"v_mov_b32 v{x}, 0")
        for rb in range(16):
            for d in range(4):
                e(f"v_dot2c_f32_bf16 v{acc[2*d]}, s{sSel}, v{a+rb*4+d}")
                e(f"v_dot2c_f32_bf16 v{acc[2*d+1]}, s{sSel+1}, v{a+rb*4+d}")
        e("s_nop 2")
        for d in range(4):
            e(f"v_cvt_pk_bf16_f32 v{a+d}, v{acc[2*d]}, v{acc[2*d+1]}")
        e(f"ds_write_b64 v{vKA+2*h}, {vr(a,2)}")
        e(f"ds_write_b64 v{vKA+2*h+1}, {vr(a+2,2)}")

    e(f"s_cmp_ge_u32 s{sW}, 4")
    e("s_cbranch_scc1 k2_X")
    e(f"s_add_u32 s{sT}, s{sOF}, {WS_Q}")
    e(f"v_lshlrev_b32 v{vt}, 4, v{vL15}")
    for st in range(3):
        e(f"buffer_load_dwordx4 {vr(BQ+st*4,4)}, v{vL16 if st < 2 else vt}, {sr(sXs,4)}, s{sT} offen offset:{st*1024}")
    e(f"s_mul_i32 s{sT}, s{sHg}, 15360")
    e(f"s_add_u32 s{sT}, s{sT}, {WS_WB}")
    for f in range(15):
        if f and f % 4 == 0:
            e(f"s_add_u32 s{sT}, s{sT}, 4096")
        e(f"buffer_load_dwordx4 {vr(AW+f*4,4)}, v{vL16}, {sr(sXs,4)}, s{sT} offen offset:{(f%4)*1024}")
    e(f"s_cmp_ge_u32 s{sW}, 2")
    e("s_cbranch_scc1 k2_A23")
    for rb in range(16):
        pload(PR + 64 + rb * 4, vU + 1)
    kvaddr(1)
    e("s_waitcnt vmcnt(16)")
    e.label("k2_A23")
    sL = e.s(2)
    e(f"s_mov_b32 s{sL}, 0x{LOG2E:x}")
    e(f"s_mov_b32 s{sL+1}, 0x{LOG2E:x}")
    e(f"s_cmp_lt_u32 s{sW}, 2")
    e("s_cbranch_scc1 k2_A01")
    e("s_waitcnt vmcnt(0)")
    e.label("k2_A01")
    for cf in range(5):
        for st in range(3):
            mfma(e, P + cf * 4, AW + (cf * 3 + st) * 4, BQ + st * 4, "0" if st == 0 else None)
    e("s_nop 7")
    E1 = AW
    E2 = AW + 18
    PH = AW + 36
    softmax_pm(e, P, E1, E2, PH, vt, sL)
    e(f"v_mov_b32 v{PH+18}, 0")
    e(f"v_mov_b32 v{PH+19}, 0")
    e(f"v_lshrrev_b32 v{vt}, 2, v{vL15}")
    e(f"v_cmp_eq_u32 vcc, v{vt}, v{vG}")
    e(f"v_mul_u32_u24 v{vt+1}, 20, v{vt}")
    e(f"v_and_b32 v{vt+2}, 3, v{vL15}")
    e(f"v_add_u32 v{vt+1}, v{vt+1}, v{vt+2}")
    e(f"v_mul_u32_u24 v{vt+1}, 80, v{vt+1}")
    e(f"v_add_u32 v{vt+1}, {K2_KV0}, v{vt+1}")
    e(f"v_mov_b32 v{vt+2}, {K2_Z0}")
    e(f"v_cndmask_b32 v{vt+1}, v{vt+2}, v{vt+1}, vcc")
    e(f"s_lshl_b32 s{sT}, s{sW}, 4")
    e(f"v_add_u32 v{vt+2}, s{sT}, v{vL15}")
    e(f"v_mul_u32_u24 v{vt+2}, 144, v{vt+2}")
    e(f"v_add_u32 v{vt+2}, {K2_O0}, v{vt+2}")
    e(f"v_mul_u32_u24 v{vt+3}, 36, v{vG}")
    e(f"v_add_u32 v{vt+3}, v{vt+3}, v{vt+2}")
    e(f"v_lshl_add_u32 v{vt+2}, v{vG}, 4, v{vt+2}")
    e(f"v_cmp_eq_u32 vcc, 0, v{vG}")
    e(f"v_mov_b32 v{vt+4}, 0x{OOB:x}")
    e(f"s_add_u32 s{sOF}, s{sOF}, {WS_OA}")
    e(f"v_cndmask_b32 v{vt+4}, v{vt+4}, v{vL16}, vcc")
    stamp(e)
    e(f"s_cmp_ge_u32 s{sW}, 2")
    e("s_cbranch_scc1 k2_Anr")
    e("s_waitcnt vmcnt(0)")
    reduce(1)
    e("s_waitcnt lgkmcnt(0)")
    e.label("k2_Anr")
    e("s_barrier")
    stamp(e)
    AK = PR
    for ch in range(5):
        for st in range(5):
            e(f"ds_read_b128 {vr(AK+(ch*5+st)*4,4)}, v{vt+1} offset:{ch*320 + st*16}")
    N = P
    for ch in range(5):
        e(f"s_waitcnt lgkmcnt({min(15, 20 - 5*ch)})")
        for st in range(5):
            mfma(e, N + ch * 4, AK + (ch * 5 + st) * 4, PH + st * 4, "0" if st == 0 else None)
    e("s_nop 7")
    e("s_nop 3")
    e(f"v_add_f32 v{vt}, 0x358637bd, v{N+18}")
    e(f"v_rcp_f32 v{vt}, v{vt}")
    e("s_nop 0")
    for i in range(0, 18, 2):
        e(f"v_pk_mul_f32 {vr(N+i,2)}, {vr(N+i,2)}, {vr(vt,2)} op_sel_hi:[1,0]")
    OP = AW
    for i in range(9):
        e(f"v_cvt_pk_bf16_f32 v{OP+i}, v{N+2*i}, v{N+2*i+1}")
    for i in range(4):
        e(f"ds_write2_b32 v{vt+3}, v{OP+2*i}, v{OP+2*i+1} offset0:{2*i} offset1:{2*i+1}")
    e(f"ds_write_b32 v{vt+3}, v{OP+8} offset:32")
    e("s_waitcnt lgkmcnt(0)")
    CO = AW + 12
    for i in range(3):
        e(f"ds_read_b128 {vr(CO+4*i,4)}, v{vt+2} offset:{64*i}")
    for i in range(3):
        e(f"s_waitcnt lgkmcnt({2-i})")
        e(f"buffer_store_dwordx4 {vr(CO+4*i,4)}, v{vL16 if i < 2 else vt+4}, {sr(sXs,4)}, s{sOF} offen offset:{1024*i} sc1")
    e(f"v_cmp_eq_u32 vcc, 0, v{vL}")
    e(f"v_mov_b32 v{vt+5}, 0x{OOB:x}")
    e(f"v_mov_b32 v{vt+6}, 1")
    e(f"s_lshl_b32 s{sOF}, s{sRb}, 7")
    e(f"s_lshl_b32 s{sT+1}, s{sHg}, 4")
    e(f"s_add_u32 s{sOF}, s{sOF}, s{sT+1}")
    e(f"s_lshl_b32 s{sT+1}, s{sW}, 2")
    e(f"s_add_u32 s{sOF}, s{sOF}, s{sT+1}")
    e(f"s_add_u32 s{sOF}, s{sOF}, {WS_FL}")
    e(f"v_cndmask_b32 v{vt+5}, v{vt+5}, 0, vcc")
    e("s_waitcnt vmcnt(0)")
    e(f"buffer_store_dword v{vt+6}, v{vt+5}, {sr(sXs,4)}, s{sOF} offen sc1")
    e("s_barrier")
    stamp(e)
    e(f"s_cmp_lg_u32 s{sW}, 0")
    e("s_cbranch_scc1 k2_Aw2")
    e(f"s_cmp_ge_u32 s{sU}, 220")
    e("s_cbranch_scc1 k2_P2")
    e(f"s_cmp_eq_u32 s{sNb2}, 9")
    e("s_cbranch_scc1 k2_P2")
    e(f"s_mul_i32 s{sT}, s{sRbk2}, 96")
    e(f"s_add_u32 s{sT+1}, s{sT}, 95")
    e(f"s_min_u32 s{sT+1}, s{sT+1}, 2047")
    e(f"s_lshr_b32 s{sT}, s{sT}, 6")
    e(f"s_lshr_b32 s{sT+1}, s{sT+1}, 6")
    e(f"s_lshl_b32 s{sT}, s{sT}, 7")
    e(f"s_lshl_b32 s{sT+1}, s{sT+1}, 7")
    e(f"v_and_b32 v{vt}, 31, v{vL}")
    e(f"v_lshlrev_b32 v{vt}, 2, v{vt}")
    e(f"v_cmp_gt_u32 vcc, 32, v{vL}")
    e(f"v_mov_b32 v{vt+1}, s{sT}")
    e(f"v_mov_b32 v{vt+2}, s{sT+1}")
    e(f"v_cndmask_b32 v{vt+1}, v{vt+2}, v{vt+1}, vcc")
    e(f"v_add_u32 v{vt}, v{vt}, v{vt+1}")
    e(f"s_mov_b32 s{sT}, {WS_FL}")
    e(f"s_mov_b32 s{sG}, 0")
    e.label("k2_poll")
    e(f"s_sleep {os.environ.get('PSLEEP', '4')}")
    e(f"buffer_load_dword v{vt+1}, v{vt}, {sr(sXs,4)}, s{sT} offen sc1")
    e("s_waitcnt vmcnt(0)")
    e(f"v_cmp_ne_u32 vcc, 1, v{vt+1}")
    e(f"s_add_u32 s{sG}, s{sG}, 1")
    e(f"s_cmp_ge_u32 s{sG}, 100000")
    e("s_cbranch_scc1 k2_P2")
    e("s_cbranch_vccnz k2_poll")
    e("s_branch k2_P2")
    e.label("k2_Aw2")
    e(f"s_cmp_ge_u32 s{sU}, 220")
    e("s_cbranch_scc1 k2_P2")
    e(f"s_add_u32 s{sG}, s{sW}, {26 if W2E else -1}")
    e.label("k2_w2l")
    grp_src(e, sG, g2["sRot"], sCol2, sT)
    e(f"s_lshl_b32 s{sT+1}, s{sG}, 11")
    e(f"s_add_u32 m0, s{sT+1}, {W2OFF}")
    e(f"s_add_u32 s{sG}, s{sG}, 3")
    e(f"buffer_load_dwordx4 v{vD}, {sr(sW2,4)}, s{sT} offen lds")
    e(f"s_add_u32 m0, s{sT+1}, {W2OFF + 1024}")
    e(f"s_add_u32 s{sT}, s{sT}, {8*1152}")
    e(f"buffer_load_dwordx4 v{vD+1}, {sr(sW2,4)}, s{sT} offen lds")
    e(f"s_cmp_lt_u32 s{sG}, 36")
    e("s_cbranch_scc1 k2_w2l")
    e("s_branch k2_P2")
    e.label("k2_X")
    e.stn = stn1
    for rb in range(16):
        pload(PR + rb * 4, vU)
    e(f"v_and_b32 v{vt}, 255, v0")
    for i in range(4):
        e(f"v_mov_b32 v{R2+20+i}, 0")
    e(f"v_min_u32 v{vt+1}, 79, v{vt}")
    e(f"v_mul_u32_u24 v{vt+1}, 80, v{vt+1}")
    e(f"v_add_u32 v{vt+1}, {K2_KV0 + 72}, v{vt+1}")
    e(f"ds_write_b64 v{vt+1}, {vr(R2+20,2)}")
    e(f"v_min_u32 v{vt+1}, 95, v{vt}")
    e(f"v_lshlrev_b32 v{vt+1}, 4, v{vt+1}")
    e(f"v_add_u32 v{vt+1}, {K2_Z0}, v{vt+1}")
    e(f"ds_write_b128 v{vt+1}, {vr(R2+20,4)}")
    kvaddr(0)
    sXb, sXk, sXc = e.s(), e.s(), e.s()
    e(f"s_mul_i32 s{sXb}, s{sRt1}, 18432")
    e(f"s_add_u32 s{sXb}, s{sXb}, {WS_OB}")
    e(f"s_lshl_b32 s{sXk}, s{sRot1}, 11")
    e(f"s_mov_b32 s{sG}, s{sW3}")
    for r in range(9):
        grp_src(e, sG, sRot1, sCol1, sT)
        e(f"s_lshl_b32 s{sT+1}, s{sG}, 11")
        e(f"s_mov_b32 m0, s{sT+1}")
        e(f"s_add_u32 s{sG}, s{sG}, 4")
        e(f"buffer_load_dwordx4 v{vD}, {sr(sWo,4)}, s{sT} offen lds")
        e(f"s_add_u32 m0, s{sT+1}, 1024")
        e(f"s_add_u32 s{sT}, s{sT}, {8*1152}")
        e(f"buffer_load_dwordx4 v{vD+1}, {sr(sWo,4)}, s{sT} offen lds")
        if r == XRED:
            stamp(e)
            e(f"s_waitcnt vmcnt({2*(XRED+1)})")
            reduce(0)
            e("s_waitcnt lgkmcnt(0)")
            e("s_barrier")
            stamp(e)
    for ks in range(18):
        if ks % 2 == 0:
            e(f"s_add_u32 s{sXc}, s{sXb}, s{sXk}")
        e(f"buffer_load_dwordx4 {vr(XR1+ks*4,4)}, v{vX}, {sr(sXs,4)}, s{sXc} offen offset:{(ks%2)*1024}")
        if ks % 2 == 1:
            e(f"s_add_u32 s{sXk}, s{sXk}, 2048")
            e(f"s_cmp_eq_u32 s{sXk}, 18432")
            e(f"s_cselect_b32 s{sXk}, 0, s{sXk}")
    e(f"s_mov_b32 s{sG}, s{sW3}")
    for r in range(7 if W2E else 0):
        grp_src(e, sG, g2["sRot"], sCol2, sT)
        e(f"s_lshl_b32 s{sT+1}, s{sG}, 11")
        e(f"s_add_u32 s{sT+1}, s{sT+1}, {W2OFF}")
        e(f"s_cmp_lt_u32 s{sU}, 220")
        e(f"s_cselect_b32 s{sT}, s{sT}, 0x{OOB:x}")
        if r == 6:
            e(f"s_cmp_lt_u32 s{sG}, 27")
            e(f"s_cselect_b32 s{sT}, s{sT}, 0x{OOB:x}")
            e(f"s_cselect_b32 s{sT+1}, s{sT+1}, {STG0}")
        e(f"s_mov_b32 m0, s{sT+1}")
        e(f"s_add_u32 s{sG}, s{sG}, 4")
        e(f"buffer_load_dwordx4 v{vD}, {sr(sW2,4)}, s{sT} offen lds")
        e(f"s_add_u32 m0, s{sT+1}, 1024")
        e(f"s_add_u32 s{sT}, s{sT}, {8*1152}")
        e(f"buffer_load_dwordx4 v{vD+1}, {sr(sW2,4)}, s{sT} offen lds")
    rd_addr(e, vRA1, 0, vG, vR4, vC4, vt)
    e(f"s_waitcnt vmcnt({32 if W2E else 18})")
    e("s_barrier")
    stamp(e)

    def kloop(XR, ACC, F, vRA, xextra):
        def rdk(ks):
            L = []
            if ks == 12:
                for t in range(4):
                    L.append(f"v_add_u32 v{vRA+t}, {12*4096}, v{vRA+t}")
            o = (ks - 12 if ks >= 12 else ks) * 4096
            for t in range(4):
                for h in range(2):
                    L.append(f"ds_read_b64_tr_b16 {vr(F+((ks%3)*4+t)*4+h*2,2)}, v{vRA+t} offset:{o + h*512}")
            return L
        for x in rdk(0) + rdk(1):
            e(x)
        for ks in range(18):
            nl = 8 if ks < 17 else 0
            e(f"s_waitcnt vmcnt({17-ks+xextra}) lgkmcnt({nl})")
            R = rdk(ks + 2) if ks + 2 < 18 else []
            per = (len(R) + 3) // 4
            for t in range(4):
                mfma(e, ACC + t * 4, F + ((ks % 3) * 4 + t) * 4, XR + ks * 4, "0" if ks == 0 else None)
                for x in R[t*per:(t+1)*per]:
                    e(x)
        e("s_nop 7")
    kloop(XR1, ACC1, PR, vRA1, 14 if W2E else 0)
    out_stage(e, ACC1, PR, sW, sRt1, sOcol1, sOut, vL, vL15, vG, vt, sT)
    e.label("k2_P2")
    e.vn = vmark
    stamp(e)
    e(f"s_cmp_ge_u32 s{sU}, 220")
    e("s_cbranch_scc1 k2_fin")
    XR = e.v(72, 4)
    ACC = e.v(16, 4)
    F = e.v(48, 4)
    vRA = e.v(4)
    e("s_waitcnt vmcnt(0)")
    rd_addr(e, vRA, W2OFF, vG, vR4, vC4, vt)
    e(f"s_mul_i32 s{sXb}, s{g2['sRt']}, 18432")
    e(f"s_add_u32 s{sXb}, s{sXb}, s{sXoff2}")
    e(f"s_lshl_b32 s{sXk}, s{g2['sRot']}, 11")
    e("s_barrier")
    stamp(e)
    e(f"s_cmp_ge_u32 s{sW}, {P2_NW}")
    e("s_cbranch_scc1 k2_fin")
    for ks in range(18):
        if ks % 2 == 0:
            e(f"s_add_u32 s{sXc}, s{sXb}, s{sXk}")
        e(f"buffer_load_dwordx4 {vr(XR+ks*4,4)}, v{vX}, {sr(sXs,4)}, s{sXc} offen offset:{(ks%2)*1024} sc1")
        if ks % 2 == 1:
            e(f"s_add_u32 s{sXk}, s{sXk}, 2048")
            e(f"s_cmp_eq_u32 s{sXk}, 18432")
            e(f"s_cselect_b32 s{sXk}, 0, s{sXk}")
    kloop(XR, ACC, F, vRA, 0)
    out_stage(e, ACC, F, sW, g2["sRt"], sOcol2, sOut, vL, vL15, vG, vt, sT)
    e.label("k2_fin")
    stamp_dump(e, sXs, 1, vt, sT)
    e.label("k2_end")
    e("s_endpgm")
    return e.vmax, e.smax


def main():
    global STAMP
    if "--stamp" in sys.argv:
        STAMP = True
        sys.argv.remove("--stamp")
    e = Em()
    hdr = open(f"cdna_kernels/{NAME}.s.ref").read().split("\n")
    head = [l for l in hdr if l.startswith(";") and "@launch" not in l and "Override" not in l and "grid=ceil" not in l]
    out = head[:]
    out.append(f"; @launch kernel=k1_kernel grid=(256,1,1) block=(512,1,1) lds={K1_LDS}")
    out.append(f"; @launch kernel=k2_kernel grid=({K2_GRID},1,1) block=(512,1,1) lds={K23_LDS}")
    out.append('.amdgcn_target "amdgcn-amd-amdhsa--gfx950"')
    out.append(".text")
    res = {}
    for nm, fn in (("k1", gen_k1), ("k2", gen_k2)):
        e.L.append(f".globl {nm}_kernel")
        e.L.append(".p2align 8")
        e.L.append(f".type {nm}_kernel,@function")
        res[nm] = fn(e)
    out += e.L
    out.append("code_end:")
    out.append("  s_endpgm")
    out.append('.section .rodata,"a"')
    for nm, (vm, sm) in res.items():
        vm4 = (vm + 3) // 4 * 4
        out.append(".p2align 6")
        out.append(f".amdhsa_kernel {nm}_kernel")
        out.append(f"  .amdhsa_next_free_vgpr {vm}")
        out.append(f"  .amdhsa_next_free_sgpr {sm}")
        out.append(f"  .amdhsa_accum_offset {vm4}")
        out.append("  .amdhsa_group_segment_fixed_size 0")
        out.append("  .amdhsa_kernarg_size 80")
        out.append("  .amdhsa_user_sgpr_count 2")
        out.append("  .amdhsa_user_sgpr_kernarg_segment_ptr 1")
        out.append("  .amdhsa_system_sgpr_workgroup_id_x 1")
        out.append(".end_amdhsa_kernel")
    path = sys.argv[1] if len(sys.argv) > 1 else f"cdna_kernels/{NAME}.s"
    open(path, "w").write("\n".join(out) + "\n")
    print(res)


if __name__ == "__main__":
    main()
```

```python
import sys, os

NAME = "concat_heads__linear_kernel_hedgehog__sliding_local_dilated__prompt"
WS_Q = 0x000000
WS_OA = 0x400000
WS_OB = 0x800000
WS_P = 0xC00000
WS_WB = 0xE00000
WS_FL = 0xE80000
WS_BYTES = 0x1000000
X_BYTES = 2048 * 576 * 2
WQKV_BYTES = 576 * 1728 * 2
WO_BYTES = 576 * 576 * 2
WPHI_BYTES = 32 * 18 * 18 * 2
OUT_BYTES = 2048 * 1152 * 2
OOB = 0x80000000
LOG2E = 0x3FB8AA3B


class Em:
    def __init__(self):
        self.L = []
        self.vn = 0
        self.sn = 0
        self.vmax = 0
        self.smax = 0
        self.lab = 0

    def __call__(self, s):
        self.L.append("  " + s)

    def c(self, s):
        self.L.append("  ; " + s)

    def label(self, s):
        self.L.append(s + ":")

    def newlab(self, p="L"):
        self.lab += 1
        return f"{p}_{self.lab}"

    def v(self, n=1, al=0):
        if al == 0:
            al = 2 if n >= 2 else 1
        self.vn = (self.vn + al - 1) // al * al
        r = self.vn
        self.vn += n
        self.vmax = max(self.vmax, self.vn)
        assert self.vn <= 256, "out of vgprs"
        return r

    def s(self, n=1, al=1):
        if n == 2:
            al = max(al, 2)
        if n >= 4:
            al = max(al, 4)
        self.sn = (self.sn + al - 1) // al * al
        r = self.sn
        self.sn += n
        self.smax = max(self.smax, self.sn)
        assert self.sn <= 102, "out of sgprs"
        return r

    def reset(self):
        self.vn = 0
        self.sn = 0
        self.vmax = 0
        self.smax = 0


STAMP = False
WS_ST = 0xF00000

def stamp_init(e):
    if not STAMP: return
    e.stp = e.s(20, 4)
    e.stn = 0

def stamp(e):
    if not STAMP: return
    i = e.stn
    e.stn += 1
    assert i < 9
    if i == 0:
        e(f"s_memrealtime {sr(e.stp + 18, 2)}")
    e(f"s_memtime {sr(e.stp + 2*i, 2)}")
    e("s_waitcnt lgkmcnt(0)")

def stamp_dump(e, sWs, kidx, vt, sT):
    if not STAMP: return
    e("s_waitcnt vmcnt(0) lgkmcnt(0)")
    stamp(e)
    e(f"v_lshrrev_b32 v{vt}, 6, v0")
    e(f"v_lshlrev_b32 v{vt}, 6, v{vt}")
    e(f"s_lshl_b32 s{sT}, s2, 9")
    e(f"s_add_u32 s{sT}, s{sT}, {WS_ST + kidx*256*512}")
    e(f"v_and_b32 v{vt+1}, 63, v0")
    e(f"v_cmp_eq_u32 vcc, 0, v{vt+1}")
    e(f"v_mov_b32 v{vt+2}, 0x{OOB:x}")
    e("s_nop 1")
    e(f"v_cndmask_b32 v{vt}, v{vt+2}, v{vt}, vcc")
    for i in range(12):
        src = e.stp + 2*i if i < 9 else e.stp + 18
        e(f"v_mov_b32 v{vt+1}, s{src}")
        e(f"buffer_store_dword v{vt+1}, v{vt}, {sr(sWs,4)}, s{sT} offen offset:{4*i}")
    e("s_waitcnt vmcnt(0)")

def vr(a, n):
    return f"v[{a}:{a+n-1}]" if n > 1 else f"v{a}"


def sr(a, n):
    return f"s[{a}:{a+n-1}]" if n > 1 else f"s{a}"


def srd(e, d, base, nbytes):
    e(f"s_mov_b32 s{d}, s{base}")
    e(f"s_and_b32 s{d+1}, s{base+1}, 0xffff")
    e(f"s_mov_b32 s{d+2}, {nbytes}")
    e(f"s_mov_b32 s{d+3}, 0x00020000")


def mfma(e, d, a, b, c=None):
    cs = vr(d, 4) if c is None else c
    e(f"v_mfma_f32_16x16x32_bf16 {vr(d,4)}, {vr(a,4)}, {vr(b,4)}, {cs}")


WB_PITCH = 208
WB_BYTES = 5 * 16 * WB_PITCH


def wb_issue_loads(e, sPhi, sHg, vTid, vE, vD, tmp):
    sB = sHg
    for i in range(3):
        e(f"v_add_u32 v{vE+i}, {512*i}, v{vTid}")
        e(f"v_lshlrev_b32 v{tmp}, 1, v{vE+i}")
        if i == 2:
            e(f"v_cmp_gt_u32 vcc, 1296, v{vE+i}")
            e(f"v_mov_b32 v{tmp+1}, 0x{OOB:x}")
            e("s_nop 1")
            e(f"v_cndmask_b32 v{tmp}, v{tmp+1}, v{tmp}, vcc")
        e(f"buffer_load_ushort v{vD+i}, v{tmp}, {sr(sPhi,4)}, s{sB} offen")


def lds_zero(e, base, nbytes, vTid, tmp4, nthreads=512):
    z = tmp4
    a = tmp4 + 4
    for i in range(4):
        e(f"v_mov_b32 v{z+i}, 0")
    n16 = nbytes // 16
    rounds = (n16 + nthreads - 1) // nthreads
    e(f"v_lshlrev_b32 v{a}, 4, v{vTid}")
    if base:
        e(f"v_add_u32 v{a}, {base}, v{a}")
    for r in range(rounds):
        if (r + 1) * nthreads <= n16:
            e(f"ds_write_b128 v{a}, {vr(z,4)} offset:{r*nthreads*16}")
        else:
            last = (n16 - 1 - r * nthreads) * 16 + base
            e(f"v_min_u32 v{a+1}, {last}, v{a}")
            e(f"ds_write_b128 v{a+1}, {vr(z,4)} offset:{r*nthreads*16}")


def wb_scatter(e, WB0, DUMP, vE, vD, t):
    for i in range(3):
        E = vE + i
        e(f"v_mul_u32_u24 v{t}, 3237, v{E}")
        e(f"v_lshrrev_b32 v{t}, 20, v{t}")
        e(f"v_mul_u32_u24 v{t+1}, 324, v{t}")
        e(f"v_sub_u32 v{t+1}, v{E}, v{t+1}")
        e(f"v_mul_u32_u24 v{t+2}, 3641, v{t+1}")
        e(f"v_lshrrev_b32 v{t+2}, 16, v{t+2}")
        e(f"v_mul_u32_u24 v{t+3}, 18, v{t+2}")
        e(f"v_sub_u32 v{t+3}, v{t+1}, v{t+3}")
        e(f"v_lshrrev_b32 v{t+4}, 2, v{t+3}")
        e(f"v_lshlrev_b32 v{t+4}, 4, v{t+4}")
        e(f"v_lshl_add_u32 v{t+4}, v{t}, 2, v{t+4}")
        e(f"v_and_b32 v{t+3}, 3, v{t+3}")
        e(f"v_add_u32 v{t+4}, v{t+4}, v{t+3}")
        e(f"v_mul_u32_u24 v{t+4}, {WB_PITCH}, v{t+4}")
        e(f"v_mul_u32_u24 v{t}, 18, v{t}")
        e(f"v_add_u32 v{t}, v{t}, v{t+2}")
        e(f"v_lshl_add_u32 v{t+4}, v{t}, 1, v{t+4}")
        if i == 2:
            e(f"v_cmp_gt_u32 vcc, 1296, v{E}")
            e(f"v_mov_b32 v{t}, {DUMP - WB0}")
            e("s_nop 1")
            e(f"v_cndmask_b32 v{t+4}, v{t}, v{t+4}, vcc")
        if WB0:
            e(f"v_add_u32 v{t+4}, {WB0}, v{t+4}")
        e(f"ds_write_b16 v{t+4}, v{vD+i}")


def softmax_pm(e, P, E1, E2, OUT, t, sL):
    mx, mn = t, t + 1
    e(f"v_max3_f32 v{mx}, v{P}, v{P+1}, v{P+2}")
    e(f"v_min3_f32 v{mn}, v{P}, v{P+1}, v{P+2}")
    for i in range(3, 17, 2):
        e(f"v_max3_f32 v{mx}, v{mx}, v{P+i}, v{P+i+1}")
        e(f"v_min3_f32 v{mn}, v{mn}, v{P+i}, v{P+i+1}")
    e(f"v_max_f32 v{mx}, v{mx}, v{P+17}")
    e(f"v_min_f32 v{mn}, v{mn}, v{P+17}")
    cp, cm = t + 2, t + 4
    e(f"v_mul_f32 v{cp}, s{sL}, v{mx}")
    e(f"v_mul_f32 v{cm}, s{sL}, v{mn}")
    for i in range(0, 18, 2):
        e(f"v_pk_fma_f32 {vr(E1+i,2)}, {vr(P+i,2)}, {sr(sL,2)}, {vr(cp,2)} op_sel_hi:[1,1,0] neg_lo:[0,0,1] neg_hi:[0,0,1]")
        e(f"v_pk_fma_f32 {vr(E2+i,2)}, {vr(P+i,2)}, {sr(sL,2)}, {vr(cm,2)} op_sel_hi:[1,1,0] neg_lo:[1,0,0] neg_hi:[1,0,0]")
    for i in range(18):
        e(f"v_exp_f32 v{E1+i}, v{E1+i}")
        e(f"v_exp_f32 v{E2+i}, v{E2+i}")
    s1, s2 = t + 2, t + 4
    e(f"v_pk_add_f32 {vr(s1,2)}, {vr(E1,2)}, {vr(E1+2,2)}")
    e(f"v_pk_add_f32 {vr(s2,2)}, {vr(E2,2)}, {vr(E2+2,2)}")
    for i in range(4, 18, 2):
        e(f"v_pk_add_f32 {vr(s1,2)}, {vr(s1,2)}, {vr(E1+i,2)}")
        e(f"v_pk_add_f32 {vr(s2,2)}, {vr(s2,2)}, {vr(E2+i,2)}")
    e(f"v_add_f32 v{s1}, v{s1}, v{s1+1}")
    e(f"v_add_f32 v{s2}, v{s2}, v{s2+1}")
    e(f"v_rcp_f32 v{s1}, v{s1}")
    e(f"v_rcp_f32 v{s2}, v{s2}")
    e("s_nop 0")
    for i in range(0, 18, 2):
        e(f"v_pk_mul_f32 {vr(E1+i,2)}, {vr(E1+i,2)}, {vr(s1,2)} op_sel_hi:[1,0]")
        e(f"v_pk_mul_f32 {vr(E2+i,2)}, {vr(E2+i,2)}, {vr(s2,2)} op_sel_hi:[1,0]")
    for i in range(0, 18, 2):
        e(f"v_cvt_pk_bf16_f32 v{OUT+i//2}, v{E1+i}, v{E1+i+1}")
        e(f"v_cvt_pk_bf16_f32 v{OUT+9+i//2}, v{E2+i}, v{E2+i+1}")


def chunk_decode(e, sTile, vq, vS, vC):
    e(f"s_lshl_b32 s{sTile+1}, s{sTile}, 2")
    e(f"v_add_u32 v{vC}, s{sTile+1}, v{vq}")
    e(f"v_min_u32 v{vC}, 26, v{vC}")
    e(f"v_mul_u32_u24 v{vS}, 57, v{vC}")
    e(f"v_lshrrev_b32 v{vS}, 9, v{vS}")
    e(f"v_mul_u32_u24 v{vS+1}, 9, v{vS}")
    e(f"v_sub_u32 v{vC}, v{vC}, v{vS+1}")


WSLOT = 16384
XR0 = 4 * WSLOT
XSLOT = 18432
K1_WB0 = XR0 + 3 * XSLOT
K1_ONES = K1_WB0 + WB_BYTES
K1_DUMP2 = K1_ONES + 16
K1_LDS = K1_DUMP2 + 16
TA_PITCH = 304
PHI0 = 40960
PHI_PITCH = 336
TB_PITCH = 496
OB0 = 73728


def chunk_of(T, g):
    p = 4 * T + g
    pad = p > 26
    p = min(p, 26)
    return p // 9, p % 9, pad


def lit(fn, T):
    return sum((fn(*chunk_of(T, g)) & 0xff) << (8 * g) for g in range(4))


LITW = [lit(lambda s, c, p: 18 * ((s + 1) % 3) + c, T) for T in range(7)]
LITA = [lit(lambda s, c, p: 36 if (s == 2 or p) else 18 * s + c, T) for T in range(7)]
LITQ = [lit(lambda s, c, p: c if (s == 2 and not p) else 255, T) for T in range(7)]
LITB = [lit(lambda s, c, p: 5 if p else 20 * ((s + 1) % 3) + (c if c < 5 else c + 1), T) for T in range(7)]


def wb_issue_loads2(e, sPhi, sB, vTid, vE, vD, tmp, nth):
    n = (1296 + nth - 1) // nth
    for i in range(n):
        e(f"v_add_u32 v{vE+i}, {nth*i}, v{vTid}")
        e(f"v_lshlrev_b32 v{tmp}, 1, v{vE+i}")
        if (i + 1) * nth > 1296:
            e(f"v_cmp_gt_u32 vcc, 1296, v{vE+i}")
            e(f"v_mov_b32 v{tmp+1}, 0x{OOB:x}")
            e("s_nop 1")
            e(f"v_cndmask_b32 v{tmp}, v{tmp+1}, v{tmp}, vcc")
        e(f"buffer_load_ushort v{vD+i}, v{tmp}, {sr(sPhi,4)}, s{sB} offen")
    return n


def wb_scatter2(e, WB0, DUMPA, vE, vD, t, nth):
    n = (1296 + nth - 1) // nth
    for i in range(n):
        E = vE + i
        e(f"v_mul_u32_u24 v{t}, 3237, v{E}")
        e(f"v_lshrrev_b32 v{t}, 20, v{t}")
        e(f"v_mul_u32_u24 v{t+1}, 324, v{t}")
        e(f"v_sub_u32 v{t+1}, v{E}, v{t+1}")
        e(f"v_mul_u32_u24 v{t+2}, 3641, v{t+1}")
        e(f"v_lshrrev_b32 v{t+2}, 16, v{t+2}")
        e(f"v_mul_u32_u24 v{t+3}, 18, v{t+2}")
        e(f"v_sub_u32 v{t+3}, v{t+1}, v{t+3}")
        e(f"v_lshrrev_b32 v{t+4}, 2, v{t+3}")
        e(f"v_lshlrev_b32 v{t+4}, 4, v{t+4}")
        e(f"v_lshl_add_u32 v{t+4}, v{t}, 2, v{t+4}")
        e(f"v_and_b32 v{t+3}, 3, v{t+3}")
        e(f"v_add_u32 v{t+4}, v{t+4}, v{t+3}")
        e(f"v_mul_u32_u24 v{t+4}, {WB_PITCH}, v{t+4}")
        e(f"v_mul_u32_u24 v{t}, 18, v{t}")
        e(f"v_add_u32 v{t}, v{t}, v{t+2}")
        e(f"v_lshl_add_u32 v{t+4}, v{t}, 1, v{t+4}")
        if (i + 1) * nth > 1296:
            e(f"v_cmp_gt_u32 vcc, 1296, v{E}")
            e(f"v_mov_b32 v{t}, {DUMPA - WB0}")
            e("s_nop 1")
            e(f"v_cndmask_b32 v{t+4}, v{t}, v{t+4}, vcc")
        if WB0:
            e(f"v_add_u32 v{t+4}, {WB0}, v{t+4}")
        e(f"ds_write_b16 v{t+4}, v{vD+i}")


def interleave(e, mf, other, start=1, per=1):
    oi = 0
    for i, m in enumerate(mf):
        e(m)
        if i >= start - 1:
            for _ in range(per):
                if oi < len(other):
                    e(other[oi]); oi += 1
    while oi < len(other):
        e(other[oi]); oi += 1


def mf(d, a, b, c=None):
    cs = vr(d, 4) if c is None else c
    return f"v_mfma_f32_16x16x32_bf16 {vr(d,4)}, {vr(a,4)}, {vr(b,4)}, {cs}"


XBYC = os.environ.get('XBYC', '1') != '0'
WBYC = os.environ.get('WBYC', '0') != '0'


def gen_k1(e):
    e.reset()
    e.s(3)
    e.label("k1_kernel")
    Lend = "k1_end"
    e("s_cmp_ge_u32 s2, 256")
    e(f"s_cbranch_scc1 {Lend}")
    stamp_init(e); stamp(e)
    sPA = e.s(4)
    sPB = e.s(4)
    sPP = e.s(4)
    sPW = e.s(2)
    sPO = e.s(2)
    e(f"s_load_dwordx4 {sr(sPA,4)}, s[0:1], 0")
    e(f"s_load_dwordx4 {sr(sPB,4)}, s[0:1], 32")
    e(f"s_load_dwordx4 {sr(sPP,4)}, s[0:1], 16")
    e(f"s_load_dwordx2 {sr(sPW,2)}, s[0:1], 72")
    e(f"s_load_dwordx2 {sr(sPO,2)}, s[0:1], 48")
    sJ, sI, sBr, sRb, sHg, sW, sMi, sNi = [e.s() for _ in range(8)]
    sT = e.s(4)
    e(f"s_and_b32 s{sJ}, s2, 7")
    e(f"s_lshr_b32 s{sI}, s2, 3")
    e(f"s_lshr_b32 s{sBr}, s{sJ}, 2")
    e(f"s_lshr_b32 s{sT}, s{sJ}, 1")
    e(f"s_and_b32 s{sT}, s{sT}, 1")
    e(f"s_lshl_b32 s{sT}, s{sT}, 3")
    e(f"s_lshr_b32 s{sRb}, s{sI}, 2")
    e(f"s_add_u32 s{sRb}, s{sRb}, s{sT}")
    e(f"s_and_b32 s{sT}, s{sJ}, 1")
    e(f"s_lshl_b32 s{sT}, s{sT}, 2")
    e(f"s_and_b32 s{sHg}, s{sI}, 3")
    e(f"s_add_u32 s{sHg}, s{sHg}, s{sT}")
    vTid = e.v()
    vL, vL15, vG, vR4, vC4 = [e.v() for _ in range(5)]
    vt = e.v(8, 2)
    e(f"v_lshrrev_b32 v{vt}, 6, v0")
    e(f"v_and_b32 v{vL}, 63, v0")
    e(f"v_readfirstlane_b32 s{sW}, v{vt}")
    e(f"v_and_b32 v{vL15}, 15, v0")
    e(f"v_lshrrev_b32 v{vG}, 4, v{vL}")
    e(f"v_bfe_u32 v{vR4}, v0, 2, 2")
    e(f"v_and_b32 v{vC4}, 3, v0")
    e(f"s_and_b32 s{sMi}, s{sW}, 1")
    e(f"s_bfe_u32 s{sNi}, s{sW}, 0x10001")
    sX = e.s(4)
    sWq = e.s(4)
    sWs = e.s(4)
    sPhi = e.s(4)
    sRow0 = e.s()
    sTl = e.s(2)
    sIt = e.s()
    sDl = e.s()
    sSl = e.s()
    sWlim, sXh, sLx, sHf = e.s(), e.s(), e.s(), e.s()
    e(f"s_lshl_b32 s{sRow0}, s{sRb}, 7")

    def make_srds():
        e("s_waitcnt lgkmcnt(0)")
        e(f"s_cmp_eq_u32 s{sBr}, 0")
        for i in range(4):
            e(f"s_cselect_b32 s{sPA+i}, s{sPA+i}, s{sPB+i}")
        nl = os.environ.get('K1NOLOAD', '0') != '0'
        srd(e, sX, sPA, 0 if nl else X_BYTES)
        srd(e, sWq, sPA + 2, 0 if nl else WQKV_BYTES)
        srd(e, sWs, sPW, WS_BYTES)
        srd(e, sPhi, sPP, WPHI_BYTES)
    vbase = e.vn
    ACC = e.v(124, 4)
    FW = e.v(56, 4)
    FX = e.v(40, 4)
    vRA = e.v(11)
    vtop = e.vn
    vPF = e.v(2)
    vXc = e.v(2)
    vWc = e.v()
    stn0 = getattr(e, "stn", 0)

    def loader():
        sLw = sMi
        sWoff, sM0, sXo = sNi, sSl, sDl
        e(f"s_sub_u32 s{sLw}, s{sW}, 4")
        vD = vbase
        vXo = vbase + 2
        vWE = vbase + 4
        vWD = vbase + 10
        tmp = vbase + 16
        vT2 = vbase + 24
        e(f"v_and_b32 v{vt}, 7, v{vL}")
        e(f"v_xor_b32 v{vt}, v{vt}, v{vG}")
        e(f"v_lshrrev_b32 v{vt+1}, 3, v{vL}")
        e(f"v_mul_u32_u24 v{vt+1}, 1152, v{vt+1}")
        e(f"v_lshl_add_u32 v{vXo}, v{vt}, 4, v{vt+1}")
        e(f"v_xor_b32 v{vXo+1}, 64, v{vXo}")
        e(f"s_and_b32 s{sT}, s{sLw}, 1")
        e(f"s_lshl_b32 s{sT}, s{sT}, 3")
        e(f"s_mul_i32 s{sT+1}, s{sHg}, 144")
        for hf in range(2):
            p, r, c, sg = vt, vt + 1, vt + 2, vt + 3
            e(f"s_sub_u32 s{sT+2}, {64*hf}, s{sT}")
            e(f"v_add_u32 v{p}, s{sT+2}, v{vL}")
            e(f"v_and_b32 v{vt+4}, 0xff, v{p}")
            e(f"v_mul_u32_u24 v{r}, 2185, v{vt+4}")
            e(f"v_lshrrev_b32 v{r}, 16, v{r}")
            e(f"v_mul_u32_u24 v{c}, 30, v{r}")
            e(f"v_sub_u32 v{c}, v{vt+4}, v{c}")
            e(f"v_mul_u32_u24 v{sg}, 57, v{c}")
            e(f"v_lshrrev_b32 v{sg}, 9, v{sg}")
            e(f"v_mul_u32_u24 v{vt+4}, 9, v{sg}")
            e(f"v_sub_u32 v{vt+4}, v{c}, v{vt+4}")
            e(f"v_mul_u32_u24 v{r}, 3456, v{r}")
            e(f"v_mul_u32_u24 v{sg}, 1152, v{sg}")
            e(f"v_add3_u32 v{r}, v{r}, v{sg}, s{sT+1}")
            e(f"v_lshl_add_u32 v{r}, v{vt+4}, 4, v{r}")
            e(f"v_cmp_gt_u32 vcc, 120, v{p}")
            e(f"v_cmp_gt_u32 s[{sT+2}:{sT+3}], 27, v{c}")
            e(f"v_mov_b32 v{vt+5}, 0x{OOB:x}")
            e(f"s_and_b64 vcc, vcc, s[{sT+2}:{sT+3}]")
            e("s_nop 1")
            e(f"v_cndmask_b32 v{vD+hf}, v{vt+5}, v{r}, vcc")
        sBlk = sT + 2
        sXs_ = sT + 3
        e(f"s_lshr_b32 s{sT}, s{sI}, 2")
        e(f"s_and_b32 s{sT+1}, s{sI}, 3")
        e(f"s_lshl_b32 s{sT+1}, s{sT+1}, 1")
        e(f"s_add_u32 s{sBlk}, s{sT}, s{sT+1}")
        e(f"s_sub_u32 s{sT}, s{sBlk}, 9")
        e(f"s_cmp_ge_u32 s{sBlk}, 9")
        e(f"s_cselect_b32 s{sBlk}, s{sT}, s{sBlk}")
        e(f"s_mul_i32 s{sWoff}, s{sBlk}, {64*3456}")
        e(f"s_mul_i32 s{sT}, s{sLw}, {2*13824}")
        e(f"s_add_u32 s{sWoff}, s{sWoff}, s{sT}")
        e(f"s_add_u32 s{sWlim}, s{sT}, {576*3456}")
        e(f"s_lshl_b32 s{sM0}, s{sLw}, 12")
        e(f"s_lshl_b32 s{sT}, s{sLw}, 4")
        e(f"s_add_u32 s{sT}, s{sT}, s{sRow0}")
        e(f"s_mul_i32 s{sXo}, s{sT}, 1152")
        e(f"s_sub_u32 s{sT}, s{sRow0}, 16")
        e(f"s_max_i32 s{sT}, s{sT}, 0")
        e(f"s_mul_i32 s{sXh}, s{sT}, 1152")
        e(f"s_lshl_b32 s{sLx}, s{sLw}, 11")
        e(f"s_add_u32 s{sLx}, s{sLx}, 2048")
        e(f"s_mov_b32 s{sXs_}, {XR0}")
        e(f"s_mov_b32 s{sIt}, 0")
        e(f"s_cmp_eq_u32 s{sLw}, 0")
        e(f"s_cselect_b32 s{sHf}, s{sBr}, 0")
        make_srds()

        def issue_x(hh, lim):
            e(f"s_lshl_b32 s{sTl}, s{sBlk}, 7")
            e(f"s_cmp_lt_u32 s{sIt}, {lim}")
            e(f"s_cselect_b32 s{sTl}, s{sTl}, 0x{OOB:x}")
            e(f"s_add_u32 s{sTl+1}, s{sXs_}, s{sLx}")
            for i in range(2):
                e(f"s_add_u32 m0, s{sTl+1}, {hh*8192 + i*1024}")
                e(f"s_add_u32 s{sT}, s{sTl}, s{sXo}")
                if hh or i:
                    e(f"s_add_u32 s{sT}, s{sT}, {(hh*64 + i*8)*1152}")
                e(f"buffer_load_dwordx4 v{vXo+i}, {sr(sX,4)}, s{sT} offen lds")
            lab = e.newlab("k1h")
            e(f"s_cmp_eq_u32 s{sHf}, 0")
            e(f"s_cbranch_scc1 {lab}")
            e(f"s_add_u32 m0, s{sXs_}, {hh*1024}")
            e(f"s_add_u32 s{sT}, s{sTl}, s{sXh}")
            if hh:
                e(f"s_add_u32 s{sT}, s{sT}, {8*1152}")
            e(f"buffer_load_dwordx4 v{vXo+hh}, {sr(sX,4)}, s{sT} offen lds")
            e.label(lab)
            if hh:
                e(f"s_add_u32 s{sBlk}, s{sBlk}, 1")
                e(f"s_cmp_eq_u32 s{sBlk}, 9")
                e(f"s_cselect_b32 s{sBlk}, 0, s{sBlk}")
                e(f"s_add_u32 s{sXs_}, s{sXs_}, {XSLOT}")
                e(f"s_cmp_eq_u32 s{sXs_}, {XR0 + 3*XSLOT}")
                e(f"s_cselect_b32 s{sXs_}, {XR0}, s{sXs_}")

        def issue(par):
            e(f"s_cmp_lt_u32 s{sIt}, 18")
            e(f"s_cselect_b32 s{sTl+1}, s{sWoff}, 0x{OOB:x}")
            for j in range(2):
                for hf in range(2):
                    if WBYC and j == 1 and hf == 1:
                        continue
                    e(f"s_add_u32 m0, s{sM0}, {j*2048 + hf*1024}")
                    e(f"s_add_u32 s{sTl}, s{sTl+1}, {j*13824}")
                    e(f"buffer_load_dwordx4 v{vD+hf}, {sr(sWq,4)}, s{sTl} offen lds")
            if not XBYC:
                issue_x(par ^ 1, 17)
            e(f"s_add_u32 s{sWoff}, s{sWoff}, {32*3456}")
            e(f"s_sub_u32 s{sTl}, s{sWoff}, {576*3456}")
            e(f"s_cmp_ge_u32 s{sWoff}, s{sWlim}")
            e(f"s_cselect_b32 s{sWoff}, s{sTl}, s{sWoff}")
            e(f"s_add_u32 s{sM0}, s{sM0}, {WSLOT}")
            e(f"s_and_b32 s{sM0}, s{sM0}, 0xffff")
            e(f"s_add_u32 s{sIt}, s{sIt}, 1")

        if not XBYC:
            issue_x(0, 17)
        NG = (3 if WBYC else 4) if XBYC else 6
        e("s_branch k1_l_i0")
        e.label("k1_l_loop")
        e(f"s_cmp_eq_u32 s{sIt}, 2")
        e("s_cbranch_scc1 k1_l_first")
        e(f"s_waitcnt vmcnt({2*NG})")
        e("s_barrier")
        e.label("k1_l_i0")
        issue(0)
        e(f"s_cmp_lt_u32 s{sIt}, 4")
        e("s_cbranch_scc1 k1_l_i1")
        e(f"s_waitcnt vmcnt({2*NG})")
        e("s_barrier")
        e.label("k1_l_i1")
        issue(1)
        e(f"s_cmp_eq_u32 s{sIt}, 4")
        e("s_cbranch_scc1 k1_l_scat")
        e.label("k1_l_cont")
        e(f"s_cmp_lt_u32 s{sIt}, 22")
        e("s_cbranch_scc1 k1_l_loop")
        e.stn = stn0 + 2 if STAMP else 0
        stamp(e)
        e("s_waitcnt vmcnt(0) lgkmcnt(0)")
        e("s_barrier")
        stamp(e)
        e(f"s_cmp_eq_u32 s{sBr}, 0")
        e("s_cbranch_scc1 k1_A_epi")
        e("s_branch k1_B_epi")
        e.label("k1_l_first")
        e.stn = stn0
        stamp(e)
        e(f"s_cmp_lg_u32 s{sBr}, 0")
        e("s_cbranch_scc1 k1_l_first2")
        e(f"v_subrev_u32 v{vT2}, 256, v0")
        e(f"s_mul_i32 s{sT}, s{sHg}, {4*324*2}")
        wb_issue_loads2(e, sPhi, sT, vT2, vWE, vWD, vt, 256)
        lds_zero(e, K1_WB0, WB_BYTES, vT2, tmp, 256)
        e(f"v_mov_b32 v{tmp}, 0x3f803f80")
        e(f"v_mov_b32 v{tmp+1}, 0x3f803f80")
        e(f"v_mov_b32 v{tmp+2}, {K1_ONES}")
        e(f"ds_write_b64 v{tmp+2}, {vr(tmp,2)}")
        e(f"s_waitcnt vmcnt({NG+6}) lgkmcnt(0)")
        e("s_barrier")
        stamp(e)
        e("s_branch k1_l_i0")
        e.label("k1_l_first2")
        e(f"s_waitcnt vmcnt({NG})")
        e("s_barrier")
        e.stn = stn0 + 1 if STAMP else 0
        stamp(e)
        e("s_branch k1_l_i0")
        e.label("k1_l_scat")
        e(f"s_cmp_lg_u32 s{sBr}, 0")
        e("s_cbranch_scc1 k1_l_cont")
        e(f"s_waitcnt vmcnt({2*NG})")
        wb_scatter2(e, K1_WB0, K1_DUMP2, vWE, vWD, tmp, 256)
        e("s_branch k1_l_cont")

    def lit_sel(dst, L, t, isB):
        if isB:
            e(f"s_cmp_eq_u32 s{sMi}, 0")
            e(f"s_cselect_b32 s{dst}, 0x{L[t]:x}, 0x{L[(t+3)%7]:x}") if False else (
                e(f"s_mov_b32 s{dst}, 0x{L[t]:x}"), e(f"s_mov_b32 s{dst+1}, 0x{L[(t+3)%7]:x}"),
                e(f"s_cselect_b32 s{dst}, s{dst}, s{dst+1}"))
        else:
            e(f"s_mov_b32 s{dst}, 0x{L[t]:x}")

    def compute(isB):
        tag = "B" if isB else "A"
        nrt = 5 if isB else 4
        stamp(e)
        sBlk, sXo = sSl, sDl
        if XBYC:
            e(f"v_and_b32 v{vt}, 7, v{vL}")
            e(f"v_xor_b32 v{vt}, v{vt}, v{vG}")
            e(f"v_lshrrev_b32 v{vt+1}, 3, v{vL}")
            e(f"v_mul_u32_u24 v{vt+1}, 1152, v{vt+1}")
            e(f"v_lshl_add_u32 v{vXc}, v{vt}, 4, v{vt+1}")
            e(f"v_xor_b32 v{vXc+1}, 64, v{vXc}")
            e(f"s_lshr_b32 s{sT}, s{sI}, 2")
            e(f"s_and_b32 s{sT+1}, s{sI}, 3")
            e(f"s_lshl_b32 s{sT+1}, s{sT+1}, 1")
            e(f"s_add_u32 s{sBlk}, s{sT}, s{sT+1}")
            e(f"s_sub_u32 s{sT}, s{sBlk}, 9")
            e(f"s_cmp_ge_u32 s{sBlk}, 9")
            e(f"s_cselect_b32 s{sBlk}, s{sT}, s{sBlk}")
            e(f"s_lshl_b32 s{sBlk}, s{sBlk}, 7")
            e(f"s_lshl_b32 s{sT}, s{sW}, 4")
            e(f"s_add_u32 s{sT}, s{sT}, s{sRow0}")
            e(f"s_mul_i32 s{sXo}, s{sT}, 1152")
            e(f"s_sub_u32 s{sT}, s{sRow0}, 16")
            e(f"s_max_i32 s{sT}, s{sT}, 0")
            e(f"s_mul_i32 s{sXh}, s{sT}, 1152")
            e(f"s_cmp_eq_u32 s{sW}, 0")
            e(f"s_cselect_b32 s{sXh}, s{sXh}, 0x{OOB:x}")
            e(f"s_lshl_b32 s{sLx}, s{sW}, 11")
            e(f"s_add_u32 s{sLx}, s{sLx}, {XR0 + 2048}")

        sWo_c = sIt
        if WBYC:
            e(f"s_and_b32 s{sT}, s{sW}, 1")
            e(f"s_lshl_b32 s{sT}, s{sT}, 3")
            e(f"s_mul_i32 s{sT+1}, s{sHg}, 144")
            p, r, c, sg = vt, vt + 1, vt + 2, vt + 3
            e(f"s_sub_u32 s{sT+2}, 64, s{sT}")
            e(f"v_add_u32 v{p}, s{sT+2}, v{vL}")
            e(f"v_mul_u32_u24 v{r}, 2185, v{p}")
            e(f"v_lshrrev_b32 v{r}, 16, v{r}")
            e(f"v_mul_u32_u24 v{c}, 30, v{r}")
            e(f"v_sub_u32 v{c}, v{p}, v{c}")
            e(f"v_mul_u32_u24 v{sg}, 57, v{c}")
            e(f"v_lshrrev_b32 v{sg}, 9, v{sg}")
            e(f"v_mul_u32_u24 v{vt+4}, 9, v{sg}")
            e(f"v_sub_u32 v{vt+4}, v{c}, v{vt+4}")
            e(f"v_mul_u32_u24 v{r}, 3456, v{r}")
            e(f"v_mul_u32_u24 v{sg}, 1152, v{sg}")
            e(f"v_add3_u32 v{r}, v{r}, v{sg}, s{sT+1}")
            e(f"v_lshl_add_u32 v{r}, v{vt+4}, 4, v{r}")
            e(f"v_cmp_gt_u32 vcc, 120, v{p}")
            e(f"v_cmp_gt_u32 s[{sT+2}:{sT+3}], 27, v{c}")
            e(f"v_mov_b32 v{vt+5}, 0x{OOB:x}")
            e(f"s_and_b64 vcc, vcc, s[{sT+2}:{sT+3}]")
            e("s_nop 1")
            e(f"v_cndmask_b32 v{vWc}, v{vt+5}, v{r}, vcc")
            e(f"s_mul_i32 s{sWo_c}, s{sBlk}, {64*3456//128}")
            e(f"s_lshl_b32 s{sT}, s{sW}, 1")
            e(f"s_add_u32 s{sT}, s{sT}, 1")
            e(f"s_mul_i32 s{sT}, s{sT}, 13824")
            e(f"s_add_u32 s{sWo_c}, s{sWo_c}, s{sT}")
            e(f"s_add_u32 s{sWlim}, s{sT}, {576*3456}")
            e(f"s_lshl_b32 s{sHf}, s{sW}, 12")
            e(f"s_add_u32 s{sHf}, s{sHf}, 3072")
        order = []

        def wiss(g):
            if not WBYC or g >= 18:
                return []
            order.append(("W", g))
            return [f"s_add_u32 m0, s{sHf}, {(g % 4) * WSLOT}", "s_nop 0",
                    f"buffer_load_dwordx4 v{vWc}, {sr(sWq,4)}, s{sWo_c} offen lds",
                    f"s_add_u32 s{sWo_c}, s{sWo_c}, {32*3456}", f"s_sub_u32 s{sT}, s{sWo_c}, {576*3456}",
                    f"s_cmp_ge_u32 s{sWo_c}, s{sWlim}", f"s_cselect_b32 s{sWo_c}, s{sT}, s{sWo_c}"]

        def nwait(j):
            last = -1
            for i, (k, idx) in enumerate(order):
                if (k == "W" and idx <= j + 1) or (k == "X" and idx <= j + 2):
                    last = i
            return len(order) - 1 - last

        def xiss(h):
            if not XBYC or h >= 18:
                return []
            hh = h & 1
            slot = ((h >> 1) % 3) * XSLOT
            order.extend([("X", h), ("X", h)])
            L = []
            for i in range(2):
                L.append(f"s_add_u32 m0, s{sLx}, {slot + hh*8192 + i*1024}")
                L.append(f"s_add_u32 s{sT}, s{sBlk}, s{sXo}")
                if hh or i:
                    L.append(f"s_add_u32 s{sT}, s{sT}, {(hh*64 + i*8)*1152}")
                L.append(f"buffer_load_dwordx4 v{vXc+i}, {sr(sX,4)}, s{sT} offen lds")
            if isB:
                lab = e.newlab("k1c")
                L.append(f"s_cmp_lg_u32 s{sW}, 0")
                L.append(f"s_cbranch_scc1 {lab}")
                L.append(f"s_mov_b32 m0, {XR0 + slot + hh*1024}")
                L.append(f"s_add_u32 s{sT}, s{sBlk}, s{sXh}")
                if hh:
                    L.append(f"s_add_u32 s{sT}, s{sT}, {8*1152}")
                L.append(f"buffer_load_dwordx4 v{vXc+hh}, {sr(sX,4)}, s{sT} offen lds")
                L.append(lab + ":")
            if hh:
                L.append(f"s_add_u32 s{sBlk}, s{sBlk}, 128")
                L.append(f"s_cmp_eq_u32 s{sBlk}, 1152")
                L.append(f"s_cselect_b32 s{sBlk}, 0, s{sBlk}")
            return L
        for x in wiss(0) + xiss(0) + xiss(1) + wiss(1) + xiss(2):
            e(x)
        base = vt + 6
        e(f"v_lshlrev_b32 v{base}, 12, v{vG}")
        e(f"v_and_b32 v{vt}, 1, v{vG}")
        e(f"v_lshl_add_u32 v{base}, v{vt}, 7, v{base}")
        e(f"v_mul_u32_u24 v{vt}, 480, v{vR4}")
        e(f"s_mul_i32 s{sT+2}, s{sNi}, 72")
        e(f"v_add3_u32 v{base}, v{base}, v{vt}, s{sT+2}")
        e(f"v_lshlrev_b32 v{vt+1}, 3, v{vC4}")
        for t in range(7):
            lit_sel(sT, LITW, t, isB)
            e(f"v_bfe_u32 v{vt}, s{sT}, v{vt+1}, 8")
            e(f"v_lshl_add_u32 v{vRA+t}, v{vt}, 3, v{base}")
        e(f"v_lshrrev_b32 v{vt}, 1, v{vL15}")
        e(f"v_xor_b32 v{vt}, v{vt}, v{vG}")
        e(f"v_lshlrev_b32 v{vt+1}, 7, v{vL15}")
        e(f"v_lshl_add_u32 v{vt}, v{vt}, 4, v{vt+1}")
        e(f"v_add_u32 v{vRA+9}, {XR0}, v{vt}")
        e(f"v_xor_b32 v{vRA+10}, 64, v{vRA+9}")
        e(f"s_lshl_b32 s{sT}, s{sMi}, 13")
        e(f"s_add_u32 s{sT}, s{sT}, 2048")
        e(f"v_add_u32 v{vRA+7}, s{sT}, v{vRA+9}")
        e(f"v_add_u32 v{vRA+8}, s{sT}, v{vRA+10}")

        def reads(st):
            fb = st & 1
            xo = ((st >> 1) % 3) * XSLOT
            wo = (st % 4) * WSLOT
            L = []
            for rt in range(4):
                L.append(f"ds_read_b128 {vr(FX + fb*20 + rt*4, 4)}, v{vRA+7+fb} offset:{xo + rt*2048}")
            if isB:
                L.append(f"ds_read_b128 {vr(FX + fb*20 + 16, 4)}, v{vRA+9+fb} offset:{xo}")
            for t in range(7):
                for h in range(2):
                    L.append(f"ds_read_b64_tr_b16 {vr(FW + fb*28 + t*4 + h*2, 2)}, v{vRA+t} offset:{wo + h*2048}")
            return L

        if XBYC:
            e(f"s_waitcnt vmcnt({nwait(-1)})")
        e("s_barrier")
        stamp(e)
        for r in reads(0) + wiss(2) + xiss(3) + wiss(3) + xiss(4):
            e(r)
        for st in range(18):
            fb = st & 1
            if XBYC:
                e(f"s_waitcnt vmcnt({nwait(st)}) lgkmcnt(0)")
            else:
                e("s_waitcnt lgkmcnt(0)")
            e("s_barrier")
            M = []
            for t in range(7):
                for rt in range(4):
                    M.append(mf(ACC + (t * 4 + rt) * 4, FW + fb * 28 + t * 4, FX + fb * 20 + rt * 4, "0" if st == 0 else None))
                if isB and t < 3:
                    M.append(mf(ACC + 112 + t * 4, FW + fb * 28 + t * 4, FX + fb * 20 + 16, "0" if st == 0 else None))
            oth = reads(st + 1) if st < 17 else []
            xi = wiss(st + 4) + xiss(st + 5)
            oi = 0
            for i, m in enumerate(M):
                if os.environ.get('K1NOMFMA', '0') == '0':
                    e(m)
                if oi < len(oth):
                    e(oth[oi]); oi += 1
                elif xi:
                    for x in xi:
                        e(x)
                    xi = []
            assert oi == len(oth) and not xi
        stamp(e)
        e("s_waitcnt lgkmcnt(0)")
        e("s_barrier")
        stamp(e)

    def prefetch_wo():
        e(f"s_cmp_lt_u32 s{sI}, 16")
        e(f"s_cselect_b32 s{sPB}, s{sPP+2}, s{sPO}")
        e(f"s_cselect_b32 s{sPB+1}, s{sPP+3}, s{sPO+1}")
        e(f"s_and_b32 s{sTl+1}, s{sI}, 15")
        e(f"s_mul_i32 s{sTl+1}, s{sTl+1}, 324")
        e(f"s_mul_i32 s{sTl}, s{sW}, 41")
        e(f"s_add_u32 s{sTl+1}, s{sTl+1}, s{sTl}")
        e(f"v_min_u32 v{vt}, 40, v{vL}")
        e(f"v_add_u32 v{vt}, s{sTl+1}, v{vt}")
        e(f"v_lshlrev_b32 v{vt}, 7, v{vt}")
        srd(e, sX, sPB, WO_BYTES)
        e(f"buffer_load_dword v{vPF}, v{vt}, {sr(sX,4)}, 0 offen")

    e(f"s_cmp_lt_u32 s{sW}, 4")
    e("s_cbranch_scc1 k1_comp")
    loader()
    e.label("k1_comp")
    e.stn = stn0
    if os.environ.get('CODEPF', '1') != '0':
        e(f"s_and_b32 s{sT}, s{sI}, 7")
        e(f"s_cmp_lg_u32 s{sT}, 0")
        e("s_cbranch_scc1 k1_nopf")
        e(f"s_getpc_b64 {sr(sX,2)}")
        e.label("k1_pc")
        e(f"s_sub_u32 s{sX}, s{sX}, k1_pc - k1_kernel")
        e(f"s_subb_u32 s{sX+1}, s{sX+1}, 0")
        e(f"s_and_b32 s{sX+1}, s{sX+1}, 0xffff")
        e(f"s_mov_b32 s{sX+2}, code_end - k1_kernel")
        e(f"s_mov_b32 s{sX+3}, 0x00020000")
        e(f"v_lshlrev_b32 v{vt}, 7, v0")
        e(f"buffer_load_dword v{vPF}, v{vt}, {sr(sX,4)}, 0 offen")
        e(f"s_mov_b32 s{sT}, 32768")
        e(f"buffer_load_dword v{vPF}, v{vt}, {sr(sX,4)}, s{sT} offen")
        e.label("k1_nopf")
    make_srds()
    e(f"s_cmp_eq_u32 s{sBr}, 1")
    e("s_cbranch_scc1 k1_B")
    compute(False)
    PK = FW
    for u in range(28):
        a = ACC + u * 4
        e(f"v_cvt_pk_bf16_f32 v{PK+2*u}, v{a}, v{a+1}")
        e(f"v_cvt_pk_bf16_f32 v{PK+2*u+1}, v{a+2}, v{a+3}")
    vRowL = vt + 6
    vG8 = vt + 7
    e(f"s_lshl_b32 s{sT+2}, s{sMi}, 6")
    e(f"v_add_u32 v{vt}, s{sT+2}, v{vL15}")
    e(f"v_mul_u32_u24 v{vRowL}, {TA_PITCH}, v{vt}")
    e(f"s_mul_i32 s{sT+3}, s{sNi}, 72")
    e(f"v_add_u32 v{vRowL}, s{sT+3}, v{vRowL}")
    e(f"v_lshlrev_b32 v{vG8}, 3, v{vG}")
    for t in range(5):
        e(f"s_mov_b32 s{sT}, 0x{LITA[t]:x}")
        e(f"v_bfe_u32 v{vt}, s{sT}, v{vG8}, 8")
        e(f"v_lshl_add_u32 v{vt}, v{vt}, 3, v{vRowL}")
        if t == 4:
            e(f"v_cmp_lt_u32 vcc, 1, v{vG}")
            e(f"v_subrev_u32 v{vt+1}, s{sT+3}, v{vt}")
            e("s_nop 0")
            e(f"v_cndmask_b32 v{vt}, v{vt}, v{vt+1}, vcc")
        for rt in range(4):
            e(f"ds_write_b64 v{vt}, {vr(PK + (t*4+rt)*2, 2)} offset:{rt*16*TA_PITCH}")
    e(f"s_lshl_b32 s{sT}, s{sRb}, 3")
    e(f"s_lshl_b32 s{sT+1}, s{sMi}, 2")
    e(f"s_add_u32 s{sT}, s{sT}, s{sT+1}")
    e(f"s_mul_i32 s{sT}, s{sT}, 72")
    e(f"s_mul_i32 s{sT+1}, s{sHg}, 9")
    e(f"s_add_u32 s{sT}, s{sT}, s{sT+1}")
    e(f"s_lshl_b32 s{sT}, s{sT}, 8")
    e(f"s_add_u32 s{sT}, s{sT}, {WS_Q}")
    e(f"s_mul_i32 s{sT+2}, s{sNi}, 9")
    for t in range(4, 7):
        e(f"s_mov_b32 s{sT+1}, 0x{LITQ[t]:x}")
        e(f"v_bfe_u32 v{vt}, s{sT+1}, v{vG8}, 8")
        e(f"v_cmp_ne_u32 vcc, 255, v{vt}")
        e(f"v_add_u32 v{vt}, s{sT+2}, v{vt}")
        e(f"v_lshrrev_b32 v{vt+1}, 1, v{vt}")
        e(f"v_and_b32 v{vt}, 1, v{vt}")
        e(f"v_lshlrev_b32 v{vt+1}, 8, v{vt+1}")
        e(f"v_lshl_add_u32 v{vt+1}, v{vt}, 3, v{vt+1}")
        e(f"v_lshl_add_u32 v{vt+1}, v{vL15}, 4, v{vt+1}")
        e(f"v_mov_b32 v{vt+2}, 0x{OOB:x}")
        e(f"v_cndmask_b32 v{vt+3+(t-4)}, v{vt+2}, v{vt+1}, vcc")
    for rt in range(4):
        e(f"s_add_u32 s{sT+1}, s{sT}, {rt*18432}")
        for t in range(4, 7):
            e(f"buffer_store_dwordx2 {vr(PK + (t*4+rt)*2, 2)}, v{vt+3+(t-4)}, {sr(sWs,4)}, s{sT+1} offen")
    e.label("k1_A_epi")
    prefetch_wo()
    e(f"s_cmp_lg_u32 s{sRb}, 0")
    e("s_cbranch_scc1 k1_A_nodump")
    e(f"s_cmp_lg_u32 s{sHg}, 0")
    e("s_cbranch_scc1 k1_A_nodump")
    e(f"v_lshlrev_b32 v{vt+4}, 3, v0")
    e(f"v_mov_b32 v{vt+2}, 0")
    e(f"v_mov_b32 v{vt+3}, 0")
    e(f"s_mov_b32 s{sTl}, {WS_FL}")
    e(f"buffer_store_dwordx2 {vr(vt+2,2)}, v{vt+4}, {sr(sWs,4)}, s{sTl} offen")
    e.label("k1_A_nodump")
    e("s_waitcnt lgkmcnt(0)")
    e("s_barrier")
    stamp(e)
    XR = ACC + 64
    BK = FX
    AW = ACC
    P = FX + 12
    e(f"s_lshl_b32 s{sT}, s{sW}, 4")
    e(f"v_add_u32 v{vt}, s{sT}, v{vL15}")
    e(f"v_mul_u32_u24 v{vt+1}, {TA_PITCH}, v{vt}")
    e(f"v_lshl_add_u32 v{vt+1}, v{vG}, 4, v{vt+1}")
    for st in range(3):
        e(f"ds_read_b128 {vr(BK+st*4,4)}, v{vt+1} offset:{st*64}")
    e(f"v_mul_u32_u24 v{vt+2}, {WB_PITCH}, v{vL15}")
    e(f"v_lshl_add_u32 v{vt+2}, v{vG}, 4, v{vt+2}")
    e(f"v_add_u32 v{vt+3}, {K1_WB0}, v{vt+2}")
    for cf in range(5):
        for st in range(3):
            e(f"ds_read_b128 {vr(AW+(cf*3+st)*4,4)}, v{vt+3} offset:{cf*16*WB_PITCH + st*64}")
    sL = e.s(2)
    e(f"s_mov_b32 s{sL}, 0x{LOG2E:x}")
    e(f"s_mov_b32 s{sL+1}, 0x{LOG2E:x}")
    for cf in range(5):
        e(f"s_waitcnt lgkmcnt({12 - 3*cf})")
        for st in range(3):
            mfma(e, P + cf * 4, AW + (cf * 3 + st) * 4, BK + st * 4, "0" if st == 0 else None)
    e(f"s_lshl_b32 s{sTl}, s{sRb}, 3")
    e(f"s_add_u32 s{sTl}, s{sTl}, s{sW}")
    e(f"s_cmp_lg_u32 s{sTl}, 7")
    e("s_cbranch_scc1 k1_A_nofd")
    e(f"v_lshlrev_b32 v{vt+4}, 4, v{vL}")
    e(f"s_mul_i32 s{sTl}, s{sHg}, 15360")
    e(f"s_add_u32 s{sTl}, s{sTl}, {WS_WB}")
    for f in range(15):
        if f and f % 4 == 0:
            e(f"s_add_u32 s{sTl}, s{sTl}, 4096")
        e(f"buffer_store_dwordx4 {vr(AW+f*4,4)}, v{vt+4}, {sr(sWs,4)}, s{sTl} offen offset:{(f%4)*1024}")
    e.label("k1_A_nofd")
    e("s_nop 7")
    E1 = XR
    E2 = XR + 18
    PH = XR + 36
    softmax_pm(e, P, E1, E2, PH, XR + 56 - 4 + 4, sL) if False else softmax_pm(e, P, E1, E2, PH, FW, sL)
    e(f"v_mul_u32_u24 v{vt+1}, {PHI_PITCH}, v{vt}")
    e(f"v_mul_u32_u24 v{vt+2}, 80, v{vG}")
    e(f"v_add_u32 v{vt+1}, v{vt+1}, v{vt+2}")
    for i in range(4):
        e(f"ds_write_b128 v{vt+1}, {vr(PH+i*4,4)} offset:{PHI0 + i*16}")
    e(f"ds_write_b64 v{vt+1}, {vr(PH+16,2)} offset:{PHI0 + 64}")
    sHh, sXx = sT + 2, sT + 3
    e(f"s_lshr_b32 s{sHh}, s{sW}, 1")
    e(f"s_and_b32 s{sXx}, s{sW}, 1")
    e(f"v_lshl_add_u32 v{vt}, v{vG}, 3, v{vR4}")
    e(f"v_mul_u32_u24 v{vt+1}, {PHI_PITCH}, v{vt}")
    e(f"v_lshl_add_u32 v{vt+1}, v{vC4}, 3, v{vt+1}")
    e(f"s_mul_i32 s{sT}, s{sHh}, 80")
    e(f"s_add_u32 s{sT}, s{sT}, {PHI0}")
    e(f"v_add_u32 v{vt+1}, s{sT}, v{vt+1}")
    e(f"v_mul_u32_u24 v{vt+2}, {TA_PITCH}, v{vt}")
    e(f"s_lshr_b32 s{sT}, s{sHh}, 1")
    e(f"s_mul_i32 s{sT}, s{sT}, 72")
    e(f"s_add_u32 s{sT}, s{sT}, 144")
    e(f"s_and_b32 s{sT+1}, s{sHh}, 1")
    e(f"s_mul_i32 s{sT+1}, s{sT+1}, 40")
    e(f"s_cmp_eq_u32 s{sXx}, 0")
    e(f"s_cselect_b32 s{sT+1}, s{sT+1}, 32")
    e(f"s_add_u32 s{sT}, s{sT}, s{sT+1}")
    e(f"v_lshl_add_u32 v{vt+3}, v{vC4}, 3, v{vt+2}")
    e(f"v_add_u32 v{vt+3}, s{sT}, v{vt+3}")
    sMask = e.s(2)
    e(f"v_cmp_lt_u32 {sr(sMask,2)}, 0, v{vC4}")
    e(f"s_cmp_eq_u32 s{sXx}, 0")
    e(f"s_cselect_b64 {sr(sMask,2)}, 0, {sr(sMask,2)}")
    e(f"v_mov_b32 v{vt+4}, {K1_ONES}")
    BA = FW + 8
    for ks in range(4):
        for h in range(2):
            off = (ks * 32 + h * 4)
            e(f"v_add_u32 v{BA+ks*2+h}, {off*TA_PITCH}, v{vt+3}")
            e(f"v_cndmask_b32 v{BA+ks*2+h}, v{BA+ks*2+h}, v{vt+4}, {sr(sMask,2)}")
    e("s_waitcnt lgkmcnt(0)")
    e("s_barrier")
    stamp(e)
    AF = ACC
    BF = ACC + 48
    KV = FX
    for ks in range(4):
        for h in range(2):
            off = (ks * 32 + h * 4)
            e(f"ds_read_b64_tr_b16 {vr(BF+ks*4+h*2,2)}, v{BA+ks*2+h}")
            for ft in range(3):
                e(f"ds_read_b64_tr_b16 {vr(AF+(ks*3+ft)*4+h*2,2)}, v{vt+1} offset:{off*PHI_PITCH + ft*32}")
    e(f"s_and_b32 s{sT+1}, s{sHh}, 1")
    e(f"s_lshl_b32 s{sT}, s{sT+1}, 1")
    e(f"v_add_u32 v{vt}, s{sT}, v{vL15}")
    e(f"v_subrev_u32 v{vt+1}, s{sT}, v{vL15}")
    e(f"s_xor_b32 s{sT+1}, s{sT+1}, 1")
    e(f"s_lshl_b32 s{sT+1}, s{sT+1}, 4")
    e(f"v_cmp_gt_u32 vcc, 2, v{vt+1}")
    e(f"v_add_u32 v{vt+1}, s{sT+1}, v{vt+1}")
    e(f"v_mov_b32 v{vt+2}, 0x20000")
    e("s_nop 0")
    e(f"v_cndmask_b32 v{vt+1}, v{vt+2}, v{vt+1}, vcc")
    e(f"v_cmp_eq_u32 vcc, 4, v{vL15}")
    e("s_nop 1")
    e(f"v_cndmask_b32 v{vt+1}, v{vt+1}, 18, vcc")
    e(f"s_cmp_eq_u32 s{sXx}, 0")
    e(f"s_cselect_b64 vcc, -1, 0")
    e("s_nop 1")
    e(f"v_cndmask_b32 v{vt}, v{vt+1}, v{vt}, vcc")
    e(f"v_mul_u32_u24 v{vt}, 72, v{vt}")
    e(f"v_lshl_add_u32 v{vt}, v{vG}, 3, v{vt}")
    e(f"s_lshl_b32 s{sT}, s{sRb}, 5")
    e(f"s_lshl_b32 s{sT+1}, s{sHg}, 2")
    e(f"s_add_u32 s{sT}, s{sT}, s{sT+1}")
    e(f"s_add_u32 s{sT}, s{sT}, s{sHh}")
    e(f"s_mul_i32 s{sT}, s{sT}, 1368")
    e(f"s_add_u32 s{sT}, s{sT}, {WS_P}")
    e(f"v_cmp_eq_u32 vcc, 0, v{vG}")
    e(f"v_mov_b32 v{vt+2}, 0x{OOB:x}")
    e("s_nop 1")
    e(f"v_cndmask_b32 v{vt+1}, v{vt+2}, v{vt}, vcc")
    for ks in range(4):
        e(f"s_waitcnt lgkmcnt({min(15, 24 - 8*ks)})" if ks < 3 else "s_waitcnt lgkmcnt(0)")
        for ft in range(3):
            mfma(e, KV + ft * 4, AF + (ks * 3 + ft) * 4, BF + ks * 4, "0" if ks == 0 else None)
    e("s_nop 7")
    e("s_nop 1")
    for ft in range(3):
        e(f"v_cvt_pk_bf16_f32 v{KV+12+2*ft}, v{KV+4*ft}, v{KV+4*ft+1}")
        e(f"v_cvt_pk_bf16_f32 v{KV+13+2*ft}, v{KV+4*ft+2}, v{KV+4*ft+3}")
    e(f"buffer_store_dwordx2 {vr(KV+12,2)}, v{vt}, {sr(sWs,4)}, s{sT} offen")
    e(f"buffer_store_dwordx2 {vr(KV+14,2)}, v{vt}, {sr(sWs,4)}, s{sT} offen offset:32")
    e(f"buffer_store_dwordx2 {vr(KV+16,2)}, v{vt+1}, {sr(sWs,4)}, s{sT} offen offset:64")
    stamp_dump(e, sWs, 0, vt, sT)
    e("s_endpgm")
    e.label("k1_B")
    e.stn = stn0
    compute(True)
    PK = FW
    for u in range(31):
        a = ACC + u * 4
        e(f"v_cvt_pk_bf16_f32 v{PK+2*u}, v{a}, v{a+1}")
        e(f"v_cvt_pk_bf16_f32 v{PK+2*u+1}, v{a+2}, v{a+3}")
    vRowL = vt + 6
    vG8 = vt + 7
    e(f"v_mul_u32_u24 v{vRowL}, {TB_PITCH}, v{vL15}")
    e(f"s_mul_i32 s{sT+3}, s{sNi}, 80")
    e(f"v_add_u32 v{vRowL}, s{sT+3}, v{vRowL}")
    e(f"v_lshlrev_b32 v{vG8}, 3, v{vG}")
    sMo = sT + 2
    e(f"s_lshl_b32 s{sMo}, s{sMi}, 6")
    e(f"s_add_u32 s{sMo}, s{sMo}, 16")
    e(f"s_mul_i32 s{sMo}, s{sMo}, {TB_PITCH}")
    for t in range(7):
        lit_sel(sT, LITB, t, True)
        e(f"v_bfe_u32 v{vt}, s{sT}, v{vG8}, 8")
        e(f"v_lshl_add_u32 v{vt}, v{vt}, 3, v{vRowL}")
        e(f"v_add_u32 v{vt+1}, s{sMo}, v{vt}")
        for rt in range(4):
            e(f"ds_write_b64 v{vt+1}, {vr(PK + (t*4+rt)*2, 2)} offset:{rt*16*TB_PITCH}")
        if t < 3:
            e(f"ds_write_b64 v{vt}, {vr(PK + (28+t)*2, 2)}")
    e.label("k1_B_epi")
    prefetch_wo()
    base = ACC
    Q = base
    KK = base + 10
    VV = base + 90
    LG = base + 170
    assert LG + 8 <= vtop
    O = KK
    AL = KK + 20
    AH = KK + 28
    vM, vR, vS = vt + 4, vt + 5, vt + 6
    e(f"s_and_b32 s{sT}, s{sW}, 3")
    e(f"s_lshr_b32 s{sT+1}, s{sW}, 2")
    e(f"s_lshl_b32 s{sT+1}, s{sT+1}, 6")
    e(f"v_add_u32 v{vS}, s{sT+1}, v{vL}")
    e(f"v_add_u32 v{vt}, 2, v{vS}")
    e(f"v_mul_u32_u24 v{vt}, {TB_PITCH}, v{vt}")
    e(f"s_lshr_b32 s{sT+2}, s{sT}, 1")
    e(f"s_mul_i32 s{sT+2}, s{sT+2}, 80")
    e(f"s_and_b32 s{sT+3}, s{sT}, 1")
    e(f"s_mul_i32 s{sTl}, s{sT+3}, 48")
    e(f"s_add_u32 s{sTl}, s{sTl}, s{sT+2}")
    e(f"v_add_u32 v{vM}, s{sTl}, v{vt}")
    e(f"s_lshl_b32 s{sTl}, s{sT+3}, 2")
    e(f"s_add_u32 s{sTl}, s{sTl}, s{sT+2}")
    e(f"s_add_u32 s{sTl}, s{sTl}, 32")
    e(f"v_add_u32 v{vR}, s{sTl}, v{vt}")
    vO = vt + 7
    e(f"v_mul_u32_u24 v{vO}, 144, v{vS}")
    e(f"s_mul_i32 s{sTl}, s{sT}, 36")
    e(f"s_add_u32 s{sTl}, s{sTl}, {OB0}")
    e(f"v_add_u32 v{vO}, s{sTl}, v{vO}")
    e(f"v_add_u32 v{vS}, s{sRow0}, v{vS}")
    sMk = e.s(16, 2)
    for w in range(1, 8):
        e(f"v_cmp_le_u32 {sr(sMk+2*w,2)}, {2*w}, v{vS}")
    e("s_waitcnt lgkmcnt(0)")
    e("s_barrier")
    stamp(e)

    def rdseg(dst, typ, w):
        off = (14 - 2 * w) * TB_PITCH + typ * 160
        e(f"ds_read_b128 {vr(dst,4)}, v{vM} offset:{off}")
        e(f"ds_read_b128 {vr(dst+4,4)}, v{vM} offset:{off+16}")
        e(f"ds_read_b32 v{dst+8}, v{vR} offset:{off}")

    rdseg(Q, 0, 0)
    for w in range(8):
        rdseg(KK + w * 10, 1, w)
    for w in range(8):
        e(f"v_mov_b32 v{LG+w}, 0")
    e("s_waitcnt lgkmcnt(12)")
    for w in range(4):
        rdseg(VV + w * 10, 2, w)
    for p in range(9):
        for w in range(4):
            e(f"v_dot2c_f32_bf16 v{LG+w}, v{Q+p}, v{KK+w*10+p}")
    e("s_waitcnt lgkmcnt(12)")
    for w in range(4, 8):
        rdseg(VV + w * 10, 2, w)
    for p in range(9):
        for w in range(4, 8):
            e(f"v_dot2c_f32_bf16 v{LG+w}, v{Q+p}, v{KK+w*10+p}")
    e(f"v_mov_b32 v{vt}, 0xf149f2ca")
    e("s_nop 2")
    for w in range(1, 8):
        e(f"v_cndmask_b32 v{LG+w}, v{vt}, v{LG+w}, {sr(sMk+2*w,2)}")
    e(f"v_max3_f32 v{vt}, v{LG}, v{LG+1}, v{LG+2}")
    e(f"v_max3_f32 v{vt}, v{vt}, v{LG+3}, v{LG+4}")
    e(f"v_max3_f32 v{vt}, v{vt}, v{LG+5}, v{LG+6}")
    e(f"v_max_f32 v{vt}, v{vt}, v{LG+7}")
    import struct, math
    cval = struct.unpack("<I", struct.pack("<f", (18 ** -0.5) * math.log2(math.e)))[0]
    e(f"s_mov_b32 s{sT+2}, 0x{cval:x}")
    e(f"v_mul_f32 v{vt}, s{sT+2}, v{vt}")
    for w in range(8):
        e(f"v_fma_f32 v{LG+w}, v{LG+w}, s{sT+2}, -v{vt}")
    for w in range(8):
        e(f"v_exp_f32 v{LG+w}, v{LG+w}")
    e("s_nop 0")
    e(f"v_add_f32 v{vt}, v{LG}, v{LG+1}")
    for w in range(2, 8):
        e(f"v_add_f32 v{vt}, v{vt}, v{LG+w}")
    e(f"v_rcp_f32 v{vt}, v{vt}")
    for i in range(18):
        e(f"v_mov_b32 v{O+i}, 0")
    for w in range(8):
        e(f"v_mul_f32 v{LG+w}, v{LG+w}, v{vt}")
    for w in range(8):
        e(f"v_cvt_pk_bf16_f32 v{AL+w}, v{LG+w}, 0")
        e(f"v_cvt_pk_bf16_f32 v{AH+w}, 0, v{LG+w}")
    e("s_waitcnt lgkmcnt(0)")
    for w in range(8):
        for p in range(9):
            e(f"v_dot2c_f32_bf16 v{O+2*p}, v{AL+w}, v{VV+w*10+p}")
            e(f"v_dot2c_f32_bf16 v{O+2*p+1}, v{AH+w}, v{VV+w*10+p}")
    e("s_nop 2")
    OP = Q
    for p in range(9):
        e(f"v_cvt_pk_bf16_f32 v{OP+p}, v{O+2*p}, v{O+2*p+1}")
    e(f"s_lshl_b32 s{sTl}, s{sT+3}, 2")
    e(f"v_add_u32 v{vt}, s{sTl}, v{vO}")
    for i in range(4):
        e(f"ds_write_b64 v{vt}, {vr(OP+2*i,2)} offset:{8*i}")
    e(f"s_xor_b32 s{sT+3}, s{sT+3}, 1")
    e(f"s_lshl_b32 s{sT+3}, s{sT+3}, 5")
    e(f"v_add_u32 v{vt+1}, s{sT+3}, v{vO}")
    e(f"ds_write_b32 v{vt+1}, v{OP+8}")
    e(f"s_lshl_b32 s{sT}, s{sW}, 4")
    e(f"v_add_u32 v{vt}, s{sT}, v{vL15}")
    e(f"v_mul_u32_u24 v{vt}, 144, v{vt}")
    e(f"v_lshl_add_u32 v{vt}, v{vG}, 4, v{vt}")
    e(f"v_add_u32 v{vt}, {OB0}, v{vt}")
    e(f"v_lshlrev_b32 v{vt+1}, 4, v{vL}")
    e(f"v_cmp_eq_u32 vcc, 0, v{vG}")
    e(f"v_mov_b32 v{vt+2}, 0x{OOB:x}")
    e(f"s_lshl_b32 s{sT}, s{sRb}, 3")
    e(f"s_add_u32 s{sT}, s{sT}, s{sW}")
    e(f"v_cndmask_b32 v{vt+2}, v{vt+2}, v{vt+1}, vcc")
    e(f"s_mul_i32 s{sT}, s{sT}, 72")
    e(f"s_mul_i32 s{sT+1}, s{sHg}, 9")
    e(f"s_add_u32 s{sT}, s{sT}, s{sT+1}")
    e(f"s_lshl_b32 s{sT}, s{sT}, 8")
    e(f"s_add_u32 s{sT}, s{sT}, {WS_OB}")
    e("s_waitcnt lgkmcnt(0)")
    e("s_barrier")
    CO = KK
    for i in range(3):
        e(f"ds_read_b128 {vr(CO+4*i,4)}, v{vt} offset:{64*i}")
    for i in range(3):
        e(f"s_waitcnt lgkmcnt({2-i})")
        e(f"buffer_store_dwordx4 {vr(CO+4*i,4)}, v{vt+1 if i < 2 else vt+2}, {sr(sWs,4)}, s{sT} offen offset:{1024*i}")
    stamp_dump(e, sWs, 0, vt, sT)
    e("s_endpgm")
    e.label(Lend)
    e("s_endpgm")
    return e.vmax, e.smax


GEMM_LDS = 576 * 128


def gemm_pre(e, NW, sRbk, sNb, sW, vL, vL15, vG, vR4, vC4, vt, sT):
    g = {}
    sRt, sRot = e.s(), e.s()
    e(f"s_mul_i32 s{sRt}, s{sRbk}, {NW}")
    e(f"s_add_u32 s{sRt}, s{sRt}, s{sW}")
    e(f"s_lshl_b32 s{sRot}, s{sRbk}, 1")
    e(f"s_add_u32 s{sRot}, s{sRot}, s{sNb}")
    e(f"s_mul_i32 s{sT}, s{sRot}, 7282")
    e(f"s_lshr_b32 s{sT}, s{sT}, 16")
    e(f"s_mul_i32 s{sT}, s{sT}, 9")
    e(f"s_sub_u32 s{sRot}, s{sRot}, s{sT}")
    vX = e.v()
    e(f"v_lshlrev_b32 v{vX}, 4, v{vL}")
    vD = e.v(2)
    e(f"v_and_b32 v{vt}, 1, v{vG}")
    e(f"v_lshlrev_b32 v{vt}, 1, v{vt}")
    e(f"v_and_b32 v{vt+1}, 7, v{vL}")
    e(f"v_xor_b32 v{vt}, v{vt}, v{vt+1}")
    e(f"v_lshrrev_b32 v{vt+1}, 3, v{vL}")
    e(f"v_mul_u32_u24 v{vt+1}, 1152, v{vt+1}")
    e(f"v_lshl_add_u32 v{vD}, v{vt}, 4, v{vt+1}")
    e(f"v_xor_b32 v{vD+1}, 64, v{vD}")
    g.update(sRt=sRt, sRot=sRot, vX=vX, vD=vD)
    return g


W2OFF = GEMM_LDS
STG0 = 2 * GEMM_LDS
K23_LDS = STG0 + 8 * 2048


def out_stage(e, ACC, PKd, sW, sRt, sOcol, sOut, vL, vL15, vG, vt, sT):
    for t in range(4):
        a = ACC + t * 4
        d = PKd + t * 2
        e(f"v_cvt_pk_bf16_f32 v{d}, v{a}, v{a+1}")
        e(f"v_cvt_pk_bf16_f32 v{d+1}, v{a+2}, v{a+3}")
    e(f"s_lshl_b32 s{sT}, s{sW}, 11")
    e(f"s_add_u32 s{sT}, s{sT}, {STG0}")
    e(f"v_lshrrev_b32 v{vt}, 1, v{vG}")
    e(f"v_and_b32 v{vt+1}, 7, v{vL15}")
    e(f"v_xor_b32 v{vt}, v{vt}, v{vt+1}")
    e(f"v_lshlrev_b32 v{vt}, 4, v{vt}")
    e(f"v_lshl_add_u32 v{vt}, v{vL15}, 7, v{vt}")
    e(f"v_and_b32 v{vt+1}, 1, v{vG}")
    e(f"v_lshl_add_u32 v{vt}, v{vt+1}, 3, v{vt}")
    e(f"v_add_u32 v{vt}, s{sT}, v{vt}")
    for t in range(4):
        if t:
            e(f"v_xor_b32 v{vt+1}, {t*32}, v{vt}")
        e(f"ds_write_b64 v{vt+1 if t else vt}, {vr(PKd+t*2,2)}")
    e(f"v_lshrrev_b32 v{vt+2}, 3, v{vL}")
    e(f"v_and_b32 v{vt+3}, 7, v{vL}")
    e(f"v_xor_b32 v{vt+4}, v{vt+3}, v{vt+2}")
    e(f"v_lshlrev_b32 v{vt+4}, 4, v{vt+4}")
    e(f"v_lshl_add_u32 v{vt+4}, v{vt+2}, 7, v{vt+4}")
    e(f"v_add_u32 v{vt+4}, s{sT}, v{vt+4}")
    e(f"s_lshl_b32 s{sT+1}, s{sRt}, 4")
    e(f"v_add_u32 v{vt+2}, s{sT+1}, v{vt+2}")
    e(f"v_mul_u32_u24 v{vt+2}, 2304, v{vt+2}")
    e(f"v_lshl_add_u32 v{vt+2}, v{vt+3}, 4, v{vt+2}")
    e(f"s_add_u32 s{sT+1}, s{sOcol}, {8*2304}")
    e("s_waitcnt lgkmcnt(0)")
    e(f"ds_read_b128 {vr(PKd+8,4)}, v{vt+4}")
    e(f"ds_read_b128 {vr(PKd+12,4)}, v{vt+4} offset:1024")
    e("s_waitcnt lgkmcnt(1)")
    e(f"buffer_store_dwordx4 {vr(PKd+8,4)}, v{vt+2}, {sr(sOut,4)}, s{sOcol} offen")
    e("s_waitcnt lgkmcnt(0)")
    e(f"buffer_store_dwordx4 {vr(PKd+12,4)}, v{vt+2}, {sr(sOut,4)}, s{sT+1} offen")


def rd_addr(e, vRA, base, vG, vR4, vC4, vt):
    e(f"v_lshl_add_u32 v{vt}, v{vG}, 3, v{vR4}")
    e(f"v_lshlrev_b32 v{vt}, 7, v{vt}")
    e(f"v_lshl_add_u32 v{vt}, v{vC4}, 3, v{vt}")
    e(f"v_lshrrev_b32 v{vt+1}, 1, v{vR4}")
    e(f"v_and_b32 v{vt+2}, 1, v{vG}")
    e(f"v_lshl_add_u32 v{vt+1}, v{vt+2}, 1, v{vt+1}")
    e(f"v_lshl_add_u32 v{vRA}, v{vt+1}, 5, v{vt}")
    if base:
        e(f"v_add_u32 v{vRA}, {base}, v{vRA}")
    for t in range(1, 4):
        e(f"v_xor_b32 v{vRA+t}, {t<<5}, v{vRA}")


def grp_src(e, sG, sRot, sCol, sT):
    e(f"s_lshr_b32 s{sT}, s{sG}, 2")
    e(f"s_add_u32 s{sT}, s{sT}, s{sRot}")
    e(f"s_sub_u32 s{sT+1}, s{sT}, 9")
    e(f"s_cmp_ge_u32 s{sT}, 9")
    e(f"s_cselect_b32 s{sT}, s{sT+1}, s{sT}")
    e(f"s_lshl_b32 s{sT}, s{sT}, 2")
    e(f"s_and_b32 s{sT+1}, s{sG}, 3")
    e(f"s_add_u32 s{sT}, s{sT}, s{sT+1}")
    e(f"s_mul_i32 s{sT}, s{sT}, 18432")
    e(f"s_add_u32 s{sT}, s{sT}, s{sCol}")


def gemm_body(e, g, NW, sCol, sXoff, sOcol, sW, sXs, sWo, sOut, vL, vL15, vG, vR4, vC4, vt, sT, w2issue):
    sRt, sRot, vX, vD = g["sRt"], g["sRot"], g["vX"], g["vD"]
    nct = 4
    nph = (36 + NW - 1) // NW
    kslist = []
    ksdone = 0
    for ph in range(nph):
        ksnew = min(36, (ph + 1) * NW) // 2
        kslist.append(list(range(ksdone, ksnew)))
        ksdone = ksnew
    mxk = max(len(k) for k in kslist)
    cnt = [2 + len(k) for k in kslist] + [0, 0, 0, 0]
    XR = e.v(72, 4)
    ACC = e.v(4 * nct, 4)
    F = e.v(mxk * nct * 4, 4)
    vRA = e.v(4)
    sM0, sG, sXb, sXk, sXc = e.s(), e.s(), e.s(), e.s(), e.s()
    e(f"s_lshl_b32 s{sM0}, s{sW}, 11")
    e(f"s_mov_b32 s{sG}, s{sW}")
    e(f"s_mul_i32 s{sXb}, s{sRt}, 18432")
    e(f"s_add_u32 s{sXb}, s{sXb}, s{sXoff}")
    e(f"s_lshl_b32 s{sXk}, s{sRot}, 11")

    def issue(ph):
        if ph >= nph:
            return
        for ks in kslist[ph]:
            if ks % 2 == 0:
                e(f"s_add_u32 s{sXc}, s{sXb}, s{sXk}")
            e(f"buffer_load_dwordx4 {vr(XR+ks*4,4)}, v{vX}, {sr(sXs,4)}, s{sXc} offen offset:{(ks%2)*1024}")
            if ks % 2 == 1:
                e(f"s_add_u32 s{sXk}, s{sXk}, 2048")
                e(f"s_cmp_eq_u32 s{sXk}, 18432")
                e(f"s_cselect_b32 s{sXk}, 0, s{sXk}")
        grp_src(e, sG, sRot, sCol, sT)
        if (ph + 1) * NW > 36:
            e(f"s_cmp_lt_u32 s{sG}, 36")
            e(f"s_cselect_b32 s{sT}, s{sT}, 0x{OOB:x}")
            e(f"s_cselect_b32 s{sT+1}, s{sM0}, {STG0 - ph*NW*2048}")
        else:
            e(f"s_mov_b32 s{sT+1}, s{sM0}")
        e(f"s_add_u32 m0, s{sT+1}, {ph*NW*2048}")
        e(f"s_add_u32 s{sG}, s{sG}, {NW}")
        e(f"buffer_load_dwordx4 v{vD}, {sr(sWo,4)}, s{sT} offen lds")
        e(f"s_add_u32 m0, s{sT+1}, {ph*NW*2048 + 1024}")
        e(f"s_add_u32 s{sT}, s{sT}, {8*1152}")
        e(f"buffer_load_dwordx4 v{vD+1}, {sr(sWo,4)}, s{sT} offen lds")

    DEPTH = int(os.environ.get('GDEPTH', '2'))
    for ph in range(DEPTH):
        issue(ph)
    stamp(e)
    rd_addr(e, vRA, 0, vG, vR4, vC4, vt)
    for i in range(4 * nct):
        e(f"v_mov_b32 v{ACC+i}, 0")
    rebased = False
    for ph in range(nph):
        rem = sum(cnt[ph + 1: min(nph, ph + DEPTH)])
        e(f"s_waitcnt vmcnt({rem})")
        e("s_barrier")
        if ph in (0, nph - 1): stamp(e)
        kss = kslist[ph]
        for i, ks in enumerate(kss):
            if ks >= 12 and not rebased:
                for t in range(4):
                    e(f"v_add_u32 v{vRA+t}, {12*4096}, v{vRA+t}")
                rebased = True
            o = (ks - 12 if ks >= 12 else ks) * 4096
            for t in range(nct):
                for h in range(2):
                    e(f"ds_read_b64_tr_b16 {vr(F+(i*nct+t)*4+h*2,2)}, v{vRA+t} offset:{o + h*512}")
        issue(ph + DEPTH)
        if ph == nph - 1:
            w2issue()
        tot = len(kss) * nct * 2
        for i, ks in enumerate(kss):
            for t in range(nct):
                left = tot - 2 * (i * nct + t + 1)
                if t % 2 == 0:
                    e(f"s_waitcnt lgkmcnt({min(15, left - 2)})")
                mfma(e, ACC + t * 4, F + (i * nct + t) * 4, XR + ks * 4)
    e("s_nop 7")
    out_stage(e, ACC, F, sW, sRt, sOcol, sOut, vL, vL15, vG, vt, sT)


def common_ids(e):
    vTid = e.v()
    vL, vL15, vG, vR4, vC4 = [e.v() for _ in range(5)]
    vt = e.v(8, 2)
    sW = e.s()
    e(f"v_lshrrev_b32 v{vt}, 6, v0")
    e(f"v_and_b32 v{vL}, 63, v0")
    e(f"v_readfirstlane_b32 s{sW}, v{vt}")
    e(f"v_and_b32 v{vL15}, 15, v0")
    e(f"v_lshrrev_b32 v{vG}, 4, v{vL}")
    e(f"v_bfe_u32 v{vR4}, v0, 2, 2")
    e(f"v_and_b32 v{vC4}, 3, v0")
    return vL, vL15, vG, vR4, vC4, vt, sW


def div9(e, sQ, sR, sU):
    e(f"s_mul_i32 s{sQ}, s{sU}, 7282")
    e(f"s_lshr_b32 s{sQ}, s{sQ}, 16")
    e(f"s_mul_i32 s{sR}, s{sQ}, 9")
    e(f"s_sub_u32 s{sR}, s{sU}, s{sR}")


K2_GRID = 256
P2_NW = 6


K2_KV0 = W2OFF + 27 * 2048
K2_Z0 = K2_KV0 + 6400
K2_ZEND = K2_Z0 + 1536
K2_DUMP = K2_ZEND
K2_O0 = K2_ZEND + 64


XRED = int(os.environ.get('XRED', '8'))
W2E = int(os.environ.get('W2E', '0'))


def gen_k2(e):
    e.reset()
    e.s(3)
    e.label("k2_kernel")
    e(f"s_cmp_ge_u32 s2, {K2_GRID}")
    e("s_cbranch_scc1 k2_end")
    stamp_init(e); stamp(e)
    sPA = e.s(2)
    sPB = e.s(4)
    sPW = e.s(2)
    e(f"s_load_dwordx2 {sr(sPA,2)}, s[0:1], 24")
    e(f"s_load_dwordx4 {sr(sPB,4)}, s[0:1], 48")
    e(f"s_load_dwordx2 {sr(sPW,2)}, s[0:1], 72")
    sT = e.s(4)
    sJ, sI = e.s(), e.s()
    e(f"s_and_b32 s{sJ}, s2, 7")
    e(f"s_lshr_b32 s{sI}, s2, 3")
    vL, vL15, vG, vR4, vC4, vt, sW = common_ids(e)
    sXs, sWo, sOut, sW2 = e.s(4), e.s(4), e.s(4), e.s(4)
    sHg, sRb = sJ, sI
    sU, sRbk2, sNb2 = e.s(), e.s(), e.s()
    e(f"s_mul_i32 s{sU}, s{sJ}, 28")
    e(f"s_add_u32 s{sU}, s{sU}, s{sI}")
    e(f"s_cmp_lt_u32 s{sI}, 28")
    e(f"s_cselect_b32 s{sU}, s{sU}, 255")
    e(f"s_mul_i32 s{sRbk2}, s{sU}, 6554")
    e(f"s_lshr_b32 s{sRbk2}, s{sRbk2}, 16")
    e(f"s_mul_i32 s{sNb2}, s{sRbk2}, 10")
    e(f"s_sub_u32 s{sNb2}, s{sU}, s{sNb2}")
    g2 = gemm_pre(e, P2_NW, sRbk2, sNb2, sW, vL, vL15, vG, vR4, vC4, vt, sT)
    vX, vD = g2["vX"], g2["vD"]
    vL16 = vX
    sCol2, sXoff2, sOcol2 = e.s(), e.s(), e.s()
    e(f"s_lshl_b32 s{sCol2}, s{sNb2}, 7")
    e(f"s_mov_b32 s{sXoff2}, {WS_OA}")
    e(f"s_movk_i32 s{sT}, {1152 + 1024}")
    e(f"s_cmp_eq_u32 s{sNb2}, 9")
    e(f"s_cselect_b32 s{sOcol2}, s{sT}, s{sCol2}")
    e(f"s_cselect_b32 s{sCol2}, 1024, s{sCol2}")
    e(f"s_cselect_b32 s{sXoff2}, {WS_OB}, s{sXoff2}")
    sW3, sRt1, sRot1, sCol1, sOcol1 = e.s(), e.s(), e.s(), e.s(), e.s()
    e(f"s_and_b32 s{sW3}, s{sW}, 3")
    e(f"s_lshr_b32 s{sT}, s{sI}, 3")
    e(f"s_lshl_b32 s{sT+1}, s{sJ}, 2")
    e(f"s_add_u32 s{sT}, s{sT}, s{sT+1}")
    e(f"s_and_b32 s{sT+1}, s{sI}, 7")
    e(f"s_lshl_b32 s{sRt1}, s{sT}, 2")
    e(f"s_add_u32 s{sRt1}, s{sRt1}, s{sW3}")
    e(f"s_lshl_b32 s{sRot1}, s{sT}, 1")
    e(f"s_add_u32 s{sRot1}, s{sRot1}, s{sT+1}")
    e(f"s_mul_i32 s{sT}, s{sRot1}, 7282")
    e(f"s_lshr_b32 s{sT}, s{sT}, 16")
    e(f"s_mul_i32 s{sT}, s{sT}, 9")
    e(f"s_sub_u32 s{sRot1}, s{sRot1}, s{sT}")
    e(f"s_lshl_b32 s{sCol1}, s{sT+1}, 7")
    e(f"s_add_u32 s{sOcol1}, s{sCol1}, 1152")
    sOF, sPb, sPk, sG = e.s(), e.s(), e.s(), e.s()
    e(f"s_lshl_b32 s{sOF}, s{sRb}, 2")
    e(f"s_add_u32 s{sOF}, s{sOF}, s{sW3}")
    e(f"s_mul_i32 s{sOF}, s{sOF}, 72")
    e(f"s_mul_i32 s{sT}, s{sHg}, 9")
    e(f"s_add_u32 s{sOF}, s{sOF}, s{sT}")
    e(f"s_lshl_b32 s{sOF}, s{sOF}, 8")
    vU = e.v(2)
    e(f"v_and_b32 v{vt+1}, 255, v0")
    e(f"v_lshlrev_b32 v{vU}, 4, v{vt+1}")
    e(f"v_add_u32 v{vU+1}, {256*16}, v{vU}")
    e(f"v_cmp_gt_u32 vcc, 86, v{vt+1}")
    e(f"v_mov_b32 v{vt}, 0x{OOB:x}")
    e(f"s_mul_i32 s{sPb}, s{sHg}, {4*1368}")
    e(f"v_cndmask_b32 v{vU+1}, v{vt}, v{vU+1}, vcc")
    e(f"s_add_u32 s{sPb}, s{sPb}, {WS_P}")
    e(f"s_and_b32 s{sPk}, s{sRb}, 15")
    e(f"s_mul_i32 s{sPk}, s{sPk}, {32*1368}")
    vKA = e.v(4)
    vmark, smark = e.vn, e.sn
    PR = e.v(128, 4)
    R2 = e.v(92, 4)
    BQ, AW, P = R2, R2 + 12, R2 + 72
    XR1, ACC1, vRA1 = R2, R2 + 72, R2 + 88
    e("s_waitcnt lgkmcnt(0)")
    srd(e, sXs, sPW, WS_BYTES)
    srd(e, sWo, sPB, WO_BYTES)
    srd(e, sOut, sPB + 2, OUT_BYTES)
    e(f"s_cmp_eq_u32 s{sNb2}, 9")
    e(f"s_cselect_b32 s{sPA}, s{sPB}, s{sPA}")
    e(f"s_cselect_b32 s{sPA+1}, s{sPB+1}, s{sPA+1}")
    srd(e, sW2, sPA, WO_BYTES)
    def pload(dst, vaddr):
        e(f"s_add_u32 s{sT+1}, s{sPb}, s{sPk}")
        e(f"buffer_load_dwordx4 {vr(dst,4)}, v{vaddr}, {sr(sXs,4)}, s{sT+1} offen")
        e(f"s_add_u32 s{sPk}, s{sPk}, {32*1368}")
        e(f"s_cmp_eq_u32 s{sPk}, {16*32*1368}")
        e(f"s_cselect_b32 s{sPk}, 0, s{sPk}")
    stamp(e)
    stn1 = getattr(e, "stn", 0)

    sSel = e.s(2)
    e(f"s_mov_b32 s{sSel}, 0x00003f80")
    e(f"s_mov_b32 s{sSel+1}, 0x3f800000")

    def kvaddr(h):
      for hh in range(2):
        u = vt
        e(f"v_and_b32 v{u}, 255, v0")
        e(f"v_lshlrev_b32 v{u}, 1, v{u}")
        if 512*h + hh:
            e(f"v_add_u32 v{u}, {512*h + hh}, v{u}")
        e(f"v_mul_u32_u24 v{vt+1}, 6133, v{u}")
        e(f"v_lshrrev_b32 v{vt+1}, 20, v{vt+1}")
        e(f"v_mul_u32_u24 v{vt+2}, 171, v{vt+1}")
        e(f"v_sub_u32 v{vt+2}, v{u}, v{vt+2}")
        e(f"v_mul_u32_u24 v{vt+3}, 7282, v{vt+2}")
        e(f"v_lshrrev_b32 v{vt+3}, 16, v{vt+3}")
        e(f"v_mul_u32_u24 v{vt+4}, 9, v{vt+3}")
        e(f"v_sub_u32 v{vt+4}, v{vt+2}, v{vt+4}")
        e(f"v_mul_u32_u24 v{vt+1}, 20, v{vt+1}")
        e(f"v_add_u32 v{vt+1}, v{vt+1}, v{vt+3}")
        e(f"v_mul_u32_u24 v{vt+1}, 80, v{vt+1}")
        e(f"v_lshl_add_u32 v{vKA+2*h+hh}, v{vt+4}, 3, v{vt+1}")
        if h == 1:
            e(f"v_cmp_gt_u32 vcc, 684, v{u}")
            e(f"v_mov_b32 v{vt+2}, {K2_DUMP - K2_KV0}")
            e("s_nop 1")
            e(f"v_cndmask_b32 v{vKA+2*h+hh}, v{vt+2}, v{vKA+2*h+hh}, vcc")
        e(f"v_add_u32 v{vKA+2*h+hh}, {K2_KV0}, v{vKA+2*h+hh}")

    def reduce(h):
        a = PR + h * 64
        acc = [PR + (1 - h) * 64 + i for i in range(8)]
        for x in acc:
            e(f"v_mov_b32 v{x}, 0")
        for rb in range(16):
            for d in range(4):
                e(f"v_dot2c_f32_bf16 v{acc[2*d]}, s{sSel}, v{a+rb*4+d}")
                e(f"v_dot2c_f32_bf16 v{acc[2*d+1]}, s{sSel+1}, v{a+rb*4+d}")
        e("s_nop 2")
        for d in range(4):
            e(f"v_cvt_pk_bf16_f32 v{a+d}, v{acc[2*d]}, v{acc[2*d+1]}")
        e(f"ds_write_b64 v{vKA+2*h}, {vr(a,2)}")
        e(f"ds_write_b64 v{vKA+2*h+1}, {vr(a+2,2)}")

    e(f"s_cmp_ge_u32 s{sW}, 4")
    e("s_cbranch_scc1 k2_X")
    e(f"s_add_u32 s{sT}, s{sOF}, {WS_Q}")
    e(f"v_lshlrev_b32 v{vt}, 4, v{vL15}")
    for st in range(3):
        e(f"buffer_load_dwordx4 {vr(BQ+st*4,4)}, v{vL16 if st < 2 else vt}, {sr(sXs,4)}, s{sT} offen offset:{st*1024}")
    e(f"s_mul_i32 s{sT}, s{sHg}, 15360")
    e(f"s_add_u32 s{sT}, s{sT}, {WS_WB}")
    for f in range(15):
        if f and f % 4 == 0:
            e(f"s_add_u32 s{sT}, s{sT}, 4096")
        e(f"buffer_load_dwordx4 {vr(AW+f*4,4)}, v{vL16}, {sr(sXs,4)}, s{sT} offen offset:{(f%4)*1024}")
    e(f"s_cmp_ge_u32 s{sW}, 2")
    e("s_cbranch_scc1 k2_A23")
    for rb in range(16):
        pload(PR + 64 + rb * 4, vU + 1)
    kvaddr(1)
    e("s_waitcnt vmcnt(16)")
    e.label("k2_A23")
    sL = e.s(2)
    e(f"s_mov_b32 s{sL}, 0x{LOG2E:x}")
    e(f"s_mov_b32 s{sL+1}, 0x{LOG2E:x}")
    e(f"s_cmp_lt_u32 s{sW}, 2")
    e("s_cbranch_scc1 k2_A01")
    e("s_waitcnt vmcnt(0)")
    e.label("k2_A01")
    for cf in range(5):
        for st in range(3):
            mfma(e, P + cf * 4, AW + (cf * 3 + st) * 4, BQ + st * 4, "0" if st == 0 else None)
    e("s_nop 7")
    E1 = AW
    E2 = AW + 18
    PH = AW + 36
    softmax_pm(e, P, E1, E2, PH, vt, sL)
    e(f"v_mov_b32 v{PH+18}, 0")
    e(f"v_mov_b32 v{PH+19}, 0")
    e(f"v_lshrrev_b32 v{vt}, 2, v{vL15}")
    e(f"v_cmp_eq_u32 vcc, v{vt}, v{vG}")
    e(f"v_mul_u32_u24 v{vt+1}, 20, v{vt}")
    e(f"v_and_b32 v{vt+2}, 3, v{vL15}")
    e(f"v_add_u32 v{vt+1}, v{vt+1}, v{vt+2}")
    e(f"v_mul_u32_u24 v{vt+1}, 80, v{vt+1}")
    e(f"v_add_u32 v{vt+1}, {K2_KV0}, v{vt+1}")
    e(f"v_mov_b32 v{vt+2}, {K2_Z0}")
    e(f"v_cndmask_b32 v{vt+1}, v{vt+2}, v{vt+1}, vcc")
    e(f"s_lshl_b32 s{sT}, s{sW}, 4")
    e(f"v_add_u32 v{vt+2}, s{sT}, v{vL15}")
    e(f"v_mul_u32_u24 v{vt+2}, 144, v{vt+2}")
    e(f"v_add_u32 v{vt+2}, {K2_O0}, v{vt+2}")
    e(f"v_mul_u32_u24 v{vt+3}, 36, v{vG}")
    e(f"v_add_u32 v{vt+3}, v{vt+3}, v{vt+2}")
    e(f"v_lshl_add_u32 v{vt+2}, v{vG}, 4, v{vt+2}")
    e(f"v_cmp_eq_u32 vcc, 0, v{vG}")
    e(f"v_mov_b32 v{vt+4}, 0x{OOB:x}")
    e(f"s_add_u32 s{sOF}, s{sOF}, {WS_OA}")
    e(f"v_cndmask_b32 v{vt+4}, v{vt+4}, v{vL16}, vcc")
    stamp(e)
    e(f"s_cmp_ge_u32 s{sW}, 2")
    e("s_cbranch_scc1 k2_Anr")
    e("s_waitcnt vmcnt(0)")
    reduce(1)
    e("s_waitcnt lgkmcnt(0)")
    e.label("k2_Anr")
    e("s_barrier")
    stamp(e)
    AK = PR
    for ch in range(5):
        for st in range(5):
            e(f"ds_read_b128 {vr(AK+(ch*5+st)*4,4)}, v{vt+1} offset:{ch*320 + st*16}")
    N = P
    for ch in range(5):
        e(f"s_waitcnt lgkmcnt({min(15, 20 - 5*ch)})")
        for st in range(5):
            mfma(e, N + ch * 4, AK + (ch * 5 + st) * 4, PH + st * 4, "0" if st == 0 else None)
    e("s_nop 7")
    e("s_nop 3")
    e(f"v_add_f32 v{vt}, 0x358637bd, v{N+18}")
    e(f"v_rcp_f32 v{vt}, v{vt}")
    e("s_nop 0")
    for i in range(0, 18, 2):
        e(f"v_pk_mul_f32 {vr(N+i,2)}, {vr(N+i,2)}, {vr(vt,2)} op_sel_hi:[1,0]")
    OP = AW
    for i in range(9):
        e(f"v_cvt_pk_bf16_f32 v{OP+i}, v{N+2*i}, v{N+2*i+1}")
    for i in range(4):
        e(f"ds_write2_b32 v{vt+3}, v{OP+2*i}, v{OP+2*i+1} offset0:{2*i} offset1:{2*i+1}")
    e(f"ds_write_b32 v{vt+3}, v{OP+8} offset:32")
    e("s_waitcnt lgkmcnt(0)")
    CO = AW + 12
    for i in range(3):
        e(f"ds_read_b128 {vr(CO+4*i,4)}, v{vt+2} offset:{64*i}")
    for i in range(3):
        e(f"s_waitcnt lgkmcnt({2-i})")
        e(f"buffer_store_dwordx4 {vr(CO+4*i,4)}, v{vL16 if i < 2 else vt+4}, {sr(sXs,4)}, s{sOF} offen offset:{1024*i} sc1")
    e(f"v_cmp_eq_u32 vcc, 0, v{vL}")
    e(f"v_mov_b32 v{vt+5}, 0x{OOB:x}")
    e(f"v_mov_b32 v{vt+6}, 1")
    e(f"s_lshl_b32 s{sOF}, s{sRb}, 7")
    e(f"s_lshl_b32 s{sT+1}, s{sHg}, 4")
    e(f"s_add_u32 s{sOF}, s{sOF}, s{sT+1}")
    e(f"s_lshl_b32 s{sT+1}, s{sW}, 2")
    e(f"s_add_u32 s{sOF}, s{sOF}, s{sT+1}")
    e(f"s_add_u32 s{sOF}, s{sOF}, {WS_FL}")
    e(f"v_cndmask_b32 v{vt+5}, v{vt+5}, 0, vcc")
    e("s_waitcnt vmcnt(0)")
    e(f"buffer_store_dword v{vt+6}, v{vt+5}, {sr(sXs,4)}, s{sOF} offen sc1")
    e("s_barrier")
    stamp(e)
    e(f"s_cmp_lg_u32 s{sW}, 0")
    e("s_cbranch_scc1 k2_Aw2")
    e(f"s_cmp_ge_u32 s{sU}, 220")
    e("s_cbranch_scc1 k2_P2")
    e(f"s_cmp_eq_u32 s{sNb2}, 9")
    e("s_cbranch_scc1 k2_P2")
    e(f"s_mul_i32 s{sT}, s{sRbk2}, 96")
    e(f"s_add_u32 s{sT+1}, s{sT}, 95")
    e(f"s_min_u32 s{sT+1}, s{sT+1}, 2047")
    e(f"s_lshr_b32 s{sT}, s{sT}, 6")
    e(f"s_lshr_b32 s{sT+1}, s{sT+1}, 6")
    e(f"s_lshl_b32 s{sT}, s{sT}, 7")
    e(f"s_lshl_b32 s{sT+1}, s{sT+1}, 7")
    e(f"v_and_b32 v{vt}, 31, v{vL}")
    e(f"v_lshlrev_b32 v{vt}, 2, v{vt}")
    e(f"v_cmp_gt_u32 vcc, 32, v{vL}")
    e(f"v_mov_b32 v{vt+1}, s{sT}")
    e(f"v_mov_b32 v{vt+2}, s{sT+1}")
    e(f"v_cndmask_b32 v{vt+1}, v{vt+2}, v{vt+1}, vcc")
    e(f"v_add_u32 v{vt}, v{vt}, v{vt+1}")
    e(f"s_mov_b32 s{sT}, {WS_FL}")
    e(f"s_mov_b32 s{sG}, 0")
    e.label("k2_poll")
    e(f"s_sleep {os.environ.get('PSLEEP', '4')}")
    e(f"buffer_load_dword v{vt+1}, v{vt}, {sr(sXs,4)}, s{sT} offen sc1")
    e("s_waitcnt vmcnt(0)")
    e(f"v_cmp_ne_u32 vcc, 1, v{vt+1}")
    e(f"s_add_u32 s{sG}, s{sG}, 1")
    e(f"s_cmp_ge_u32 s{sG}, 100000")
    e("s_cbranch_scc1 k2_P2")
    e("s_cbranch_vccnz k2_poll")
    e("s_branch k2_P2")
    e.label("k2_Aw2")
    e(f"s_cmp_ge_u32 s{sU}, 220")
    e("s_cbranch_scc1 k2_P2")
    e(f"s_add_u32 s{sG}, s{sW}, {26 if W2E else -1}")
    e.label("k2_w2l")
    grp_src(e, sG, g2["sRot"], sCol2, sT)
    e(f"s_lshl_b32 s{sT+1}, s{sG}, 11")
    e(f"s_add_u32 m0, s{sT+1}, {W2OFF}")
    e(f"s_add_u32 s{sG}, s{sG}, 3")
    e(f"buffer_load_dwordx4 v{vD}, {sr(sW2,4)}, s{sT} offen lds")
    e(f"s_add_u32 m0, s{sT+1}, {W2OFF + 1024}")
    e(f"s_add_u32 s{sT}, s{sT}, {8*1152}")
    e(f"buffer_load_dwordx4 v{vD+1}, {sr(sW2,4)}, s{sT} offen lds")
    e(f"s_cmp_lt_u32 s{sG}, 36")
    e("s_cbranch_scc1 k2_w2l")
    e("s_branch k2_P2")
    e.label("k2_X")
    e.stn = stn1
    for rb in range(16):
        pload(PR + rb * 4, vU)
    e(f"v_and_b32 v{vt}, 255, v0")
    for i in range(4):
        e(f"v_mov_b32 v{R2+20+i}, 0")
    e(f"v_min_u32 v{vt+1}, 79, v{vt}")
    e(f"v_mul_u32_u24 v{vt+1}, 80, v{vt+1}")
    e(f"v_add_u32 v{vt+1}, {K2_KV0 + 72}, v{vt+1}")
    e(f"ds_write_b64 v{vt+1}, {vr(R2+20,2)}")
    e(f"v_min_u32 v{vt+1}, 95, v{vt}")
    e(f"v_lshlrev_b32 v{vt+1}, 4, v{vt+1}")
    e(f"v_add_u32 v{vt+1}, {K2_Z0}, v{vt+1}")
    e(f"ds_write_b128 v{vt+1}, {vr(R2+20,4)}")
    kvaddr(0)
    sXb, sXk, sXc = e.s(), e.s(), e.s()
    e(f"s_mul_i32 s{sXb}, s{sRt1}, 18432")
    e(f"s_add_u32 s{sXb}, s{sXb}, {WS_OB}")
    e(f"s_lshl_b32 s{sXk}, s{sRot1}, 11")
    e(f"s_mov_b32 s{sG}, s{sW3}")
    for r in range(9):
        grp_src(e, sG, sRot1, sCol1, sT)
        e(f"s_lshl_b32 s{sT+1}, s{sG}, 11")
        e(f"s_mov_b32 m0, s{sT+1}")
        e(f"s_add_u32 s{sG}, s{sG}, 4")
        e(f"buffer_load_dwordx4 v{vD}, {sr(sWo,4)}, s{sT} offen lds")
        e(f"s_add_u32 m0, s{sT+1}, 1024")
        e(f"s_add_u32 s{sT}, s{sT}, {8*1152}")
        e(f"buffer_load_dwordx4 v{vD+1}, {sr(sWo,4)}, s{sT} offen lds")
        if r == XRED:
            stamp(e)
            e(f"s_waitcnt vmcnt({2*(XRED+1)})")
            reduce(0)
            e("s_waitcnt lgkmcnt(0)")
            e("s_barrier")
            stamp(e)
    for ks in range(18):
        if ks % 2 == 0:
            e(f"s_add_u32 s{sXc}, s{sXb}, s{sXk}")
        e(f"buffer_load_dwordx4 {vr(XR1+ks*4,4)}, v{vX}, {sr(sXs,4)}, s{sXc} offen offset:{(ks%2)*1024}")
        if ks % 2 == 1:
            e(f"s_add_u32 s{sXk}, s{sXk}, 2048")
            e(f"s_cmp_eq_u32 s{sXk}, 18432")
            e(f"s_cselect_b32 s{sXk}, 0, s{sXk}")
    e(f"s_mov_b32 s{sG}, s{sW3}")
    for r in range(7 if W2E else 0):
        grp_src(e, sG, g2["sRot"], sCol2, sT)
        e(f"s_lshl_b32 s{sT+1}, s{sG}, 11")
        e(f"s_add_u32 s{sT+1}, s{sT+1}, {W2OFF}")
        e(f"s_cmp_lt_u32 s{sU}, 220")
        e(f"s_cselect_b32 s{sT}, s{sT}, 0x{OOB:x}")
        if r == 6:
            e(f"s_cmp_lt_u32 s{sG}, 27")
            e(f"s_cselect_b32 s{sT}, s{sT}, 0x{OOB:x}")
            e(f"s_cselect_b32 s{sT+1}, s{sT+1}, {STG0}")
        e(f"s_mov_b32 m0, s{sT+1}")
        e(f"s_add_u32 s{sG}, s{sG}, 4")
        e(f"buffer_load_dwordx4 v{vD}, {sr(sW2,4)}, s{sT} offen lds")
        e(f"s_add_u32 m0, s{sT+1}, 1024")
        e(f"s_add_u32 s{sT}, s{sT}, {8*1152}")
        e(f"buffer_load_dwordx4 v{vD+1}, {sr(sW2,4)}, s{sT} offen lds")
    rd_addr(e, vRA1, 0, vG, vR4, vC4, vt)
    e(f"s_waitcnt vmcnt({32 if W2E else 18})")
    e("s_barrier")
    stamp(e)

    def kloop(XR, ACC, F, vRA, xextra):
        def rdk(ks):
            L = []
            if ks == 12:
                for t in range(4):
                    L.append(f"v_add_u32 v{vRA+t}, {12*4096}, v{vRA+t}")
            o = (ks - 12 if ks >= 12 else ks) * 4096
            for t in range(4):
                for h in range(2):
                    L.append(f"ds_read_b64_tr_b16 {vr(F+((ks%3)*4+t)*4+h*2,2)}, v{vRA+t} offset:{o + h*512}")
            return L
        for x in rdk(0) + rdk(1):
            e(x)
        for ks in range(18):
            nl = 8 if ks < 17 else 0
            e(f"s_waitcnt vmcnt({17-ks+xextra}) lgkmcnt({nl})")
            R = rdk(ks + 2) if ks + 2 < 18 else []
            per = (len(R) + 3) // 4
            for t in range(4):
                mfma(e, ACC + t * 4, F + ((ks % 3) * 4 + t) * 4, XR + ks * 4, "0" if ks == 0 else None)
                for x in R[t*per:(t+1)*per]:
                    e(x)
        e("s_nop 7")
    kloop(XR1, ACC1, PR, vRA1, 14 if W2E else 0)
    out_stage(e, ACC1, PR, sW, sRt1, sOcol1, sOut, vL, vL15, vG, vt, sT)
    e.label("k2_P2")
    e.vn = vmark
    stamp(e)
    e(f"s_cmp_ge_u32 s{sU}, 220")
    e("s_cbranch_scc1 k2_fin")
    XR = e.v(72, 4)
    ACC = e.v(16, 4)
    F = e.v(48, 4)
    vRA = e.v(4)
    e("s_waitcnt vmcnt(0)")
    rd_addr(e, vRA, W2OFF, vG, vR4, vC4, vt)
    e(f"s_mul_i32 s{sXb}, s{g2['sRt']}, 18432")
    e(f"s_add_u32 s{sXb}, s{sXb}, s{sXoff2}")
    e(f"s_lshl_b32 s{sXk}, s{g2['sRot']}, 11")
    e("s_barrier")
    stamp(e)
    e(f"s_cmp_ge_u32 s{sW}, {P2_NW}")
    e("s_cbranch_scc1 k2_fin")
    for ks in range(18):
        if ks % 2 == 0:
            e(f"s_add_u32 s{sXc}, s{sXb}, s{sXk}")
        e(f"buffer_load_dwordx4 {vr(XR+ks*4,4)}, v{vX}, {sr(sXs,4)}, s{sXc} offen offset:{(ks%2)*1024} sc1")
        if ks % 2 == 1:
            e(f"s_add_u32 s{sXk}, s{sXk}, 2048")
            e(f"s_cmp_eq_u32 s{sXk}, 18432")
            e(f"s_cselect_b32 s{sXk}, 0, s{sXk}")
    kloop(XR, ACC, F, vRA, 0)
    out_stage(e, ACC, F, sW, g2["sRt"], sOcol2, sOut, vL, vL15, vG, vt, sT)
    e.label("k2_fin")
    stamp_dump(e, sXs, 1, vt, sT)
    e.label("k2_end")
    e("s_endpgm")
    return e.vmax, e.smax


def main():
    global STAMP
    if "--stamp" in sys.argv:
        STAMP = True
        sys.argv.remove("--stamp")
    e = Em()
    hdr = open(f"cdna_kernels/{NAME}.s.ref").read().split("\n")
    head = [l for l in hdr if l.startswith(";") and "@launch" not in l and "Override" not in l and "grid=ceil" not in l]
    out = head[:]
    out.append(f"; @launch kernel=k1_kernel grid=(256,1,1) block=(512,1,1) lds={K1_LDS}")
    out.append(f"; @launch kernel=k2_kernel grid=({K2_GRID},1,1) block=(512,1,1) lds={K23_LDS}")
    out.append('.amdgcn_target "amdgcn-amd-amdhsa--gfx950"')
    out.append(".text")
    res = {}
    for nm, fn in (("k1", gen_k1), ("k2", gen_k2)):
        e.L.append(f".globl {nm}_kernel")
        e.L.append(".p2align 8")
        e.L.append(f".type {nm}_kernel,@function")
        res[nm] = fn(e)
    out += e.L
    out.append("code_end:")
    out.append("  s_endpgm")
    out.append('.section .rodata,"a"')
    for nm, (vm, sm) in res.items():
        vm4 = (vm + 3) // 4 * 4
        out.append(".p2align 6")
        out.append(f".amdhsa_kernel {nm}_kernel")
        out.append(f"  .amdhsa_next_free_vgpr {vm}")
        out.append(f"  .amdhsa_next_free_sgpr {sm}")
        out.append(f"  .amdhsa_accum_offset {vm4}")
        out.append("  .amdhsa_group_segment_fixed_size 0")
        out.append("  .amdhsa_kernarg_size 80")
        out.append("  .amdhsa_user_sgpr_count 2")
        out.append("  .amdhsa_user_sgpr_kernarg_segment_ptr 1")
        out.append("  .amdhsa_system_sgpr_workgroup_id_x 1")
        out.append(".end_amdhsa_kernel")
    path = sys.argv[1] if len(sys.argv) > 1 else f"cdna_kernels/{NAME}.s"
    open(path, "w").write("\n".join(out) + "\n")
    print(res)


if __name__ == "__main__":
    main()
```

```python
import sys, os

NAME = "concat_heads__linear_kernel_hedgehog__sliding_local_dilated__prompt"
WS_Q = 0x000000
WS_OA = 0x400000
WS_OB = 0x800000
WS_P = 0xC00000
WS_WB = 0xE00000
WS_FL = 0xE80000
WS_BYTES = 0x1000000
X_BYTES = 2048 * 576 * 2
WQKV_BYTES = 576 * 1728 * 2
WO_BYTES = 576 * 576 * 2
WPHI_BYTES = 32 * 18 * 18 * 2
OUT_BYTES = 2048 * 1152 * 2
OOB = 0x80000000
LOG2E = 0x3FB8AA3B


class Em:
    def __init__(self):
        self.L = []
        self.vn = 0
        self.sn = 0
        self.vmax = 0
        self.smax = 0
        self.lab = 0

    def __call__(self, s):
        self.L.append("  " + s)

    def c(self, s):
        self.L.append("  ; " + s)

    def label(self, s):
        self.L.append(s + ":")

    def newlab(self, p="L"):
        self.lab += 1
        return f"{p}_{self.lab}"

    def v(self, n=1, al=0):
        if al == 0:
            al = 2 if n >= 2 else 1
        self.vn = (self.vn + al - 1) // al * al
        r = self.vn
        self.vn += n
        self.vmax = max(self.vmax, self.vn)
        assert self.vn <= 256, "out of vgprs"
        return r

    def s(self, n=1, al=1):
        if n == 2:
            al = max(al, 2)
        if n >= 4:
            al = max(al, 4)
        self.sn = (self.sn + al - 1) // al * al
        r = self.sn
        self.sn += n
        self.smax = max(self.smax, self.sn)
        assert self.sn <= 102, "out of sgprs"
        return r

    def reset(self):
        self.vn = 0
        self.sn = 0
        self.vmax = 0
        self.smax = 0


STAMP = False
WS_ST = 0xF00000

def stamp_init(e):
    if not STAMP: return
    e.stp = e.s(20, 4)
    e.stn = 0

def stamp(e):
    if not STAMP: return
    i = e.stn
    e.stn += 1
    assert i < 9
    if i == 0:
        e(f"s_memrealtime {sr(e.stp + 18, 2)}")
    e(f"s_memtime {sr(e.stp + 2*i, 2)}")
    e("s_waitcnt lgkmcnt(0)")

def stamp_dump(e, sWs, kidx, vt, sT):
    if not STAMP: return
    e("s_waitcnt vmcnt(0) lgkmcnt(0)")
    stamp(e)
    e(f"v_lshrrev_b32 v{vt}, 6, v0")
    e(f"v_lshlrev_b32 v{vt}, 6, v{vt}")
    e(f"s_lshl_b32 s{sT}, s2, 9")
    e(f"s_add_u32 s{sT}, s{sT}, {WS_ST + kidx*256*512}")
    e(f"v_and_b32 v{vt+1}, 63, v0")
    e(f"v_cmp_eq_u32 vcc, 0, v{vt+1}")
    e(f"v_mov_b32 v{vt+2}, 0x{OOB:x}")
    e("s_nop 1")
    e(f"v_cndmask_b32 v{vt}, v{vt+2}, v{vt}, vcc")
    for i in range(12):
        src = e.stp + 2*i if i < 9 else e.stp + 18
        e(f"v_mov_b32 v{vt+1}, s{src}")
        e(f"buffer_store_dword v{vt+1}, v{vt}, {sr(sWs,4)}, s{sT} offen offset:{4*i}")
    e("s_waitcnt vmcnt(0)")

def vr(a, n):
    return f"v[{a}:{a+n-1}]" if n > 1 else f"v{a}"


def sr(a, n):
    return f"s[{a}:{a+n-1}]" if n > 1 else f"s{a}"


def srd(e, d, base, nbytes):
    e(f"s_mov_b32 s{d}, s{base}")
    e(f"s_and_b32 s{d+1}, s{base+1}, 0xffff")
    e(f"s_mov_b32 s{d+2}, {nbytes}")
    e(f"s_mov_b32 s{d+3}, 0x00020000")


def mfma(e, d, a, b, c=None):
    cs = vr(d, 4) if c is None else c
    e(f"v_mfma_f32_16x16x32_bf16 {vr(d,4)}, {vr(a,4)}, {vr(b,4)}, {cs}")


WB_PITCH = 208
WB_BYTES = 5 * 16 * WB_PITCH


def wb_issue_loads(e, sPhi, sHg, vTid, vE, vD, tmp):
    sB = sHg
    for i in range(3):
        e(f"v_add_u32 v{vE+i}, {512*i}, v{vTid}")
        e(f"v_lshlrev_b32 v{tmp}, 1, v{vE+i}")
        if i == 2:
            e(f"v_cmp_gt_u32 vcc, 1296, v{vE+i}")
            e(f"v_mov_b32 v{tmp+1}, 0x{OOB:x}")
            e("s_nop 1")
            e(f"v_cndmask_b32 v{tmp}, v{tmp+1}, v{tmp}, vcc")
        e(f"buffer_load_ushort v{vD+i}, v{tmp}, {sr(sPhi,4)}, s{sB} offen")


def lds_zero(e, base, nbytes, vTid, tmp4, nthreads=512):
    z = tmp4
    a = tmp4 + 4
    for i in range(4):
        e(f"v_mov_b32 v{z+i}, 0")
    n16 = nbytes // 16
    rounds = (n16 + nthreads - 1) // nthreads
    e(f"v_lshlrev_b32 v{a}, 4, v{vTid}")
    if base:
        e(f"v_add_u32 v{a}, {base}, v{a}")
    for r in range(rounds):
        if (r + 1) * nthreads <= n16:
            e(f"ds_write_b128 v{a}, {vr(z,4)} offset:{r*nthreads*16}")
        else:
            last = (n16 - 1 - r * nthreads) * 16 + base
            e(f"v_min_u32 v{a+1}, {last}, v{a}")
            e(f"ds_write_b128 v{a+1}, {vr(z,4)} offset:{r*nthreads*16}")


def wb_scatter(e, WB0, DUMP, vE, vD, t):
    for i in range(3):
        E = vE + i
        e(f"v_mul_u32_u24 v{t}, 3237, v{E}")
        e(f"v_lshrrev_b32 v{t}, 20, v{t}")
        e(f"v_mul_u32_u24 v{t+1}, 324, v{t}")
        e(f"v_sub_u32 v{t+1}, v{E}, v{t+1}")
        e(f"v_mul_u32_u24 v{t+2}, 3641, v{t+1}")
        e(f"v_lshrrev_b32 v{t+2}, 16, v{t+2}")
        e(f"v_mul_u32_u24 v{t+3}, 18, v{t+2}")
        e(f"v_sub_u32 v{t+3}, v{t+1}, v{t+3}")
        e(f"v_lshrrev_b32 v{t+4}, 2, v{t+3}")
        e(f"v_lshlrev_b32 v{t+4}, 4, v{t+4}")
        e(f"v_lshl_add_u32 v{t+4}, v{t}, 2, v{t+4}")
        e(f"v_and_b32 v{t+3}, 3, v{t+3}")
        e(f"v_add_u32 v{t+4}, v{t+4}, v{t+3}")
        e(f"v_mul_u32_u24 v{t+4}, {WB_PITCH}, v{t+4}")
        e(f"v_mul_u32_u24 v{t}, 18, v{t}")
        e(f"v_add_u32 v{t}, v{t}, v{t+2}")
        e(f"v_lshl_add_u32 v{t+4}, v{t}, 1, v{t+4}")
        if i == 2:
            e(f"v_cmp_gt_u32 vcc, 1296, v{E}")
            e(f"v_mov_b32 v{t}, {DUMP - WB0}")
            e("s_nop 1")
            e(f"v_cndmask_b32 v{t+4}, v{t}, v{t+4}, vcc")
        if WB0:
            e(f"v_add_u32 v{t+4}, {WB0}, v{t+4}")
        e(f"ds_write_b16 v{t+4}, v{vD+i}")


def softmax_pm(e, P, E1, E2, OUT, t, sL):
    mx, mn = t, t + 1
    e(f"v_max3_f32 v{mx}, v{P}, v{P+1}, v{P+2}")
    e(f"v_min3_f32 v{mn}, v{P}, v{P+1}, v{P+2}")
    for i in range(3, 17, 2):
        e(f"v_max3_f32 v{mx}, v{mx}, v{P+i}, v{P+i+1}")
        e(f"v_min3_f32 v{mn}, v{mn}, v{P+i}, v{P+i+1}")
    e(f"v_max_f32 v{mx}, v{mx}, v{P+17}")
    e(f"v_min_f32 v{mn}, v{mn}, v{P+17}")
    cp, cm = t + 2, t + 4
    e(f"v_mul_f32 v{cp}, s{sL}, v{mx}")
    e(f"v_mul_f32 v{cm}, s{sL}, v{mn}")
    for i in range(0, 18, 2):
        e(f"v_pk_fma_f32 {vr(E1+i,2)}, {vr(P+i,2)}, {sr(sL,2)}, {vr(cp,2)} op_sel_hi:[1,1,0] neg_lo:[0,0,1] neg_hi:[0,0,1]")
        e(f"v_pk_fma_f32 {vr(E2+i,2)}, {vr(P+i,2)}, {sr(sL,2)}, {vr(cm,2)} op_sel_hi:[1,1,0] neg_lo:[1,0,0] neg_hi:[1,0,0]")
    for i in range(18):
        e(f"v_exp_f32 v{E1+i}, v{E1+i}")
        e(f"v_exp_f32 v{E2+i}, v{E2+i}")
    s1, s2 = t + 2, t + 4
    e(f"v_pk_add_f32 {vr(s1,2)}, {vr(E1,2)}, {vr(E1+2,2)}")
    e(f"v_pk_add_f32 {vr(s2,2)}, {vr(E2,2)}, {vr(E2+2,2)}")
    for i in range(4, 18, 2):
        e(f"v_pk_add_f32 {vr(s1,2)}, {vr(s1,2)}, {vr(E1+i,2)}")
        e(f"v_pk_add_f32 {vr(s2,2)}, {vr(s2,2)}, {vr(E2+i,2)}")
    e(f"v_add_f32 v{s1}, v{s1}, v{s1+1}")
    e(f"v_add_f32 v{s2}, v{s2}, v{s2+1}")
    e(f"v_rcp_f32 v{s1}, v{s1}")
    e(f"v_rcp_f32 v{s2}, v{s2}")
    e("s_nop 0")
    for i in range(0, 18, 2):
        e(f"v_pk_mul_f32 {vr(E1+i,2)}, {vr(E1+i,2)}, {vr(s1,2)} op_sel_hi:[1,0]")
        e(f"v_pk_mul_f32 {vr(E2+i,2)}, {vr(E2+i,2)}, {vr(s2,2)} op_sel_hi:[1,0]")
    for i in range(0, 18, 2):
        e(f"v_cvt_pk_bf16_f32 v{OUT+i//2}, v{E1+i}, v{E1+i+1}")
        e(f"v_cvt_pk_bf16_f32 v{OUT+9+i//2}, v{E2+i}, v{E2+i+1}")


def chunk_decode(e, sTile, vq, vS, vC):
    e(f"s_lshl_b32 s{sTile+1}, s{sTile}, 2")
    e(f"v_add_u32 v{vC}, s{sTile+1}, v{vq}")
    e(f"v_min_u32 v{vC}, 26, v{vC}")
    e(f"v_mul_u32_u24 v{vS}, 57, v{vC}")
    e(f"v_lshrrev_b32 v{vS}, 9, v{vS}")
    e(f"v_mul_u32_u24 v{vS+1}, 9, v{vS}")
    e(f"v_sub_u32 v{vC}, v{vC}, v{vS+1}")


WSLOT = 16384
XR0 = 4 * WSLOT
XSLOT = 18432
K1_WB0 = XR0 + 3 * XSLOT
K1_ONES = K1_WB0 + WB_BYTES
K1_DUMP2 = K1_ONES + 16
K1_LDS = K1_DUMP2 + 16
TA_PITCH = 304
PHI0 = 40960
PHI_PITCH = 336
TB_PITCH = 496
OB0 = 73728


def chunk_of(T, g):
    p = 4 * T + g
    pad = p > 26
    p = min(p, 26)
    return p // 9, p % 9, pad


def lit(fn, T):
    return sum((fn(*chunk_of(T, g)) & 0xff) << (8 * g) for g in range(4))


LITW = [lit(lambda s, c, p: 18 * ((s + 1) % 3) + c, T) for T in range(7)]
LITA = [lit(lambda s, c, p: 36 if (s == 2 or p) else 18 * s + c, T) for T in range(7)]
LITQ = [lit(lambda s, c, p: c if (s == 2 and not p) else 255, T) for T in range(7)]
LITB = [lit(lambda s, c, p: 5 if p else 20 * ((s + 1) % 3) + (c if c < 5 else c + 1), T) for T in range(7)]


def wb_issue_loads2(e, sPhi, sB, vTid, vE, vD, tmp, nth):
    n = (1296 + nth - 1) // nth
    for i in range(n):
        e(f"v_add_u32 v{vE+i}, {nth*i}, v{vTid}")
        e(f"v_lshlrev_b32 v{tmp}, 1, v{vE+i}")
        if (i + 1) * nth > 1296:
            e(f"v_cmp_gt_u32 vcc, 1296, v{vE+i}")
            e(f"v_mov_b32 v{tmp+1}, 0x{OOB:x}")
            e("s_nop 1")
            e(f"v_cndmask_b32 v{tmp}, v{tmp+1}, v{tmp}, vcc")
        e(f"buffer_load_ushort v{vD+i}, v{tmp}, {sr(sPhi,4)}, s{sB} offen")
    return n


def wb_scatter2(e, WB0, DUMPA, vE, vD, t, nth):
    n = (1296 + nth - 1) // nth
    for i in range(n):
        E = vE + i
        e(f"v_mul_u32_u24 v{t}, 3237, v{E}")
        e(f"v_lshrrev_b32 v{t}, 20, v{t}")
        e(f"v_mul_u32_u24 v{t+1}, 324, v{t}")
        e(f"v_sub_u32 v{t+1}, v{E}, v{t+1}")
        e(f"v_mul_u32_u24 v{t+2}, 3641, v{t+1}")
        e(f"v_lshrrev_b32 v{t+2}, 16, v{t+2}")
        e(f"v_mul_u32_u24 v{t+3}, 18, v{t+2}")
        e(f"v_sub_u32 v{t+3}, v{t+1}, v{t+3}")
        e(f"v_lshrrev_b32 v{t+4}, 2, v{t+3}")
        e(f"v_lshlrev_b32 v{t+4}, 4, v{t+4}")
        e(f"v_lshl_add_u32 v{t+4}, v{t}, 2, v{t+4}")
        e(f"v_and_b32 v{t+3}, 3, v{t+3}")
        e(f"v_add_u32 v{t+4}, v{t+4}, v{t+3}")
        e(f"v_mul_u32_u24 v{t+4}, {WB_PITCH}, v{t+4}")
        e(f"v_mul_u32_u24 v{t}, 18, v{t}")
        e(f"v_add_u32 v{t}, v{t}, v{t+2}")
        e(f"v_lshl_add_u32 v{t+4}, v{t}, 1, v{t+4}")
        if (i + 1) * nth > 1296:
            e(f"v_cmp_gt_u32 vcc, 1296, v{E}")
            e(f"v_mov_b32 v{t}, {DUMPA - WB0}")
            e("s_nop 1")
            e(f"v_cndmask_b32 v{t+4}, v{t}, v{t+4}, vcc")
        if WB0:
            e(f"v_add_u32 v{t+4}, {WB0}, v{t+4}")
        e(f"ds_write_b16 v{t+4}, v{vD+i}")


def interleave(e, mf, other, start=1, per=1):
    oi = 0
    for i, m in enumerate(mf):
        e(m)
        if i >= start - 1:
            for _ in range(per):
                if oi < len(other):
                    e(other[oi]); oi += 1
    while oi < len(other):
        e(other[oi]); oi += 1


def mf(d, a, b, c=None):
    cs = vr(d, 4) if c is None else c
    return f"v_mfma_f32_16x16x32_bf16 {vr(d,4)}, {vr(a,4)}, {vr(b,4)}, {cs}"


XBYC = os.environ.get('XBYC', '1') != '0'
WBYC = os.environ.get('WBYC', '0') != '0'


def gen_k1(e):
    e.reset()
    e.s(3)
    e.label("k1_kernel")
    Lend = "k1_end"
    e("s_cmp_ge_u32 s2, 256")
    e(f"s_cbranch_scc1 {Lend}")
    stamp_init(e); stamp(e)
    sPA = e.s(4)
    sPB = e.s(4)
    sPP = e.s(4)
    sPW = e.s(2)
    sPO = e.s(2)
    e(f"s_load_dwordx4 {sr(sPA,4)}, s[0:1], 0")
    e(f"s_load_dwordx4 {sr(sPB,4)}, s[0:1], 32")
    e(f"s_load_dwordx4 {sr(sPP,4)}, s[0:1], 16")
    e(f"s_load_dwordx2 {sr(sPW,2)}, s[0:1], 72")
    e(f"s_load_dwordx2 {sr(sPO,2)}, s[0:1], 48")
    sJ, sI, sBr, sRb, sHg, sW, sMi, sNi = [e.s() for _ in range(8)]
    sT = e.s(4)
    e(f"s_and_b32 s{sJ}, s2, 7")
    e(f"s_lshr_b32 s{sI}, s2, 3")
    e(f"s_lshr_b32 s{sBr}, s{sJ}, 2")
    e(f"s_lshr_b32 s{sT}, s{sJ}, 1")
    e(f"s_and_b32 s{sT}, s{sT}, 1")
    e(f"s_lshl_b32 s{sT}, s{sT}, 3")
    e(f"s_lshr_b32 s{sRb}, s{sI}, 2")
    e(f"s_add_u32 s{sRb}, s{sRb}, s{sT}")
    e(f"s_and_b32 s{sT}, s{sJ}, 1")
    e(f"s_lshl_b32 s{sT}, s{sT}, 2")
    e(f"s_and_b32 s{sHg}, s{sI}, 3")
    e(f"s_add_u32 s{sHg}, s{sHg}, s{sT}")
    vTid = e.v()
    vL, vL15, vG, vR4, vC4 = [e.v() for _ in range(5)]
    vt = e.v(8, 2)
    e(f"v_lshrrev_b32 v{vt}, 6, v0")
    e(f"v_and_b32 v{vL}, 63, v0")
    e(f"v_readfirstlane_b32 s{sW}, v{vt}")
    e(f"v_and_b32 v{vL15}, 15, v0")
    e(f"v_lshrrev_b32 v{vG}, 4, v{vL}")
    e(f"v_bfe_u32 v{vR4}, v0, 2, 2")
    e(f"v_and_b32 v{vC4}, 3, v0")
    e(f"s_and_b32 s{sMi}, s{sW}, 1")
    e(f"s_bfe_u32 s{sNi}, s{sW}, 0x10001")
    sX = e.s(4)
    sWq = e.s(4)
    sWs = e.s(4)
    sPhi = e.s(4)
    sRow0 = e.s()
    sTl = e.s(2)
    sIt = e.s()
    sDl = e.s()
    sSl = e.s()
    sWlim, sXh, sLx, sHf = e.s(), e.s(), e.s(), e.s()
    e(f"s_lshl_b32 s{sRow0}, s{sRb}, 7")

    def make_srds():
        e("s_waitcnt lgkmcnt(0)")
        e(f"s_cmp_eq_u32 s{sBr}, 0")
        for i in range(4):
            e(f"s_cselect_b32 s{sPA+i}, s{sPA+i}, s{sPB+i}")
        nl = os.environ.get('K1NOLOAD', '0') != '0'
        srd(e, sX, sPA, 0 if nl else X_BYTES)
        srd(e, sWq, sPA + 2, 0 if nl else WQKV_BYTES)
        srd(e, sWs, sPW, WS_BYTES)
        srd(e, sPhi, sPP, WPHI_BYTES)
    vbase = e.vn
    ACC = e.v(124, 4)
    FW = e.v(56, 4)
    FX = e.v(40, 4)
    vRA = e.v(11)
    vtop = e.vn
    vPF = e.v(2)
    vXc = e.v(2)
    vWc = e.v()
    stn0 = getattr(e, "stn", 0)

    def loader():
        if os.environ.get('LPRIO', '0') != '0':
            e(f"s_setprio {os.environ.get('LPRIO')}")
        sLw = sMi
        sWoff, sM0, sXo = sNi, sSl, sDl
        e(f"s_sub_u32 s{sLw}, s{sW}, 4")
        vD = vbase
        vXo = vbase + 2
        vWE = vbase + 4
        vWD = vbase + 10
        tmp = vbase + 16
        vT2 = vbase + 24
        e(f"v_and_b32 v{vt}, 7, v{vL}")
        e(f"v_xor_b32 v{vt}, v{vt}, v{vG}")
        e(f"v_lshrrev_b32 v{vt+1}, 3, v{vL}")
        e(f"v_mul_u32_u24 v{vt+1}, 1152, v{vt+1}")
        e(f"v_lshl_add_u32 v{vXo}, v{vt}, 4, v{vt+1}")
        e(f"v_xor_b32 v{vXo+1}, 64, v{vXo}")
        e(f"s_and_b32 s{sT}, s{sLw}, 1")
        e(f"s_lshl_b32 s{sT}, s{sT}, 3")
        e(f"s_mul_i32 s{sT+1}, s{sHg}, 144")
        for hf in range(2):
            p, r, c, sg = vt, vt + 1, vt + 2, vt + 3
            e(f"s_sub_u32 s{sT+2}, {64*hf}, s{sT}")
            e(f"v_add_u32 v{p}, s{sT+2}, v{vL}")
            e(f"v_and_b32 v{vt+4}, 0xff, v{p}")
            e(f"v_mul_u32_u24 v{r}, 2185, v{vt+4}")
            e(f"v_lshrrev_b32 v{r}, 16, v{r}")
            e(f"v_mul_u32_u24 v{c}, 30, v{r}")
            e(f"v_sub_u32 v{c}, v{vt+4}, v{c}")
            e(f"v_mul_u32_u24 v{sg}, 57, v{c}")
            e(f"v_lshrrev_b32 v{sg}, 9, v{sg}")
            e(f"v_mul_u32_u24 v{vt+4}, 9, v{sg}")
            e(f"v_sub_u32 v{vt+4}, v{c}, v{vt+4}")
            e(f"v_mul_u32_u24 v{r}, 3456, v{r}")
            e(f"v_mul_u32_u24 v{sg}, 1152, v{sg}")
            e(f"v_add3_u32 v{r}, v{r}, v{sg}, s{sT+1}")
            e(f"v_lshl_add_u32 v{r}, v{vt+4}, 4, v{r}")
            e(f"v_cmp_gt_u32 vcc, 120, v{p}")
            e(f"v_cmp_gt_u32 s[{sT+2}:{sT+3}], 27, v{c}")
            e(f"v_mov_b32 v{vt+5}, 0x{OOB:x}")
            e(f"s_and_b64 vcc, vcc, s[{sT+2}:{sT+3}]")
            e("s_nop 1")
            e(f"v_cndmask_b32 v{vD+hf}, v{vt+5}, v{r}, vcc")
        sBlk = sT + 2
        sXs_ = sT + 3
        e(f"s_lshr_b32 s{sT}, s{sI}, 2")
        e(f"s_and_b32 s{sT+1}, s{sI}, 3")
        e(f"s_lshl_b32 s{sT+1}, s{sT+1}, 1")
        e(f"s_add_u32 s{sBlk}, s{sT}, s{sT+1}")
        e(f"s_sub_u32 s{sT}, s{sBlk}, 9")
        e(f"s_cmp_ge_u32 s{sBlk}, 9")
        e(f"s_cselect_b32 s{sBlk}, s{sT}, s{sBlk}")
        e(f"s_mul_i32 s{sWoff}, s{sBlk}, {64*3456}")
        e(f"s_mul_i32 s{sT}, s{sLw}, {2*13824}")
        e(f"s_add_u32 s{sWoff}, s{sWoff}, s{sT}")
        e(f"s_add_u32 s{sWlim}, s{sT}, {576*3456}")
        e(f"s_lshl_b32 s{sM0}, s{sLw}, 12")
        e(f"s_lshl_b32 s{sT}, s{sLw}, 4")
        e(f"s_add_u32 s{sT}, s{sT}, s{sRow0}")
        e(f"s_mul_i32 s{sXo}, s{sT}, 1152")
        e(f"s_sub_u32 s{sT}, s{sRow0}, 16")
        e(f"s_max_i32 s{sT}, s{sT}, 0")
        e(f"s_mul_i32 s{sXh}, s{sT}, 1152")
        e(f"s_lshl_b32 s{sLx}, s{sLw}, 11")
        e(f"s_add_u32 s{sLx}, s{sLx}, 2048")
        e(f"s_mov_b32 s{sXs_}, {XR0}")
        e(f"s_mov_b32 s{sIt}, 0")
        e(f"s_cmp_eq_u32 s{sLw}, 0")
        e(f"s_cselect_b32 s{sHf}, s{sBr}, 0")
        make_srds()

        def issue_x(hh, lim):
            e(f"s_lshl_b32 s{sTl}, s{sBlk}, 7")
            e(f"s_cmp_lt_u32 s{sIt}, {lim}")
            e(f"s_cselect_b32 s{sTl}, s{sTl}, 0x{OOB:x}")
            e(f"s_add_u32 s{sTl+1}, s{sXs_}, s{sLx}")
            for i in range(2):
                e(f"s_add_u32 m0, s{sTl+1}, {hh*8192 + i*1024}")
                e(f"s_add_u32 s{sT}, s{sTl}, s{sXo}")
                if hh or i:
                    e(f"s_add_u32 s{sT}, s{sT}, {(hh*64 + i*8)*1152}")
                e(f"buffer_load_dwordx4 v{vXo+i}, {sr(sX,4)}, s{sT} offen lds")
            lab = e.newlab("k1h")
            e(f"s_cmp_eq_u32 s{sHf}, 0")
            e(f"s_cbranch_scc1 {lab}")
            e(f"s_add_u32 m0, s{sXs_}, {hh*1024}")
            e(f"s_add_u32 s{sT}, s{sTl}, s{sXh}")
            if hh:
                e(f"s_add_u32 s{sT}, s{sT}, {8*1152}")
            e(f"buffer_load_dwordx4 v{vXo+hh}, {sr(sX,4)}, s{sT} offen lds")
            e.label(lab)
            if hh:
                e(f"s_add_u32 s{sBlk}, s{sBlk}, 1")
                e(f"s_cmp_eq_u32 s{sBlk}, 9")
                e(f"s_cselect_b32 s{sBlk}, 0, s{sBlk}")
                e(f"s_add_u32 s{sXs_}, s{sXs_}, {XSLOT}")
                e(f"s_cmp_eq_u32 s{sXs_}, {XR0 + 3*XSLOT}")
                e(f"s_cselect_b32 s{sXs_}, {XR0}, s{sXs_}")

        def issue(par):
            e(f"s_cmp_lt_u32 s{sIt}, 18")
            e(f"s_cselect_b32 s{sTl+1}, s{sWoff}, 0x{OOB:x}")
            for j in range(2):
                for hf in range(2):
                    if WBYC and j == 1 and hf == 1:
                        continue
                    e(f"s_add_u32 m0, s{sM0}, {j*2048 + hf*1024}")
                    e(f"s_add_u32 s{sTl}, s{sTl+1}, {j*13824}")
                    e(f"buffer_load_dwordx4 v{vD+hf}, {sr(sWq,4)}, s{sTl} offen lds")
            if not XBYC:
                issue_x(par ^ 1, 17)
            e(f"s_add_u32 s{sWoff}, s{sWoff}, {32*3456}")
            e(f"s_sub_u32 s{sTl}, s{sWoff}, {576*3456}")
            e(f"s_cmp_ge_u32 s{sWoff}, s{sWlim}")
            e(f"s_cselect_b32 s{sWoff}, s{sTl}, s{sWoff}")
            e(f"s_add_u32 s{sM0}, s{sM0}, {WSLOT}")
            e(f"s_and_b32 s{sM0}, s{sM0}, 0xffff")
            e(f"s_add_u32 s{sIt}, s{sIt}, 1")

        if not XBYC:
            issue_x(0, 17)
        NG = (3 if WBYC else 4) if XBYC else 6
        e("s_branch k1_l_i0")
        e.label("k1_l_loop")
        e(f"s_cmp_eq_u32 s{sIt}, 2")
        e("s_cbranch_scc1 k1_l_first")
        e(f"s_waitcnt vmcnt({2*NG})")
        e("s_barrier")
        e.label("k1_l_i0")
        issue(0)
        e(f"s_cmp_lt_u32 s{sIt}, 4")
        e("s_cbranch_scc1 k1_l_i1")
        e(f"s_waitcnt vmcnt({2*NG})")
        e("s_barrier")
        e.label("k1_l_i1")
        issue(1)
        e(f"s_cmp_eq_u32 s{sIt}, 4")
        e("s_cbranch_scc1 k1_l_scat")
        e.label("k1_l_cont")
        e(f"s_cmp_lt_u32 s{sIt}, 22")
        e("s_cbranch_scc1 k1_l_loop")
        e.stn = stn0 + 2 if STAMP else 0
        stamp(e)
        e("s_waitcnt vmcnt(0) lgkmcnt(0)")
        e("s_barrier")
        stamp(e)
        if os.environ.get('LPRIO', '0') != '0':
            e("s_setprio 0")
        e(f"s_cmp_eq_u32 s{sBr}, 0")
        e("s_cbranch_scc1 k1_A_epi")
        e("s_branch k1_B_epi")
        e.label("k1_l_first")
        e.stn = stn0
        stamp(e)
        e(f"s_cmp_lg_u32 s{sBr}, 0")
        e("s_cbranch_scc1 k1_l_first2")
        e(f"v_subrev_u32 v{vT2}, 256, v0")
        e(f"s_mul_i32 s{sT}, s{sHg}, {4*324*2}")
        wb_issue_loads2(e, sPhi, sT, vT2, vWE, vWD, vt, 256)
        lds_zero(e, K1_WB0, WB_BYTES, vT2, tmp, 256)
        e(f"v_mov_b32 v{tmp}, 0x3f803f80")
        e(f"v_mov_b32 v{tmp+1}, 0x3f803f80")
        e(f"v_mov_b32 v{tmp+2}, {K1_ONES}")
        e(f"ds_write_b64 v{tmp+2}, {vr(tmp,2)}")
        e(f"s_waitcnt vmcnt({NG+6}) lgkmcnt(0)")
        e("s_barrier")
        stamp(e)
        e("s_branch k1_l_i0")
        e.label("k1_l_first2")
        e(f"s_waitcnt vmcnt({NG})")
        e("s_barrier")
        e.stn = stn0 + 1 if STAMP else 0
        stamp(e)
        e("s_branch k1_l_i0")
        e.label("k1_l_scat")
        e(f"s_cmp_lg_u32 s{sBr}, 0")
        e("s_cbranch_scc1 k1_l_cont")
        e(f"s_waitcnt vmcnt({2*NG})")
        wb_scatter2(e, K1_WB0, K1_DUMP2, vWE, vWD, tmp, 256)
        e("s_branch k1_l_cont")

    def lit_sel(dst, L, t, isB):
        if isB:
            e(f"s_cmp_eq_u32 s{sMi}, 0")
            e(f"s_cselect_b32 s{dst}, 0x{L[t]:x}, 0x{L[(t+3)%7]:x}") if False else (
                e(f"s_mov_b32 s{dst}, 0x{L[t]:x}"), e(f"s_mov_b32 s{dst+1}, 0x{L[(t+3)%7]:x}"),
                e(f"s_cselect_b32 s{dst}, s{dst}, s{dst+1}"))
        else:
            e(f"s_mov_b32 s{dst}, 0x{L[t]:x}")

    def compute(isB):
        tag = "B" if isB else "A"
        nrt = 5 if isB else 4
        stamp(e)
        sBlk, sXo = sSl, sDl
        if XBYC:
            e(f"v_and_b32 v{vt}, 7, v{vL}")
            e(f"v_xor_b32 v{vt}, v{vt}, v{vG}")
            e(f"v_lshrrev_b32 v{vt+1}, 3, v{vL}")
            e(f"v_mul_u32_u24 v{vt+1}, 1152, v{vt+1}")
            e(f"v_lshl_add_u32 v{vXc}, v{vt}, 4, v{vt+1}")
            e(f"v_xor_b32 v{vXc+1}, 64, v{vXc}")
            e(f"s_lshr_b32 s{sT}, s{sI}, 2")
            e(f"s_and_b32 s{sT+1}, s{sI}, 3")
            e(f"s_lshl_b32 s{sT+1}, s{sT+1}, 1")
            e(f"s_add_u32 s{sBlk}, s{sT}, s{sT+1}")
            e(f"s_sub_u32 s{sT}, s{sBlk}, 9")
            e(f"s_cmp_ge_u32 s{sBlk}, 9")
            e(f"s_cselect_b32 s{sBlk}, s{sT}, s{sBlk}")
            e(f"s_lshl_b32 s{sBlk}, s{sBlk}, 7")
            e(f"s_lshl_b32 s{sT}, s{sW}, 4")
            e(f"s_add_u32 s{sT}, s{sT}, s{sRow0}")
            e(f"s_mul_i32 s{sXo}, s{sT}, 1152")
            e(f"s_sub_u32 s{sT}, s{sRow0}, 16")
            e(f"s_max_i32 s{sT}, s{sT}, 0")
            e(f"s_mul_i32 s{sXh}, s{sT}, 1152")
            e(f"s_cmp_eq_u32 s{sW}, 0")
            e(f"s_cselect_b32 s{sXh}, s{sXh}, 0x{OOB:x}")
            e(f"s_lshl_b32 s{sLx}, s{sW}, 11")
            e(f"s_add_u32 s{sLx}, s{sLx}, {XR0 + 2048}")

        sWo_c = sIt
        if WBYC:
            e(f"s_and_b32 s{sT}, s{sW}, 1")
            e(f"s_lshl_b32 s{sT}, s{sT}, 3")
            e(f"s_mul_i32 s{sT+1}, s{sHg}, 144")
            p, r, c, sg = vt, vt + 1, vt + 2, vt + 3
            e(f"s_sub_u32 s{sT+2}, 64, s{sT}")
            e(f"v_add_u32 v{p}, s{sT+2}, v{vL}")
            e(f"v_mul_u32_u24 v{r}, 2185, v{p}")
            e(f"v_lshrrev_b32 v{r}, 16, v{r}")
            e(f"v_mul_u32_u24 v{c}, 30, v{r}")
            e(f"v_sub_u32 v{c}, v{p}, v{c}")
            e(f"v_mul_u32_u24 v{sg}, 57, v{c}")
            e(f"v_lshrrev_b32 v{sg}, 9, v{sg}")
            e(f"v_mul_u32_u24 v{vt+4}, 9, v{sg}")
            e(f"v_sub_u32 v{vt+4}, v{c}, v{vt+4}")
            e(f"v_mul_u32_u24 v{r}, 3456, v{r}")
            e(f"v_mul_u32_u24 v{sg}, 1152, v{sg}")
            e(f"v_add3_u32 v{r}, v{r}, v{sg}, s{sT+1}")
            e(f"v_lshl_add_u32 v{r}, v{vt+4}, 4, v{r}")
            e(f"v_cmp_gt_u32 vcc, 120, v{p}")
            e(f"v_cmp_gt_u32 s[{sT+2}:{sT+3}], 27, v{c}")
            e(f"v_mov_b32 v{vt+5}, 0x{OOB:x}")
            e(f"s_and_b64 vcc, vcc, s[{sT+2}:{sT+3}]")
            e("s_nop 1")
            e(f"v_cndmask_b32 v{vWc}, v{vt+5}, v{r}, vcc")
            e(f"s_mul_i32 s{sWo_c}, s{sBlk}, {64*3456//128}")
            e(f"s_lshl_b32 s{sT}, s{sW}, 1")
            e(f"s_add_u32 s{sT}, s{sT}, 1")
            e(f"s_mul_i32 s{sT}, s{sT}, 13824")
            e(f"s_add_u32 s{sWo_c}, s{sWo_c}, s{sT}")
            e(f"s_add_u32 s{sWlim}, s{sT}, {576*3456}")
            e(f"s_lshl_b32 s{sHf}, s{sW}, 12")
            e(f"s_add_u32 s{sHf}, s{sHf}, 3072")
        order = []

        def wiss(g):
            if not WBYC or g >= 18:
                return []
            order.append(("W", g))
            return [f"s_add_u32 m0, s{sHf}, {(g % 4) * WSLOT}", "s_nop 0",
                    f"buffer_load_dwordx4 v{vWc}, {sr(sWq,4)}, s{sWo_c} offen lds",
                    f"s_add_u32 s{sWo_c}, s{sWo_c}, {32*3456}", f"s_sub_u32 s{sT}, s{sWo_c}, {576*3456}",
                    f"s_cmp_ge_u32 s{sWo_c}, s{sWlim}", f"s_cselect_b32 s{sWo_c}, s{sT}, s{sWo_c}"]

        def nwait(j):
            last = -1
            for i, (k, idx) in enumerate(order):
                if (k == "W" and idx <= j + 1) or (k == "X" and idx <= j + 2):
                    last = i
            return len(order) - 1 - last

        def xiss(h):
            if not XBYC or h >= 18:
                return []
            hh = h & 1
            slot = ((h >> 1) % 3) * XSLOT
            order.extend([("X", h), ("X", h)])
            L = []
            for i in range(2):
                L.append(f"s_add_u32 m0, s{sLx}, {slot + hh*8192 + i*1024}")
                L.append(f"s_add_u32 s{sT}, s{sBlk}, s{sXo}")
                if hh or i:
                    L.append(f"s_add_u32 s{sT}, s{sT}, {(hh*64 + i*8)*1152}")
                L.append(f"buffer_load_dwordx4 v{vXc+i}, {sr(sX,4)}, s{sT} offen lds")
            if isB:
                lab = e.newlab("k1c")
                L.append(f"s_cmp_lg_u32 s{sW}, 0")
                L.append(f"s_cbranch_scc1 {lab}")
                L.append(f"s_mov_b32 m0, {XR0 + slot + hh*1024}")
                L.append(f"s_add_u32 s{sT}, s{sBlk}, s{sXh}")
                if hh:
                    L.append(f"s_add_u32 s{sT}, s{sT}, {8*1152}")
                L.append(f"buffer_load_dwordx4 v{vXc+hh}, {sr(sX,4)}, s{sT} offen lds")
                L.append(lab + ":")
            if hh:
                L.append(f"s_add_u32 s{sBlk}, s{sBlk}, 128")
                L.append(f"s_cmp_eq_u32 s{sBlk}, 1152")
                L.append(f"s_cselect_b32 s{sBlk}, 0, s{sBlk}")
            return L
        for x in wiss(0) + xiss(0) + xiss(1) + wiss(1) + xiss(2):
            e(x)
        base = vt + 6
        e(f"v_lshlrev_b32 v{base}, 12, v{vG}")
        e(f"v_and_b32 v{vt}, 1, v{vG}")
        e(f"v_lshl_add_u32 v{base}, v{vt}, 7, v{base}")
        e(f"v_mul_u32_u24 v{vt}, 480, v{vR4}")
        e(f"s_mul_i32 s{sT+2}, s{sNi}, 72")
        e(f"v_add3_u32 v{base}, v{base}, v{vt}, s{sT+2}")
        e(f"v_lshlrev_b32 v{vt+1}, 3, v{vC4}")
        for t in range(7):
            lit_sel(sT, LITW, t, isB)
            e(f"v_bfe_u32 v{vt}, s{sT}, v{vt+1}, 8")
            e(f"v_lshl_add_u32 v{vRA+t}, v{vt}, 3, v{base}")
        e(f"v_lshrrev_b32 v{vt}, 1, v{vL15}")
        e(f"v_xor_b32 v{vt}, v{vt}, v{vG}")
        e(f"v_lshlrev_b32 v{vt+1}, 7, v{vL15}")
        e(f"v_lshl_add_u32 v{vt}, v{vt}, 4, v{vt+1}")
        e(f"v_add_u32 v{vRA+9}, {XR0}, v{vt}")
        e(f"v_xor_b32 v{vRA+10}, 64, v{vRA+9}")
        e(f"s_lshl_b32 s{sT}, s{sMi}, 13")
        e(f"s_add_u32 s{sT}, s{sT}, 2048")
        e(f"v_add_u32 v{vRA+7}, s{sT}, v{vRA+9}")
        e(f"v_add_u32 v{vRA+8}, s{sT}, v{vRA+10}")

        def reads(st):
            fb = st & 1
            xo = ((st >> 1) % 3) * XSLOT
            wo = (st % 4) * WSLOT
            L = []
            for rt in range(4):
                L.append(f"ds_read_b128 {vr(FX + fb*20 + rt*4, 4)}, v{vRA+7+fb} offset:{xo + rt*2048}")
            if isB:
                L.append(f"ds_read_b128 {vr(FX + fb*20 + 16, 4)}, v{vRA+9+fb} offset:{xo}")
            for t in range(7):
                for h in range(2):
                    L.append(f"ds_read_b64_tr_b16 {vr(FW + fb*28 + t*4 + h*2, 2)}, v{vRA+t} offset:{wo + h*2048}")
            return L

        if XBYC:
            e(f"s_waitcnt vmcnt({nwait(-1)})")
        e("s_barrier")
        stamp(e)
        for r in reads(0) + wiss(2) + xiss(3) + wiss(3) + xiss(4):
            e(r)
        for st in range(18):
            fb = st & 1
            if XBYC:
                e(f"s_waitcnt vmcnt({nwait(st)}) lgkmcnt(0)")
            else:
                e("s_waitcnt lgkmcnt(0)")
            e("s_barrier")
            M = []
            for t in range(7):
                for rt in range(4):
                    M.append(mf(ACC + (t * 4 + rt) * 4, FW + fb * 28 + t * 4, FX + fb * 20 + rt * 4, "0" if st == 0 else None))
                if isB and t < 3:
                    M.append(mf(ACC + 112 + t * 4, FW + fb * 28 + t * 4, FX + fb * 20 + 16, "0" if st == 0 else None))
            oth = reads(st + 1) if st < 17 else []
            xi = wiss(st + 4) + xiss(st + 5)
            oi = 0
            for i, m in enumerate(M):
                if os.environ.get('K1NOMFMA', '0') == '0':
                    e(m)
                if oi < len(oth):
                    e(oth[oi]); oi += 1
                elif xi:
                    for x in xi:
                        e(x)
                    xi = []
            assert oi == len(oth) and not xi
        stamp(e)
        e("s_waitcnt lgkmcnt(0)")
        e("s_barrier")
        stamp(e)

    def prefetch_wo():
        e(f"s_cmp_lt_u32 s{sI}, 16")
        e(f"s_cselect_b32 s{sPB}, s{sPP+2}, s{sPO}")
        e(f"s_cselect_b32 s{sPB+1}, s{sPP+3}, s{sPO+1}")
        e(f"s_and_b32 s{sTl+1}, s{sI}, 15")
        e(f"s_mul_i32 s{sTl+1}, s{sTl+1}, 324")
        e(f"s_mul_i32 s{sTl}, s{sW}, 41")
        e(f"s_add_u32 s{sTl+1}, s{sTl+1}, s{sTl}")
        e(f"v_min_u32 v{vt}, 40, v{vL}")
        e(f"v_add_u32 v{vt}, s{sTl+1}, v{vt}")
        e(f"v_lshlrev_b32 v{vt}, 7, v{vt}")
        srd(e, sX, sPB, WO_BYTES)
        e(f"buffer_load_dword v{vPF}, v{vt}, {sr(sX,4)}, 0 offen")

    e(f"s_cmp_lt_u32 s{sW}, 4")
    e("s_cbranch_scc1 k1_comp")
    loader()
    e.label("k1_comp")
    e.stn = stn0
    if os.environ.get('CODEPF', '1') != '0':
        e(f"s_and_b32 s{sT}, s{sI}, 7")
        e(f"s_cmp_lg_u32 s{sT}, 0")
        e("s_cbranch_scc1 k1_nopf")
        e(f"s_getpc_b64 {sr(sX,2)}")
        e.label("k1_pc")
        e(f"s_sub_u32 s{sX}, s{sX}, k1_pc - k1_kernel")
        e(f"s_subb_u32 s{sX+1}, s{sX+1}, 0")
        e(f"s_and_b32 s{sX+1}, s{sX+1}, 0xffff")
        e(f"s_mov_b32 s{sX+2}, code_end - k1_kernel")
        e(f"s_mov_b32 s{sX+3}, 0x00020000")
        e(f"v_lshlrev_b32 v{vt}, 7, v0")
        e(f"buffer_load_dword v{vPF}, v{vt}, {sr(sX,4)}, 0 offen")
        e(f"s_mov_b32 s{sT}, 32768")
        e(f"buffer_load_dword v{vPF}, v{vt}, {sr(sX,4)}, s{sT} offen")
        e.label("k1_nopf")
    make_srds()
    e(f"s_cmp_eq_u32 s{sBr}, 1")
    e("s_cbranch_scc1 k1_B")
    compute(False)
    PK = FW
    for u in range(28):
        a = ACC + u * 4
        e(f"v_cvt_pk_bf16_f32 v{PK+2*u}, v{a}, v{a+1}")
        e(f"v_cvt_pk_bf16_f32 v{PK+2*u+1}, v{a+2}, v{a+3}")
    vRowL = vt + 6
    vG8 = vt + 7
    e(f"s_lshl_b32 s{sT+2}, s{sMi}, 6")
    e(f"v_add_u32 v{vt}, s{sT+2}, v{vL15}")
    e(f"v_mul_u32_u24 v{vRowL}, {TA_PITCH}, v{vt}")
    e(f"s_mul_i32 s{sT+3}, s{sNi}, 72")
    e(f"v_add_u32 v{vRowL}, s{sT+3}, v{vRowL}")
    e(f"v_lshlrev_b32 v{vG8}, 3, v{vG}")
    for t in range(5):
        e(f"s_mov_b32 s{sT}, 0x{LITA[t]:x}")
        e(f"v_bfe_u32 v{vt}, s{sT}, v{vG8}, 8")
        e(f"v_lshl_add_u32 v{vt}, v{vt}, 3, v{vRowL}")
        if t == 4:
            e(f"v_cmp_lt_u32 vcc, 1, v{vG}")
            e(f"v_subrev_u32 v{vt+1}, s{sT+3}, v{vt}")
            e("s_nop 0")
            e(f"v_cndmask_b32 v{vt}, v{vt}, v{vt+1}, vcc")
        for rt in range(4):
            e(f"ds_write_b64 v{vt}, {vr(PK + (t*4+rt)*2, 2)} offset:{rt*16*TA_PITCH}")
    e(f"s_lshl_b32 s{sT}, s{sRb}, 3")
    e(f"s_lshl_b32 s{sT+1}, s{sMi}, 2")
    e(f"s_add_u32 s{sT}, s{sT}, s{sT+1}")
    e(f"s_mul_i32 s{sT}, s{sT}, 72")
    e(f"s_mul_i32 s{sT+1}, s{sHg}, 9")
    e(f"s_add_u32 s{sT}, s{sT}, s{sT+1}")
    e(f"s_lshl_b32 s{sT}, s{sT}, 8")
    e(f"s_add_u32 s{sT}, s{sT}, {WS_Q}")
    e(f"s_mul_i32 s{sT+2}, s{sNi}, 9")
    for t in range(4, 7):
        e(f"s_mov_b32 s{sT+1}, 0x{LITQ[t]:x}")
        e(f"v_bfe_u32 v{vt}, s{sT+1}, v{vG8}, 8")
        e(f"v_cmp_ne_u32 vcc, 255, v{vt}")
        e(f"v_add_u32 v{vt}, s{sT+2}, v{vt}")
        e(f"v_lshrrev_b32 v{vt+1}, 1, v{vt}")
        e(f"v_and_b32 v{vt}, 1, v{vt}")
        e(f"v_lshlrev_b32 v{vt+1}, 8, v{vt+1}")
        e(f"v_lshl_add_u32 v{vt+1}, v{vt}, 3, v{vt+1}")
        e(f"v_lshl_add_u32 v{vt+1}, v{vL15}, 4, v{vt+1}")
        e(f"v_mov_b32 v{vt+2}, 0x{OOB:x}")
        e(f"v_cndmask_b32 v{vt+3+(t-4)}, v{vt+2}, v{vt+1}, vcc")
    for rt in range(4):
        e(f"s_add_u32 s{sT+1}, s{sT}, {rt*18432}")
        for t in range(4, 7):
            e(f"buffer_store_dwordx2 {vr(PK + (t*4+rt)*2, 2)}, v{vt+3+(t-4)}, {sr(sWs,4)}, s{sT+1} offen")
    e.label("k1_A_epi")
    prefetch_wo()
    e(f"s_cmp_lg_u32 s{sRb}, 0")
    e("s_cbranch_scc1 k1_A_nodump")
    e(f"s_cmp_lg_u32 s{sHg}, 0")
    e("s_cbranch_scc1 k1_A_nodump")
    e(f"v_lshlrev_b32 v{vt+4}, 3, v0")
    e(f"v_mov_b32 v{vt+2}, 0")
    e(f"v_mov_b32 v{vt+3}, 0")
    e(f"s_mov_b32 s{sTl}, {WS_FL}")
    e(f"buffer_store_dwordx2 {vr(vt+2,2)}, v{vt+4}, {sr(sWs,4)}, s{sTl} offen")
    e.label("k1_A_nodump")
    e("s_waitcnt lgkmcnt(0)")
    e("s_barrier")
    stamp(e)
    XR = ACC + 64
    BK = FX
    AW = ACC
    P = FX + 12
    e(f"s_lshl_b32 s{sT}, s{sW}, 4")
    e(f"v_add_u32 v{vt}, s{sT}, v{vL15}")
    e(f"v_mul_u32_u24 v{vt+1}, {TA_PITCH}, v{vt}")
    e(f"v_lshl_add_u32 v{vt+1}, v{vG}, 4, v{vt+1}")
    for st in range(3):
        e(f"ds_read_b128 {vr(BK+st*4,4)}, v{vt+1} offset:{st*64}")
    e(f"v_mul_u32_u24 v{vt+2}, {WB_PITCH}, v{vL15}")
    e(f"v_lshl_add_u32 v{vt+2}, v{vG}, 4, v{vt+2}")
    e(f"v_add_u32 v{vt+3}, {K1_WB0}, v{vt+2}")
    for cf in range(5):
        for st in range(3):
            e(f"ds_read_b128 {vr(AW+(cf*3+st)*4,4)}, v{vt+3} offset:{cf*16*WB_PITCH + st*64}")
    sL = e.s(2)
    e(f"s_mov_b32 s{sL}, 0x{LOG2E:x}")
    e(f"s_mov_b32 s{sL+1}, 0x{LOG2E:x}")
    for cf in range(5):
        e(f"s_waitcnt lgkmcnt({12 - 3*cf})")
        for st in range(3):
            mfma(e, P + cf * 4, AW + (cf * 3 + st) * 4, BK + st * 4, "0" if st == 0 else None)
    e(f"s_lshl_b32 s{sTl}, s{sRb}, 3")
    e(f"s_add_u32 s{sTl}, s{sTl}, s{sW}")
    e(f"s_cmp_lg_u32 s{sTl}, 7")
    e("s_cbranch_scc1 k1_A_nofd")
    e(f"v_lshlrev_b32 v{vt+4}, 4, v{vL}")
    e(f"s_mul_i32 s{sTl}, s{sHg}, 15360")
    e(f"s_add_u32 s{sTl}, s{sTl}, {WS_WB}")
    for f in range(15):
        if f and f % 4 == 0:
            e(f"s_add_u32 s{sTl}, s{sTl}, 4096")
        e(f"buffer_store_dwordx4 {vr(AW+f*4,4)}, v{vt+4}, {sr(sWs,4)}, s{sTl} offen offset:{(f%4)*1024}")
    e.label("k1_A_nofd")
    e("s_nop 7")
    E1 = XR
    E2 = XR + 18
    PH = XR + 36
    softmax_pm(e, P, E1, E2, PH, XR + 56 - 4 + 4, sL) if False else softmax_pm(e, P, E1, E2, PH, FW, sL)
    e(f"v_mul_u32_u24 v{vt+1}, {PHI_PITCH}, v{vt}")
    e(f"v_mul_u32_u24 v{vt+2}, 80, v{vG}")
    e(f"v_add_u32 v{vt+1}, v{vt+1}, v{vt+2}")
    for i in range(4):
        e(f"ds_write_b128 v{vt+1}, {vr(PH+i*4,4)} offset:{PHI0 + i*16}")
    e(f"ds_write_b64 v{vt+1}, {vr(PH+16,2)} offset:{PHI0 + 64}")
    sHh, sXx = sT + 2, sT + 3
    e(f"s_lshr_b32 s{sHh}, s{sW}, 1")
    e(f"s_and_b32 s{sXx}, s{sW}, 1")
    e(f"v_lshl_add_u32 v{vt}, v{vG}, 3, v{vR4}")
    e(f"v_mul_u32_u24 v{vt+1}, {PHI_PITCH}, v{vt}")
    e(f"v_lshl_add_u32 v{vt+1}, v{vC4}, 3, v{vt+1}")
    e(f"s_mul_i32 s{sT}, s{sHh}, 80")
    e(f"s_add_u32 s{sT}, s{sT}, {PHI0}")
    e(f"v_add_u32 v{vt+1}, s{sT}, v{vt+1}")
    e(f"v_mul_u32_u24 v{vt+2}, {TA_PITCH}, v{vt}")
    e(f"s_lshr_b32 s{sT}, s{sHh}, 1")
    e(f"s_mul_i32 s{sT}, s{sT}, 72")
    e(f"s_add_u32 s{sT}, s{sT}, 144")
    e(f"s_and_b32 s{sT+1}, s{sHh}, 1")
    e(f"s_mul_i32 s{sT+1}, s{sT+1}, 40")
    e(f"s_cmp_eq_u32 s{sXx}, 0")
    e(f"s_cselect_b32 s{sT+1}, s{sT+1}, 32")
    e(f"s_add_u32 s{sT}, s{sT}, s{sT+1}")
    e(f"v_lshl_add_u32 v{vt+3}, v{vC4}, 3, v{vt+2}")
    e(f"v_add_u32 v{vt+3}, s{sT}, v{vt+3}")
    sMask = e.s(2)
    e(f"v_cmp_lt_u32 {sr(sMask,2)}, 0, v{vC4}")
    e(f"s_cmp_eq_u32 s{sXx}, 0")
    e(f"s_cselect_b64 {sr(sMask,2)}, 0, {sr(sMask,2)}")
    e(f"v_mov_b32 v{vt+4}, {K1_ONES}")
    BA = FW + 8
    for ks in range(4):
        for h in range(2):
            off = (ks * 32 + h * 4)
            e(f"v_add_u32 v{BA+ks*2+h}, {off*TA_PITCH}, v{vt+3}")
            e(f"v_cndmask_b32 v{BA+ks*2+h}, v{BA+ks*2+h}, v{vt+4}, {sr(sMask,2)}")
    e("s_waitcnt lgkmcnt(0)")
    e("s_barrier")
    stamp(e)
    AF = ACC
    BF = ACC + 48
    KV = FX
    for ks in range(4):
        for h in range(2):
            off = (ks * 32 + h * 4)
            e(f"ds_read_b64_tr_b16 {vr(BF+ks*4+h*2,2)}, v{BA+ks*2+h}")
            for ft in range(3):
                e(f"ds_read_b64_tr_b16 {vr(AF+(ks*3+ft)*4+h*2,2)}, v{vt+1} offset:{off*PHI_PITCH + ft*32}")
    e(f"s_and_b32 s{sT+1}, s{sHh}, 1")
    e(f"s_lshl_b32 s{sT}, s{sT+1}, 1")
    e(f"v_add_u32 v{vt}, s{sT}, v{vL15}")
    e(f"v_subrev_u32 v{vt+1}, s{sT}, v{vL15}")
    e(f"s_xor_b32 s{sT+1}, s{sT+1}, 1")
    e(f"s_lshl_b32 s{sT+1}, s{sT+1}, 4")
    e(f"v_cmp_gt_u32 vcc, 2, v{vt+1}")
    e(f"v_add_u32 v{vt+1}, s{sT+1}, v{vt+1}")
    e(f"v_mov_b32 v{vt+2}, 0x20000")
    e("s_nop 0")
    e(f"v_cndmask_b32 v{vt+1}, v{vt+2}, v{vt+1}, vcc")
    e(f"v_cmp_eq_u32 vcc, 4, v{vL15}")
    e("s_nop 1")
    e(f"v_cndmask_b32 v{vt+1}, v{vt+1}, 18, vcc")
    e(f"s_cmp_eq_u32 s{sXx}, 0")
    e(f"s_cselect_b64 vcc, -1, 0")
    e("s_nop 1")
    e(f"v_cndmask_b32 v{vt}, v{vt+1}, v{vt}, vcc")
    e(f"v_mul_u32_u24 v{vt}, 72, v{vt}")
    e(f"v_lshl_add_u32 v{vt}, v{vG}, 3, v{vt}")
    e(f"s_lshl_b32 s{sT}, s{sRb}, 5")
    e(f"s_lshl_b32 s{sT+1}, s{sHg}, 2")
    e(f"s_add_u32 s{sT}, s{sT}, s{sT+1}")
    e(f"s_add_u32 s{sT}, s{sT}, s{sHh}")
    e(f"s_mul_i32 s{sT}, s{sT}, 1368")
    e(f"s_add_u32 s{sT}, s{sT}, {WS_P}")
    e(f"v_cmp_eq_u32 vcc, 0, v{vG}")
    e(f"v_mov_b32 v{vt+2}, 0x{OOB:x}")
    e("s_nop 1")
    e(f"v_cndmask_b32 v{vt+1}, v{vt+2}, v{vt}, vcc")
    for ks in range(4):
        e(f"s_waitcnt lgkmcnt({min(15, 24 - 8*ks)})" if ks < 3 else "s_waitcnt lgkmcnt(0)")
        for ft in range(3):
            mfma(e, KV + ft * 4, AF + (ks * 3 + ft) * 4, BF + ks * 4, "0" if ks == 0 else None)
    e("s_nop 7")
    e("s_nop 1")
    for ft in range(3):
        e(f"v_cvt_pk_bf16_f32 v{KV+12+2*ft}, v{KV+4*ft}, v{KV+4*ft+1}")
        e(f"v_cvt_pk_bf16_f32 v{KV+13+2*ft}, v{KV+4*ft+2}, v{KV+4*ft+3}")
    e(f"buffer_store_dwordx2 {vr(KV+12,2)}, v{vt}, {sr(sWs,4)}, s{sT} offen")
    e(f"buffer_store_dwordx2 {vr(KV+14,2)}, v{vt}, {sr(sWs,4)}, s{sT} offen offset:32")
    e(f"buffer_store_dwordx2 {vr(KV+16,2)}, v{vt+1}, {sr(sWs,4)}, s{sT} offen offset:64")
    stamp_dump(e, sWs, 0, vt, sT)
    e("s_endpgm")
    e.label("k1_B")
    e.stn = stn0
    compute(True)
    PK = FW
    for u in range(31):
        a = ACC + u * 4
        e(f"v_cvt_pk_bf16_f32 v{PK+2*u}, v{a}, v{a+1}")
        e(f"v_cvt_pk_bf16_f32 v{PK+2*u+1}, v{a+2}, v{a+3}")
    vRowL = vt + 6
    vG8 = vt + 7
    e(f"v_mul_u32_u24 v{vRowL}, {TB_PITCH}, v{vL15}")
    e(f"s_mul_i32 s{sT+3}, s{sNi}, 80")
    e(f"v_add_u32 v{vRowL}, s{sT+3}, v{vRowL}")
    e(f"v_lshlrev_b32 v{vG8}, 3, v{vG}")
    sMo = sT + 2
    e(f"s_lshl_b32 s{sMo}, s{sMi}, 6")
    e(f"s_add_u32 s{sMo}, s{sMo}, 16")
    e(f"s_mul_i32 s{sMo}, s{sMo}, {TB_PITCH}")
    for t in range(7):
        lit_sel(sT, LITB, t, True)
        e(f"v_bfe_u32 v{vt}, s{sT}, v{vG8}, 8")
        e(f"v_lshl_add_u32 v{vt}, v{vt}, 3, v{vRowL}")
        e(f"v_add_u32 v{vt+1}, s{sMo}, v{vt}")
        for rt in range(4):
            e(f"ds_write_b64 v{vt+1}, {vr(PK + (t*4+rt)*2, 2)} offset:{rt*16*TB_PITCH}")
        if t < 3:
            e(f"ds_write_b64 v{vt}, {vr(PK + (28+t)*2, 2)}")
    e.label("k1_B_epi")
    prefetch_wo()
    base = ACC
    Q = base
    KK = base + 10
    VV = base + 90
    LG = base + 170
    assert LG + 8 <= vtop
    O = KK
    AL = KK + 20
    AH = KK + 28
    vM, vR, vS = vt + 4, vt + 5, vt + 6
    e(f"s_and_b32 s{sT}, s{sW}, 3")
    e(f"s_lshr_b32 s{sT+1}, s{sW}, 2")
    e(f"s_lshl_b32 s{sT+1}, s{sT+1}, 6")
    e(f"v_add_u32 v{vS}, s{sT+1}, v{vL}")
    e(f"v_add_u32 v{vt}, 2, v{vS}")
    e(f"v_mul_u32_u24 v{vt}, {TB_PITCH}, v{vt}")
    e(f"s_lshr_b32 s{sT+2}, s{sT}, 1")
    e(f"s_mul_i32 s{sT+2}, s{sT+2}, 80")
    e(f"s_and_b32 s{sT+3}, s{sT}, 1")
    e(f"s_mul_i32 s{sTl}, s{sT+3}, 48")
    e(f"s_add_u32 s{sTl}, s{sTl}, s{sT+2}")
    e(f"v_add_u32 v{vM}, s{sTl}, v{vt}")
    e(f"s_lshl_b32 s{sTl}, s{sT+3}, 2")
    e(f"s_add_u32 s{sTl}, s{sTl}, s{sT+2}")
    e(f"s_add_u32 s{sTl}, s{sTl}, 32")
    e(f"v_add_u32 v{vR}, s{sTl}, v{vt}")
    vO = vt + 7
    e(f"v_mul_u32_u24 v{vO}, 144, v{vS}")
    e(f"s_mul_i32 s{sTl}, s{sT}, 36")
    e(f"s_add_u32 s{sTl}, s{sTl}, {OB0}")
    e(f"v_add_u32 v{vO}, s{sTl}, v{vO}")
    e(f"v_add_u32 v{vS}, s{sRow0}, v{vS}")
    sMk = e.s(16, 2)
    for w in range(1, 8):
        e(f"v_cmp_le_u32 {sr(sMk+2*w,2)}, {2*w}, v{vS}")
    e("s_waitcnt lgkmcnt(0)")
    e("s_barrier")
    stamp(e)

    def rdseg(dst, typ, w):
        off = (14 - 2 * w) * TB_PITCH + typ * 160
        e(f"ds_read_b128 {vr(dst,4)}, v{vM} offset:{off}")
        e(f"ds_read_b128 {vr(dst+4,4)}, v{vM} offset:{off+16}")
        e(f"ds_read_b32 v{dst+8}, v{vR} offset:{off}")

    rdseg(Q, 0, 0)
    for w in range(8):
        rdseg(KK + w * 10, 1, w)
    for w in range(8):
        e(f"v_mov_b32 v{LG+w}, 0")
    e("s_waitcnt lgkmcnt(12)")
    for w in range(4):
        rdseg(VV + w * 10, 2, w)
    for p in range(9):
        for w in range(4):
            e(f"v_dot2c_f32_bf16 v{LG+w}, v{Q+p}, v{KK+w*10+p}")
    e("s_waitcnt lgkmcnt(12)")
    for w in range(4, 8):
        rdseg(VV + w * 10, 2, w)
    for p in range(9):
        for w in range(4, 8):
            e(f"v_dot2c_f32_bf16 v{LG+w}, v{Q+p}, v{KK+w*10+p}")
    e(f"v_mov_b32 v{vt}, 0xf149f2ca")
    e("s_nop 2")
    for w in range(1, 8):
        e(f"v_cndmask_b32 v{LG+w}, v{vt}, v{LG+w}, {sr(sMk+2*w,2)}")
    e(f"v_max3_f32 v{vt}, v{LG}, v{LG+1}, v{LG+2}")
    e(f"v_max3_f32 v{vt}, v{vt}, v{LG+3}, v{LG+4}")
    e(f"v_max3_f32 v{vt}, v{vt}, v{LG+5}, v{LG+6}")
    e(f"v_max_f32 v{vt}, v{vt}, v{LG+7}")
    import struct, math
    cval = struct.unpack("<I", struct.pack("<f", (18 ** -0.5) * math.log2(math.e)))[0]
    e(f"s_mov_b32 s{sT+2}, 0x{cval:x}")
    e(f"v_mul_f32 v{vt}, s{sT+2}, v{vt}")
    for w in range(8):
        e(f"v_fma_f32 v{LG+w}, v{LG+w}, s{sT+2}, -v{vt}")
    for w in range(8):
        e(f"v_exp_f32 v{LG+w}, v{LG+w}")
    e("s_nop 0")
    e(f"v_add_f32 v{vt}, v{LG}, v{LG+1}")
    for w in range(2, 8):
        e(f"v_add_f32 v{vt}, v{vt}, v{LG+w}")
    e(f"v_rcp_f32 v{vt}, v{vt}")
    for i in range(18):
        e(f"v_mov_b32 v{O+i}, 0")
    for w in range(8):
        e(f"v_mul_f32 v{LG+w}, v{LG+w}, v{vt}")
    for w in range(8):
        e(f"v_cvt_pk_bf16_f32 v{AL+w}, v{LG+w}, 0")
        e(f"v_cvt_pk_bf16_f32 v{AH+w}, 0, v{LG+w}")
    e("s_waitcnt lgkmcnt(0)")
    for w in range(8):
        for p in range(9):
            e(f"v_dot2c_f32_bf16 v{O+2*p}, v{AL+w}, v{VV+w*10+p}")
            e(f"v_dot2c_f32_bf16 v{O+2*p+1}, v{AH+w}, v{VV+w*10+p}")
    e("s_nop 2")
    OP = Q
    for p in range(9):
        e(f"v_cvt_pk_bf16_f32 v{OP+p}, v{O+2*p}, v{O+2*p+1}")
    e(f"s_lshl_b32 s{sTl}, s{sT+3}, 2")
    e(f"v_add_u32 v{vt}, s{sTl}, v{vO}")
    for i in range(4):
        e(f"ds_write_b64 v{vt}, {vr(OP+2*i,2)} offset:{8*i}")
    e(f"s_xor_b32 s{sT+3}, s{sT+3}, 1")
    e(f"s_lshl_b32 s{sT+3}, s{sT+3}, 5")
    e(f"v_add_u32 v{vt+1}, s{sT+3}, v{vO}")
    e(f"ds_write_b32 v{vt+1}, v{OP+8}")
    e(f"s_lshl_b32 s{sT}, s{sW}, 4")
    e(f"v_add_u32 v{vt}, s{sT}, v{vL15}")
    e(f"v_mul_u32_u24 v{vt}, 144, v{vt}")
    e(f"v_lshl_add_u32 v{vt}, v{vG}, 4, v{vt}")
    e(f"v_add_u32 v{vt}, {OB0}, v{vt}")
    e(f"v_lshlrev_b32 v{vt+1}, 4, v{vL}")
    e(f"v_cmp_eq_u32 vcc, 0, v{vG}")
    e(f"v_mov_b32 v{vt+2}, 0x{OOB:x}")
    e(f"s_lshl_b32 s{sT}, s{sRb}, 3")
    e(f"s_add_u32 s{sT}, s{sT}, s{sW}")
    e(f"v_cndmask_b32 v{vt+2}, v{vt+2}, v{vt+1}, vcc")
    e(f"s_mul_i32 s{sT}, s{sT}, 72")
    e(f"s_mul_i32 s{sT+1}, s{sHg}, 9")
    e(f"s_add_u32 s{sT}, s{sT}, s{sT+1}")
    e(f"s_lshl_b32 s{sT}, s{sT}, 8")
    e(f"s_add_u32 s{sT}, s{sT}, {WS_OB}")
    e("s_waitcnt lgkmcnt(0)")
    e("s_barrier")
    CO = KK
    for i in range(3):
        e(f"ds_read_b128 {vr(CO+4*i,4)}, v{vt} offset:{64*i}")
    for i in range(3):
        e(f"s_waitcnt lgkmcnt({2-i})")
        e(f"buffer_store_dwordx4 {vr(CO+4*i,4)}, v{vt+1 if i < 2 else vt+2}, {sr(sWs,4)}, s{sT} offen offset:{1024*i}")
    stamp_dump(e, sWs, 0, vt, sT)
    e("s_endpgm")
    e.label(Lend)
    e("s_endpgm")
    return e.vmax, e.smax


GEMM_LDS = 576 * 128


def gemm_pre(e, NW, sRbk, sNb, sW, vL, vL15, vG, vR4, vC4, vt, sT):
    g = {}
    sRt, sRot = e.s(), e.s()
    e(f"s_mul_i32 s{sRt}, s{sRbk}, {NW}")
    e(f"s_add_u32 s{sRt}, s{sRt}, s{sW}")
    e(f"s_lshl_b32 s{sRot}, s{sRbk}, 1")
    e(f"s_add_u32 s{sRot}, s{sRot}, s{sNb}")
    e(f"s_mul_i32 s{sT}, s{sRot}, 7282")
    e(f"s_lshr_b32 s{sT}, s{sT}, 16")
    e(f"s_mul_i32 s{sT}, s{sT}, 9")
    e(f"s_sub_u32 s{sRot}, s{sRot}, s{sT}")
    vX = e.v()
    e(f"v_lshlrev_b32 v{vX}, 4, v{vL}")
    vD = e.v(2)
    e(f"v_and_b32 v{vt}, 1, v{vG}")
    e(f"v_lshlrev_b32 v{vt}, 1, v{vt}")
    e(f"v_and_b32 v{vt+1}, 7, v{vL}")
    e(f"v_xor_b32 v{vt}, v{vt}, v{vt+1}")
    e(f"v_lshrrev_b32 v{vt+1}, 3, v{vL}")
    e(f"v_mul_u32_u24 v{vt+1}, 1152, v{vt+1}")
    e(f"v_lshl_add_u32 v{vD}, v{vt}, 4, v{vt+1}")
    e(f"v_xor_b32 v{vD+1}, 64, v{vD}")
    g.update(sRt=sRt, sRot=sRot, vX=vX, vD=vD)
    return g


W2OFF = GEMM_LDS
STG0 = 2 * GEMM_LDS
K23_LDS = STG0 + 8 * 2048


def out_stage(e, ACC, PKd, sW, sRt, sOcol, sOut, vL, vL15, vG, vt, sT):
    for t in range(4):
        a = ACC + t * 4
        d = PKd + t * 2
        e(f"v_cvt_pk_bf16_f32 v{d}, v{a}, v{a+1}")
        e(f"v_cvt_pk_bf16_f32 v{d+1}, v{a+2}, v{a+3}")
    e(f"s_lshl_b32 s{sT}, s{sW}, 11")
    e(f"s_add_u32 s{sT}, s{sT}, {STG0}")
    e(f"v_lshrrev_b32 v{vt}, 1, v{vG}")
    e(f"v_and_b32 v{vt+1}, 7, v{vL15}")
    e(f"v_xor_b32 v{vt}, v{vt}, v{vt+1}")
    e(f"v_lshlrev_b32 v{vt}, 4, v{vt}")
    e(f"v_lshl_add_u32 v{vt}, v{vL15}, 7, v{vt}")
    e(f"v_and_b32 v{vt+1}, 1, v{vG}")
    e(f"v_lshl_add_u32 v{vt}, v{vt+1}, 3, v{vt}")
    e(f"v_add_u32 v{vt}, s{sT}, v{vt}")
    for t in range(4):
        if t:
            e(f"v_xor_b32 v{vt+1}, {t*32}, v{vt}")
        e(f"ds_write_b64 v{vt+1 if t else vt}, {vr(PKd+t*2,2)}")
    e(f"v_lshrrev_b32 v{vt+2}, 3, v{vL}")
    e(f"v_and_b32 v{vt+3}, 7, v{vL}")
    e(f"v_xor_b32 v{vt+4}, v{vt+3}, v{vt+2}")
    e(f"v_lshlrev_b32 v{vt+4}, 4, v{vt+4}")
    e(f"v_lshl_add_u32 v{vt+4}, v{vt+2}, 7, v{vt+4}")
    e(f"v_add_u32 v{vt+4}, s{sT}, v{vt+4}")
    e(f"s_lshl_b32 s{sT+1}, s{sRt}, 4")
    e(f"v_add_u32 v{vt+2}, s{sT+1}, v{vt+2}")
    e(f"v_mul_u32_u24 v{vt+2}, 2304, v{vt+2}")
    e(f"v_lshl_add_u32 v{vt+2}, v{vt+3}, 4, v{vt+2}")
    e(f"s_add_u32 s{sT+1}, s{sOcol}, {8*2304}")
    e("s_waitcnt lgkmcnt(0)")
    e(f"ds_read_b128 {vr(PKd+8,4)}, v{vt+4}")
    e(f"ds_read_b128 {vr(PKd+12,4)}, v{vt+4} offset:1024")
    e("s_waitcnt lgkmcnt(1)")
    e(f"buffer_store_dwordx4 {vr(PKd+8,4)}, v{vt+2}, {sr(sOut,4)}, s{sOcol} offen")
    e("s_waitcnt lgkmcnt(0)")
    e(f"buffer_store_dwordx4 {vr(PKd+12,4)}, v{vt+2}, {sr(sOut,4)}, s{sT+1} offen")


def rd_addr(e, vRA, base, vG, vR4, vC4, vt):
    e(f"v_lshl_add_u32 v{vt}, v{vG}, 3, v{vR4}")
    e(f"v_lshlrev_b32 v{vt}, 7, v{vt}")
    e(f"v_lshl_add_u32 v{vt}, v{vC4}, 3, v{vt}")
    e(f"v_lshrrev_b32 v{vt+1}, 1, v{vR4}")
    e(f"v_and_b32 v{vt+2}, 1, v{vG}")
    e(f"v_lshl_add_u32 v{vt+1}, v{vt+2}, 1, v{vt+1}")
    e(f"v_lshl_add_u32 v{vRA}, v{vt+1}, 5, v{vt}")
    if base:
        e(f"v_add_u32 v{vRA}, {base}, v{vRA}")
    for t in range(1, 4):
        e(f"v_xor_b32 v{vRA+t}, {t<<5}, v{vRA}")


def grp_src(e, sG, sRot, sCol, sT):
    e(f"s_lshr_b32 s{sT}, s{sG}, 2")
    e(f"s_add_u32 s{sT}, s{sT}, s{sRot}")
    e(f"s_sub_u32 s{sT+1}, s{sT}, 9")
    e(f"s_cmp_ge_u32 s{sT}, 9")
    e(f"s_cselect_b32 s{sT}, s{sT+1}, s{sT}")
    e(f"s_lshl_b32 s{sT}, s{sT}, 2")
    e(f"s_and_b32 s{sT+1}, s{sG}, 3")
    e(f"s_add_u32 s{sT}, s{sT}, s{sT+1}")
    e(f"s_mul_i32 s{sT}, s{sT}, 18432")
    e(f"s_add_u32 s{sT}, s{sT}, s{sCol}")


def gemm_body(e, g, NW, sCol, sXoff, sOcol, sW, sXs, sWo, sOut, vL, vL15, vG, vR4, vC4, vt, sT, w2issue):
    sRt, sRot, vX, vD = g["sRt"], g["sRot"], g["vX"], g["vD"]
    nct = 4
    nph = (36 + NW - 1) // NW
    kslist = []
    ksdone = 0
    for ph in range(nph):
        ksnew = min(36, (ph + 1) * NW) // 2
        kslist.append(list(range(ksdone, ksnew)))
        ksdone = ksnew
    mxk = max(len(k) for k in kslist)
    cnt = [2 + len(k) for k in kslist] + [0, 0, 0, 0]
    XR = e.v(72, 4)
    ACC = e.v(4 * nct, 4)
    F = e.v(mxk * nct * 4, 4)
    vRA = e.v(4)
    sM0, sG, sXb, sXk, sXc = e.s(), e.s(), e.s(), e.s(), e.s()
    e(f"s_lshl_b32 s{sM0}, s{sW}, 11")
    e(f"s_mov_b32 s{sG}, s{sW}")
    e(f"s_mul_i32 s{sXb}, s{sRt}, 18432")
    e(f"s_add_u32 s{sXb}, s{sXb}, s{sXoff}")
    e(f"s_lshl_b32 s{sXk}, s{sRot}, 11")

    def issue(ph):
        if ph >= nph:
            return
        for ks in kslist[ph]:
            if ks % 2 == 0:
                e(f"s_add_u32 s{sXc}, s{sXb}, s{sXk}")
            e(f"buffer_load_dwordx4 {vr(XR+ks*4,4)}, v{vX}, {sr(sXs,4)}, s{sXc} offen offset:{(ks%2)*1024}")
            if ks % 2 == 1:
                e(f"s_add_u32 s{sXk}, s{sXk}, 2048")
                e(f"s_cmp_eq_u32 s{sXk}, 18432")
                e(f"s_cselect_b32 s{sXk}, 0, s{sXk}")
        grp_src(e, sG, sRot, sCol, sT)
        if (ph + 1) * NW > 36:
            e(f"s_cmp_lt_u32 s{sG}, 36")
            e(f"s_cselect_b32 s{sT}, s{sT}, 0x{OOB:x}")
            e(f"s_cselect_b32 s{sT+1}, s{sM0}, {STG0 - ph*NW*2048}")
        else:
            e(f"s_mov_b32 s{sT+1}, s{sM0}")
        e(f"s_add_u32 m0, s{sT+1}, {ph*NW*2048}")
        e(f"s_add_u32 s{sG}, s{sG}, {NW}")
        e(f"buffer_load_dwordx4 v{vD}, {sr(sWo,4)}, s{sT} offen lds")
        e(f"s_add_u32 m0, s{sT+1}, {ph*NW*2048 + 1024}")
        e(f"s_add_u32 s{sT}, s{sT}, {8*1152}")
        e(f"buffer_load_dwordx4 v{vD+1}, {sr(sWo,4)}, s{sT} offen lds")

    DEPTH = int(os.environ.get('GDEPTH', '2'))
    for ph in range(DEPTH):
        issue(ph)
    stamp(e)
    rd_addr(e, vRA, 0, vG, vR4, vC4, vt)
    for i in range(4 * nct):
        e(f"v_mov_b32 v{ACC+i}, 0")
    rebased = False
    for ph in range(nph):
        rem = sum(cnt[ph + 1: min(nph, ph + DEPTH)])
        e(f"s_waitcnt vmcnt({rem})")
        e("s_barrier")
        if ph in (0, nph - 1): stamp(e)
        kss = kslist[ph]
        for i, ks in enumerate(kss):
            if ks >= 12 and not rebased:
                for t in range(4):
                    e(f"v_add_u32 v{vRA+t}, {12*4096}, v{vRA+t}")
                rebased = True
            o = (ks - 12 if ks >= 12 else ks) * 4096
            for t in range(nct):
                for h in range(2):
                    e(f"ds_read_b64_tr_b16 {vr(F+(i*nct+t)*4+h*2,2)}, v{vRA+t} offset:{o + h*512}")
        issue(ph + DEPTH)
        if ph == nph - 1:
            w2issue()
        tot = len(kss) * nct * 2
        for i, ks in enumerate(kss):
            for t in range(nct):
                left = tot - 2 * (i * nct + t + 1)
                if t % 2 == 0:
                    e(f"s_waitcnt lgkmcnt({min(15, left - 2)})")
                mfma(e, ACC + t * 4, F + (i * nct + t) * 4, XR + ks * 4)
    e("s_nop 7")
    out_stage(e, ACC, F, sW, sRt, sOcol, sOut, vL, vL15, vG, vt, sT)


def common_ids(e):
    vTid = e.v()
    vL, vL15, vG, vR4, vC4 = [e.v() for _ in range(5)]
    vt = e.v(8, 2)
    sW = e.s()
    e(f"v_lshrrev_b32 v{vt}, 6, v0")
    e(f"v_and_b32 v{vL}, 63, v0")
    e(f"v_readfirstlane_b32 s{sW}, v{vt}")
    e(f"v_and_b32 v{vL15}, 15, v0")
    e(f"v_lshrrev_b32 v{vG}, 4, v{vL}")
    e(f"v_bfe_u32 v{vR4}, v0, 2, 2")
    e(f"v_and_b32 v{vC4}, 3, v0")
    return vL, vL15, vG, vR4, vC4, vt, sW


def div9(e, sQ, sR, sU):
    e(f"s_mul_i32 s{sQ}, s{sU}, 7282")
    e(f"s_lshr_b32 s{sQ}, s{sQ}, 16")
    e(f"s_mul_i32 s{sR}, s{sQ}, 9")
    e(f"s_sub_u32 s{sR}, s{sU}, s{sR}")


K2_GRID = 256
P2_NW = 6


K2_KV0 = W2OFF + 27 * 2048
K2_Z0 = K2_KV0 + 6400
K2_ZEND = K2_Z0 + 1536
K2_DUMP = K2_ZEND
K2_O0 = K2_ZEND + 64


XRED = int(os.environ.get('XRED', '8'))
W2E = int(os.environ.get('W2E', '0'))


def gen_k2(e):
    e.reset()
    e.s(3)
    e.label("k2_kernel")
    e(f"s_cmp_ge_u32 s2, {K2_GRID}")
    e("s_cbranch_scc1 k2_end")
    stamp_init(e); stamp(e)
    sPA = e.s(2)
    sPB = e.s(4)
    sPW = e.s(2)
    e(f"s_load_dwordx2 {sr(sPA,2)}, s[0:1], 24")
    e(f"s_load_dwordx4 {sr(sPB,4)}, s[0:1], 48")
    e(f"s_load_dwordx2 {sr(sPW,2)}, s[0:1], 72")
    sT = e.s(4)
    sJ, sI = e.s(), e.s()
    e(f"s_and_b32 s{sJ}, s2, 7")
    e(f"s_lshr_b32 s{sI}, s2, 3")
    vL, vL15, vG, vR4, vC4, vt, sW = common_ids(e)
    sXs, sWo, sOut, sW2 = e.s(4), e.s(4), e.s(4), e.s(4)
    sHg, sRb = sJ, sI
    sU, sRbk2, sNb2 = e.s(), e.s(), e.s()
    e(f"s_mul_i32 s{sU}, s{sJ}, 28")
    e(f"s_add_u32 s{sU}, s{sU}, s{sI}")
    e(f"s_cmp_lt_u32 s{sI}, 28")
    e(f"s_cselect_b32 s{sU}, s{sU}, 255")
    e(f"s_mul_i32 s{sRbk2}, s{sU}, 6554")
    e(f"s_lshr_b32 s{sRbk2}, s{sRbk2}, 16")
    e(f"s_mul_i32 s{sNb2}, s{sRbk2}, 10")
    e(f"s_sub_u32 s{sNb2}, s{sU}, s{sNb2}")
    g2 = gemm_pre(e, P2_NW, sRbk2, sNb2, sW, vL, vL15, vG, vR4, vC4, vt, sT)
    vX, vD = g2["vX"], g2["vD"]
    vL16 = vX
    sCol2, sXoff2, sOcol2 = e.s(), e.s(), e.s()
    e(f"s_lshl_b32 s{sCol2}, s{sNb2}, 7")
    e(f"s_mov_b32 s{sXoff2}, {WS_OA}")
    e(f"s_movk_i32 s{sT}, {1152 + 1024}")
    e(f"s_cmp_eq_u32 s{sNb2}, 9")
    e(f"s_cselect_b32 s{sOcol2}, s{sT}, s{sCol2}")
    e(f"s_cselect_b32 s{sCol2}, 1024, s{sCol2}")
    e(f"s_cselect_b32 s{sXoff2}, {WS_OB}, s{sXoff2}")
    sW3, sRt1, sRot1, sCol1, sOcol1 = e.s(), e.s(), e.s(), e.s(), e.s()
    e(f"s_and_b32 s{sW3}, s{sW}, 3")
    e(f"s_lshr_b32 s{sT}, s{sI}, 3")
    e(f"s_lshl_b32 s{sT+1}, s{sJ}, 2")
    e(f"s_add_u32 s{sT}, s{sT}, s{sT+1}")
    e(f"s_and_b32 s{sT+1}, s{sI}, 7")
    e(f"s_lshl_b32 s{sRt1}, s{sT}, 2")
    e(f"s_add_u32 s{sRt1}, s{sRt1}, s{sW3}")
    e(f"s_lshl_b32 s{sRot1}, s{sT}, 1")
    e(f"s_add_u32 s{sRot1}, s{sRot1}, s{sT+1}")
    e(f"s_mul_i32 s{sT}, s{sRot1}, 7282")
    e(f"s_lshr_b32 s{sT}, s{sT}, 16")
    e(f"s_mul_i32 s{sT}, s{sT}, 9")
    e(f"s_sub_u32 s{sRot1}, s{sRot1}, s{sT}")
    e(f"s_lshl_b32 s{sCol1}, s{sT+1}, 7")
    e(f"s_add_u32 s{sOcol1}, s{sCol1}, 1152")
    sOF, sPb, sPk, sG = e.s(), e.s(), e.s(), e.s()
    e(f"s_lshl_b32 s{sOF}, s{sRb}, 2")
    e(f"s_add_u32 s{sOF}, s{sOF}, s{sW3}")
    e(f"s_mul_i32 s{sOF}, s{sOF}, 72")
    e(f"s_mul_i32 s{sT}, s{sHg}, 9")
    e(f"s_add_u32 s{sOF}, s{sOF}, s{sT}")
    e(f"s_lshl_b32 s{sOF}, s{sOF}, 8")
    vU = e.v(2)
    e(f"v_and_b32 v{vt+1}, 255, v0")
    e(f"v_lshlrev_b32 v{vU}, 4, v{vt+1}")
    e(f"v_add_u32 v{vU+1}, {256*16}, v{vU}")
    e(f"v_cmp_gt_u32 vcc, 86, v{vt+1}")
    e(f"v_mov_b32 v{vt}, 0x{OOB:x}")
    e(f"s_mul_i32 s{sPb}, s{sHg}, {4*1368}")
    e(f"v_cndmask_b32 v{vU+1}, v{vt}, v{vU+1}, vcc")
    e(f"s_add_u32 s{sPb}, s{sPb}, {WS_P}")
    e(f"s_and_b32 s{sPk}, s{sRb}, 15")
    e(f"s_mul_i32 s{sPk}, s{sPk}, {32*1368}")
    vKA = e.v(4)
    vmark, smark = e.vn, e.sn
    PR = e.v(128, 4)
    R2 = e.v(92, 4)
    BQ, AW, P = R2, R2 + 12, R2 + 72
    XR1, ACC1, vRA1 = R2, R2 + 72, R2 + 88
    e("s_waitcnt lgkmcnt(0)")
    srd(e, sXs, sPW, WS_BYTES)
    srd(e, sWo, sPB, WO_BYTES)
    srd(e, sOut, sPB + 2, OUT_BYTES)
    e(f"s_cmp_eq_u32 s{sNb2}, 9")
    e(f"s_cselect_b32 s{sPA}, s{sPB}, s{sPA}")
    e(f"s_cselect_b32 s{sPA+1}, s{sPB+1}, s{sPA+1}")
    srd(e, sW2, sPA, WO_BYTES)
    def pload(dst, vaddr):
        e(f"s_add_u32 s{sT+1}, s{sPb}, s{sPk}")
        e(f"buffer_load_dwordx4 {vr(dst,4)}, v{vaddr}, {sr(sXs,4)}, s{sT+1} offen")
        e(f"s_add_u32 s{sPk}, s{sPk}, {32*1368}")
        e(f"s_cmp_eq_u32 s{sPk}, {16*32*1368}")
        e(f"s_cselect_b32 s{sPk}, 0, s{sPk}")
    stamp(e)
    stn1 = getattr(e, "stn", 0)

    sSel = e.s(2)
    e(f"s_mov_b32 s{sSel}, 0x00003f80")
    e(f"s_mov_b32 s{sSel+1}, 0x3f800000")

    def kvaddr(h):
      for hh in range(2):
        u = vt
        e(f"v_and_b32 v{u}, 255, v0")
        e(f"v_lshlrev_b32 v{u}, 1, v{u}")
        if 512*h + hh:
            e(f"v_add_u32 v{u}, {512*h + hh}, v{u}")
        e(f"v_mul_u32_u24 v{vt+1}, 6133, v{u}")
        e(f"v_lshrrev_b32 v{vt+1}, 20, v{vt+1}")
        e(f"v_mul_u32_u24 v{vt+2}, 171, v{vt+1}")
        e(f"v_sub_u32 v{vt+2}, v{u}, v{vt+2}")
        e(f"v_mul_u32_u24 v{vt+3}, 7282, v{vt+2}")
        e(f"v_lshrrev_b32 v{vt+3}, 16, v{vt+3}")
        e(f"v_mul_u32_u24 v{vt+4}, 9, v{vt+3}")
        e(f"v_sub_u32 v{vt+4}, v{vt+2}, v{vt+4}")
        e(f"v_mul_u32_u24 v{vt+1}, 20, v{vt+1}")
        e(f"v_add_u32 v{vt+1}, v{vt+1}, v{vt+3}")
        e(f"v_mul_u32_u24 v{vt+1}, 80, v{vt+1}")
        e(f"v_lshl_add_u32 v{vKA+2*h+hh}, v{vt+4}, 3, v{vt+1}")
        if h == 1:
            e(f"v_cmp_gt_u32 vcc, 684, v{u}")
            e(f"v_mov_b32 v{vt+2}, {K2_DUMP - K2_KV0}")
            e("s_nop 1")
            e(f"v_cndmask_b32 v{vKA+2*h+hh}, v{vt+2}, v{vKA+2*h+hh}, vcc")
        e(f"v_add_u32 v{vKA+2*h+hh}, {K2_KV0}, v{vKA+2*h+hh}")

    def reduce(h):
        a = PR + h * 64
        acc = [PR + (1 - h) * 64 + i for i in range(8)]
        for x in acc:
            e(f"v_mov_b32 v{x}, 0")
        for rb in range(16):
            for d in range(4):
                e(f"v_dot2c_f32_bf16 v{acc[2*d]}, s{sSel}, v{a+rb*4+d}")
                e(f"v_dot2c_f32_bf16 v{acc[2*d+1]}, s{sSel+1}, v{a+rb*4+d}")
        e("s_nop 2")
        for d in range(4):
            e(f"v_cvt_pk_bf16_f32 v{a+d}, v{acc[2*d]}, v{acc[2*d+1]}")
        e(f"ds_write_b64 v{vKA+2*h}, {vr(a,2)}")
        e(f"ds_write_b64 v{vKA+2*h+1}, {vr(a+2,2)}")

    e(f"s_cmp_ge_u32 s{sW}, 4")
    e("s_cbranch_scc1 k2_X")
    e(f"s_add_u32 s{sT}, s{sOF}, {WS_Q}")
    e(f"v_lshlrev_b32 v{vt}, 4, v{vL15}")
    for st in range(3):
        e(f"buffer_load_dwordx4 {vr(BQ+st*4,4)}, v{vL16 if st < 2 else vt}, {sr(sXs,4)}, s{sT} offen offset:{st*1024}")
    e(f"s_mul_i32 s{sT}, s{sHg}, 15360")
    e(f"s_add_u32 s{sT}, s{sT}, {WS_WB}")
    for f in range(15):
        if f and f % 4 == 0:
            e(f"s_add_u32 s{sT}, s{sT}, 4096")
        e(f"buffer_load_dwordx4 {vr(AW+f*4,4)}, v{vL16}, {sr(sXs,4)}, s{sT} offen offset:{(f%4)*1024}")
    e(f"s_cmp_ge_u32 s{sW}, 2")
    e("s_cbranch_scc1 k2_A23")
    for rb in range(16):
        pload(PR + 64 + rb * 4, vU + 1)
    kvaddr(1)
    e("s_waitcnt vmcnt(16)")
    e.label("k2_A23")
    sL = e.s(2)
    e(f"s_mov_b32 s{sL}, 0x{LOG2E:x}")
    e(f"s_mov_b32 s{sL+1}, 0x{LOG2E:x}")
    e(f"s_cmp_lt_u32 s{sW}, 2")
    e("s_cbranch_scc1 k2_A01")
    e("s_waitcnt vmcnt(0)")
    e.label("k2_A01")
    for cf in range(5):
        for st in range(3):
            mfma(e, P + cf * 4, AW + (cf * 3 + st) * 4, BQ + st * 4, "0" if st == 0 else None)
    e("s_nop 7")
    E1 = AW
    E2 = AW + 18
    PH = AW + 36
    softmax_pm(e, P, E1, E2, PH, vt, sL)
    e(f"v_mov_b32 v{PH+18}, 0")
    e(f"v_mov_b32 v{PH+19}, 0")
    e(f"v_lshrrev_b32 v{vt}, 2, v{vL15}")
    e(f"v_cmp_eq_u32 vcc, v{vt}, v{vG}")
    e(f"v_mul_u32_u24 v{vt+1}, 20, v{vt}")
    e(f"v_and_b32 v{vt+2}, 3, v{vL15}")
    e(f"v_add_u32 v{vt+1}, v{vt+1}, v{vt+2}")
    e(f"v_mul_u32_u24 v{vt+1}, 80, v{vt+1}")
    e(f"v_add_u32 v{vt+1}, {K2_KV0}, v{vt+1}")
    e(f"v_mov_b32 v{vt+2}, {K2_Z0}")
    e(f"v_cndmask_b32 v{vt+1}, v{vt+2}, v{vt+1}, vcc")
    e(f"s_lshl_b32 s{sT}, s{sW}, 4")
    e(f"v_add_u32 v{vt+2}, s{sT}, v{vL15}")
    e(f"v_mul_u32_u24 v{vt+2}, 144, v{vt+2}")
    e(f"v_add_u32 v{vt+2}, {K2_O0}, v{vt+2}")
    e(f"v_mul_u32_u24 v{vt+3}, 36, v{vG}")
    e(f"v_add_u32 v{vt+3}, v{vt+3}, v{vt+2}")
    e(f"v_lshl_add_u32 v{vt+2}, v{vG}, 4, v{vt+2}")
    e(f"v_cmp_eq_u32 vcc, 0, v{vG}")
    e(f"v_mov_b32 v{vt+4}, 0x{OOB:x}")
    e(f"s_add_u32 s{sOF}, s{sOF}, {WS_OA}")
    e(f"v_cndmask_b32 v{vt+4}, v{vt+4}, v{vL16}, vcc")
    stamp(e)
    e(f"s_cmp_ge_u32 s{sW}, 2")
    e("s_cbranch_scc1 k2_Anr")
    e("s_waitcnt vmcnt(0)")
    reduce(1)
    e("s_waitcnt lgkmcnt(0)")
    e.label("k2_Anr")
    e("s_barrier")
    stamp(e)
    AK = PR
    for ch in range(5):
        for st in range(5):
            e(f"ds_read_b128 {vr(AK+(ch*5+st)*4,4)}, v{vt+1} offset:{ch*320 + st*16}")
    N = P
    for ch in range(5):
        e(f"s_waitcnt lgkmcnt({min(15, 20 - 5*ch)})")
        for st in range(5):
            mfma(e, N + ch * 4, AK + (ch * 5 + st) * 4, PH + st * 4, "0" if st == 0 else None)
    e("s_nop 7")
    e("s_nop 3")
    e(f"v_add_f32 v{vt}, 0x358637bd, v{N+18}")
    e(f"v_rcp_f32 v{vt}, v{vt}")
    e("s_nop 0")
    for i in range(0, 18, 2):
        e(f"v_pk_mul_f32 {vr(N+i,2)}, {vr(N+i,2)}, {vr(vt,2)} op_sel_hi:[1,0]")
    OP = AW
    for i in range(9):
        e(f"v_cvt_pk_bf16_f32 v{OP+i}, v{N+2*i}, v{N+2*i+1}")
    for i in range(4):
        e(f"ds_write2_b32 v{vt+3}, v{OP+2*i}, v{OP+2*i+1} offset0:{2*i} offset1:{2*i+1}")
    e(f"ds_write_b32 v{vt+3}, v{OP+8} offset:32")
    e("s_waitcnt lgkmcnt(0)")
    CO = AW + 12
    for i in range(3):
        e(f"ds_read_b128 {vr(CO+4*i,4)}, v{vt+2} offset:{64*i}")
    for i in range(3):
        e(f"s_waitcnt lgkmcnt({2-i})")
        e(f"buffer_store_dwordx4 {vr(CO+4*i,4)}, v{vL16 if i < 2 else vt+4}, {sr(sXs,4)}, s{sOF} offen offset:{1024*i} sc1")
    e(f"v_cmp_eq_u32 vcc, 0, v{vL}")
    e(f"v_mov_b32 v{vt+5}, 0x{OOB:x}")
    e(f"v_mov_b32 v{vt+6}, 1")
    e(f"s_lshl_b32 s{sOF}, s{sRb}, 7")
    e(f"s_lshl_b32 s{sT+1}, s{sHg}, 4")
    e(f"s_add_u32 s{sOF}, s{sOF}, s{sT+1}")
    e(f"s_lshl_b32 s{sT+1}, s{sW}, 2")
    e(f"s_add_u32 s{sOF}, s{sOF}, s{sT+1}")
    e(f"s_add_u32 s{sOF}, s{sOF}, {WS_FL}")
    e(f"v_cndmask_b32 v{vt+5}, v{vt+5}, 0, vcc")
    e("s_waitcnt vmcnt(0)")
    e(f"buffer_store_dword v{vt+6}, v{vt+5}, {sr(sXs,4)}, s{sOF} offen sc1")
    e("s_barrier")
    stamp(e)
    e(f"s_cmp_lg_u32 s{sW}, 0")
    e("s_cbranch_scc1 k2_Aw2")
    e(f"s_cmp_ge_u32 s{sU}, 220")
    e("s_cbranch_scc1 k2_P2")
    e(f"s_cmp_eq_u32 s{sNb2}, 9")
    e("s_cbranch_scc1 k2_P2")
    e(f"s_mul_i32 s{sT}, s{sRbk2}, 96")
    e(f"s_add_u32 s{sT+1}, s{sT}, 95")
    e(f"s_min_u32 s{sT+1}, s{sT+1}, 2047")
    e(f"s_lshr_b32 s{sT}, s{sT}, 6")
    e(f"s_lshr_b32 s{sT+1}, s{sT+1}, 6")
    e(f"s_lshl_b32 s{sT}, s{sT}, 7")
    e(f"s_lshl_b32 s{sT+1}, s{sT+1}, 7")
    e(f"v_and_b32 v{vt}, 31, v{vL}")
    e(f"v_lshlrev_b32 v{vt}, 2, v{vt}")
    e(f"v_cmp_gt_u32 vcc, 32, v{vL}")
    e(f"v_mov_b32 v{vt+1}, s{sT}")
    e(f"v_mov_b32 v{vt+2}, s{sT+1}")
    e(f"v_cndmask_b32 v{vt+1}, v{vt+2}, v{vt+1}, vcc")
    e(f"v_add_u32 v{vt}, v{vt}, v{vt+1}")
    e(f"s_mov_b32 s{sT}, {WS_FL}")
    e(f"s_mov_b32 s{sG}, 0")
    e.label("k2_poll")
    e(f"s_sleep {os.environ.get('PSLEEP', '4')}")
    e(f"buffer_load_dword v{vt+1}, v{vt}, {sr(sXs,4)}, s{sT} offen sc1")
    e("s_waitcnt vmcnt(0)")
    e(f"v_cmp_ne_u32 vcc, 1, v{vt+1}")
    e(f"s_add_u32 s{sG}, s{sG}, 1")
    e(f"s_cmp_ge_u32 s{sG}, 100000")
    e("s_cbranch_scc1 k2_P2")
    e("s_cbranch_vccnz k2_poll")
    e("s_branch k2_P2")
    e.label("k2_Aw2")
    e(f"s_cmp_ge_u32 s{sU}, 220")
    e("s_cbranch_scc1 k2_P2")
    e(f"s_add_u32 s{sG}, s{sW}, {26 if W2E else -1}")
    e.label("k2_w2l")
    grp_src(e, sG, g2["sRot"], sCol2, sT)
    e(f"s_lshl_b32 s{sT+1}, s{sG}, 11")
    e(f"s_add_u32 m0, s{sT+1}, {W2OFF}")
    e(f"s_add_u32 s{sG}, s{sG}, 3")
    e(f"buffer_load_dwordx4 v{vD}, {sr(sW2,4)}, s{sT} offen lds")
    e(f"s_add_u32 m0, s{sT+1}, {W2OFF + 1024}")
    e(f"s_add_u32 s{sT}, s{sT}, {8*1152}")
    e(f"buffer_load_dwordx4 v{vD+1}, {sr(sW2,4)}, s{sT} offen lds")
    e(f"s_cmp_lt_u32 s{sG}, 36")
    e("s_cbranch_scc1 k2_w2l")
    e("s_branch k2_P2")
    e.label("k2_X")
    e.stn = stn1
    for rb in range(16):
        pload(PR + rb * 4, vU)
    e(f"v_and_b32 v{vt}, 255, v0")
    for i in range(4):
        e(f"v_mov_b32 v{R2+20+i}, 0")
    e(f"v_min_u32 v{vt+1}, 79, v{vt}")
    e(f"v_mul_u32_u24 v{vt+1}, 80, v{vt+1}")
    e(f"v_add_u32 v{vt+1}, {K2_KV0 + 72}, v{vt+1}")
    e(f"ds_write_b64 v{vt+1}, {vr(R2+20,2)}")
    e(f"v_min_u32 v{vt+1}, 95, v{vt}")
    e(f"v_lshlrev_b32 v{vt+1}, 4, v{vt+1}")
    e(f"v_add_u32 v{vt+1}, {K2_Z0}, v{vt+1}")
    e(f"ds_write_b128 v{vt+1}, {vr(R2+20,4)}")
    kvaddr(0)
    sXb, sXk, sXc = e.s(), e.s(), e.s()
    e(f"s_mul_i32 s{sXb}, s{sRt1}, 18432")
    e(f"s_add_u32 s{sXb}, s{sXb}, {WS_OB}")
    e(f"s_lshl_b32 s{sXk}, s{sRot1}, 11")
    e(f"s_mov_b32 s{sG}, s{sW3}")
    for r in range(9):
        grp_src(e, sG, sRot1, sCol1, sT)
        e(f"s_lshl_b32 s{sT+1}, s{sG}, 11")
        e(f"s_mov_b32 m0, s{sT+1}")
        e(f"s_add_u32 s{sG}, s{sG}, 4")
        e(f"buffer_load_dwordx4 v{vD}, {sr(sWo,4)}, s{sT} offen lds")
        e(f"s_add_u32 m0, s{sT+1}, 1024")
        e(f"s_add_u32 s{sT}, s{sT}, {8*1152}")
        e(f"buffer_load_dwordx4 v{vD+1}, {sr(sWo,4)}, s{sT} offen lds")
        if r == XRED:
            stamp(e)
            e(f"s_waitcnt vmcnt({2*(XRED+1)})")
            reduce(0)
            e("s_waitcnt lgkmcnt(0)")
            e("s_barrier")
            stamp(e)
    for ks in range(18):
        if ks % 2 == 0:
            e(f"s_add_u32 s{sXc}, s{sXb}, s{sXk}")
        e(f"buffer_load_dwordx4 {vr(XR1+ks*4,4)}, v{vX}, {sr(sXs,4)}, s{sXc} offen offset:{(ks%2)*1024}")
        if ks % 2 == 1:
            e(f"s_add_u32 s{sXk}, s{sXk}, 2048")
            e(f"s_cmp_eq_u32 s{sXk}, 18432")
            e(f"s_cselect_b32 s{sXk}, 0, s{sXk}")
    e(f"s_mov_b32 s{sG}, s{sW3}")
    for r in range(7 if W2E else 0):
        grp_src(e, sG, g2["sRot"], sCol2, sT)
        e(f"s_lshl_b32 s{sT+1}, s{sG}, 11")
        e(f"s_add_u32 s{sT+1}, s{sT+1}, {W2OFF}")
        e(f"s_cmp_lt_u32 s{sU}, 220")
        e(f"s_cselect_b32 s{sT}, s{sT}, 0x{OOB:x}")
        if r == 6:
            e(f"s_cmp_lt_u32 s{sG}, 27")
            e(f"s_cselect_b32 s{sT}, s{sT}, 0x{OOB:x}")
            e(f"s_cselect_b32 s{sT+1}, s{sT+1}, {STG0}")
        e(f"s_mov_b32 m0, s{sT+1}")
        e(f"s_add_u32 s{sG}, s{sG}, 4")
        e(f"buffer_load_dwordx4 v{vD}, {sr(sW2,4)}, s{sT} offen lds")
        e(f"s_add_u32 m0, s{sT+1}, 1024")
        e(f"s_add_u32 s{sT}, s{sT}, {8*1152}")
        e(f"buffer_load_dwordx4 v{vD+1}, {sr(sW2,4)}, s{sT} offen lds")
    rd_addr(e, vRA1, 0, vG, vR4, vC4, vt)
    e(f"s_waitcnt vmcnt({32 if W2E else 18})")
    e("s_barrier")
    stamp(e)

    def kloop(XR, ACC, F, vRA, xextra):
        def rdk(ks):
            L = []
            if ks == 12:
                for t in range(4):
                    L.append(f"v_add_u32 v{vRA+t}, {12*4096}, v{vRA+t}")
            o = (ks - 12 if ks >= 12 else ks) * 4096
            for t in range(4):
                for h in range(2):
                    L.append(f"ds_read_b64_tr_b16 {vr(F+((ks%3)*4+t)*4+h*2,2)}, v{vRA+t} offset:{o + h*512}")
            return L
        for x in rdk(0) + rdk(1):
            e(x)
        for ks in range(18):
            nl = 8 if ks < 17 else 0
            e(f"s_waitcnt vmcnt({17-ks+xextra}) lgkmcnt({nl})")
            R = rdk(ks + 2) if ks + 2 < 18 else []
            per = (len(R) + 3) // 4
            for t in range(4):
                mfma(e, ACC + t * 4, F + ((ks % 3) * 4 + t) * 4, XR + ks * 4, "0" if ks == 0 else None)
                for x in R[t*per:(t+1)*per]:
                    e(x)
        e("s_nop 7")
    kloop(XR1, ACC1, PR, vRA1, 14 if W2E else 0)
    out_stage(e, ACC1, PR, sW, sRt1, sOcol1, sOut, vL, vL15, vG, vt, sT)
    e.label("k2_P2")
    e.vn = vmark
    stamp(e)
    e(f"s_cmp_ge_u32 s{sU}, 220")
    e("s_cbranch_scc1 k2_fin")
    XR = e.v(72, 4)
    ACC = e.v(16, 4)
    F = e.v(48, 4)
    vRA = e.v(4)
    e("s_waitcnt vmcnt(0)")
    rd_addr(e, vRA, W2OFF, vG, vR4, vC4, vt)
    e(f"s_mul_i32 s{sXb}, s{g2['sRt']}, 18432")
    e(f"s_add_u32 s{sXb}, s{sXb}, s{sXoff2}")
    e(f"s_lshl_b32 s{sXk}, s{g2['sRot']}, 11")
    e("s_barrier")
    stamp(e)
    e(f"s_cmp_ge_u32 s{sW}, {P2_NW}")
    e("s_cbranch_scc1 k2_fin")
    for ks in range(18):
        if ks % 2 == 0:
            e(f"s_add_u32 s{sXc}, s{sXb}, s{sXk}")
        e(f"buffer_load_dwordx4 {vr(XR+ks*4,4)}, v{vX}, {sr(sXs,4)}, s{sXc} offen offset:{(ks%2)*1024} sc1")
        if ks % 2 == 1:
            e(f"s_add_u32 s{sXk}, s{sXk}, 2048")
            e(f"s_cmp_eq_u32 s{sXk}, 18432")
            e(f"s_cselect_b32 s{sXk}, 0, s{sXk}")
    kloop(XR, ACC, F, vRA, 0)
    out_stage(e, ACC, F, sW, g2["sRt"], sOcol2, sOut, vL, vL15, vG, vt, sT)
    e.label("k2_fin")
    stamp_dump(e, sXs, 1, vt, sT)
    e.label("k2_end")
    e("s_endpgm")
    return e.vmax, e.smax


def main():
    global STAMP
    if "--stamp" in sys.argv:
        STAMP = True
        sys.argv.remove("--stamp")
    e = Em()
    hdr = open(f"cdna_kernels/{NAME}.s.ref").read().split("\n")
    head = [l for l in hdr if l.startswith(";") and "@launch" not in l and "Override" not in l and "grid=ceil" not in l]
    out = head[:]
    out.append(f"; @launch kernel=k1_kernel grid=(256,1,1) block=(512,1,1) lds={K1_LDS}")
    out.append(f"; @launch kernel=k2_kernel grid=({K2_GRID},1,1) block=(512,1,1) lds={K23_LDS}")
    out.append('.amdgcn_target "amdgcn-amd-amdhsa--gfx950"')
    out.append(".text")
    res = {}
    for nm, fn in (("k1", gen_k1), ("k2", gen_k2)):
        e.L.append(f".globl {nm}_kernel")
        e.L.append(".p2align 8")
        e.L.append(f".type {nm}_kernel,@function")
        res[nm] = fn(e)
    out += e.L
    out.append("code_end:")
    out.append("  s_endpgm")
    out.append('.section .rodata,"a"')
    for nm, (vm, sm) in res.items():
        vm4 = (vm + 3) // 4 * 4
        out.append(".p2align 6")
        out.append(f".amdhsa_kernel {nm}_kernel")
        out.append(f"  .amdhsa_next_free_vgpr {vm}")
        out.append(f"  .amdhsa_next_free_sgpr {sm}")
        out.append(f"  .amdhsa_accum_offset {vm4}")
        out.append("  .amdhsa_group_segment_fixed_size 0")
        out.append("  .amdhsa_kernarg_size 80")
        out.append("  .amdhsa_user_sgpr_count 2")
        out.append("  .amdhsa_user_sgpr_kernarg_segment_ptr 1")
        out.append("  .amdhsa_system_sgpr_workgroup_id_x 1")
        out.append(".end_amdhsa_kernel")
    path = sys.argv[1] if len(sys.argv) > 1 else f"cdna_kernels/{NAME}.s"
    open(path, "w").write("\n".join(out) + "\n")
    print(res)


if __name__ == "__main__":
    main()
```

```python
import sys, os

NAME = "concat_heads__linear_kernel_hedgehog__sliding_local_dilated__prompt"
WS_Q = 0x000000
WS_OA = 0x240000
WS_OB = 0x480000
WS_P = 0x6C0000
WS_WB = 0x770000
WS_FL = 0x790000
WS_BYTES = 0x1000000 if '--stamp' in sys.argv else 0x800000
X_BYTES = 2048 * 576 * 2
WQKV_BYTES = 576 * 1728 * 2
WO_BYTES = 576 * 576 * 2
WPHI_BYTES = 32 * 18 * 18 * 2
OUT_BYTES = 2048 * 1152 * 2
OOB = 0x80000000
LOG2E = 0x3FB8AA3B


class Em:
    def __init__(self):
        self.L = []
        self.vn = 0
        self.sn = 0
        self.vmax = 0
        self.smax = 0
        self.lab = 0

    def __call__(self, s):
        self.L.append("  " + s)

    def c(self, s):
        self.L.append("  ; " + s)

    def label(self, s):
        self.L.append(s + ":")

    def newlab(self, p="L"):
        self.lab += 1
        return f"{p}_{self.lab}"

    def v(self, n=1, al=0):
        if al == 0:
            al = 2 if n >= 2 else 1
        self.vn = (self.vn + al - 1) // al * al
        r = self.vn
        self.vn += n
        self.vmax = max(self.vmax, self.vn)
        assert self.vn <= 256, "out of vgprs"
        return r

    def s(self, n=1, al=1):
        if n == 2:
            al = max(al, 2)
        if n >= 4:
            al = max(al, 4)
        self.sn = (self.sn + al - 1) // al * al
        r = self.sn
        self.sn += n
        self.smax = max(self.smax, self.sn)
        assert self.sn <= 102, "out of sgprs"
        return r

    def reset(self):
        self.vn = 0
        self.sn = 0
        self.vmax = 0
        self.smax = 0


STAMP = False
WS_ST = 0xF00000

def stamp_init(e):
    if not STAMP: return
    e.stp = e.s(20, 4)
    e.stn = 0

def stamp(e):
    if not STAMP: return
    i = e.stn
    e.stn += 1
    assert i < 9
    if i == 0:
        e(f"s_memrealtime {sr(e.stp + 18, 2)}")
    e(f"s_memtime {sr(e.stp + 2*i, 2)}")
    e("s_waitcnt lgkmcnt(0)")

def stamp_dump(e, sWs, kidx, vt, sT):
    if not STAMP: return
    e("s_waitcnt vmcnt(0) lgkmcnt(0)")
    stamp(e)
    e(f"v_lshrrev_b32 v{vt}, 6, v0")
    e(f"v_lshlrev_b32 v{vt}, 6, v{vt}")
    e(f"s_lshl_b32 s{sT}, s2, 9")
    e(f"s_add_u32 s{sT}, s{sT}, {WS_ST + kidx*256*512}")
    e(f"v_and_b32 v{vt+1}, 63, v0")
    e(f"v_cmp_eq_u32 vcc, 0, v{vt+1}")
    e(f"v_mov_b32 v{vt+2}, 0x{OOB:x}")
    e("s_nop 1")
    e(f"v_cndmask_b32 v{vt}, v{vt+2}, v{vt}, vcc")
    for i in range(12):
        src = e.stp + 2*i if i < 9 else e.stp + 18
        e(f"v_mov_b32 v{vt+1}, s{src}")
        e(f"buffer_store_dword v{vt+1}, v{vt}, {sr(sWs,4)}, s{sT} offen offset:{4*i}")
    e("s_waitcnt vmcnt(0)")

def vr(a, n):
    return f"v[{a}:{a+n-1}]" if n > 1 else f"v{a}"


def sr(a, n):
    return f"s[{a}:{a+n-1}]" if n > 1 else f"s{a}"


def srd(e, d, base, nbytes):
    e(f"s_mov_b32 s{d}, s{base}")
    e(f"s_and_b32 s{d+1}, s{base+1}, 0xffff")
    e(f"s_mov_b32 s{d+2}, {nbytes}")
    e(f"s_mov_b32 s{d+3}, 0x00020000")


def mfma(e, d, a, b, c=None):
    cs = vr(d, 4) if c is None else c
    e(f"v_mfma_f32_16x16x32_bf16 {vr(d,4)}, {vr(a,4)}, {vr(b,4)}, {cs}")


WB_PITCH = 208
WB_BYTES = 5 * 16 * WB_PITCH


def wb_issue_loads(e, sPhi, sHg, vTid, vE, vD, tmp):
    sB = sHg
    for i in range(3):
        e(f"v_add_u32 v{vE+i}, {512*i}, v{vTid}")
        e(f"v_lshlrev_b32 v{tmp}, 1, v{vE+i}")
        if i == 2:
            e(f"v_cmp_gt_u32 vcc, 1296, v{vE+i}")
            e(f"v_mov_b32 v{tmp+1}, 0x{OOB:x}")
            e("s_nop 1")
            e(f"v_cndmask_b32 v{tmp}, v{tmp+1}, v{tmp}, vcc")
        e(f"buffer_load_ushort v{vD+i}, v{tmp}, {sr(sPhi,4)}, s{sB} offen")


def lds_zero(e, base, nbytes, vTid, tmp4, nthreads=512):
    z = tmp4
    a = tmp4 + 4
    for i in range(4):
        e(f"v_mov_b32 v{z+i}, 0")
    n16 = nbytes // 16
    rounds = (n16 + nthreads - 1) // nthreads
    e(f"v_lshlrev_b32 v{a}, 4, v{vTid}")
    if base:
        e(f"v_add_u32 v{a}, {base}, v{a}")
    for r in range(rounds):
        if (r + 1) * nthreads <= n16:
            e(f"ds_write_b128 v{a}, {vr(z,4)} offset:{r*nthreads*16}")
        else:
            last = (n16 - 1 - r * nthreads) * 16 + base
            e(f"v_min_u32 v{a+1}, {last}, v{a}")
            e(f"ds_write_b128 v{a+1}, {vr(z,4)} offset:{r*nthreads*16}")


def wb_scatter(e, WB0, DUMP, vE, vD, t):
    for i in range(3):
        E = vE + i
        e(f"v_mul_u32_u24 v{t}, 3237, v{E}")
        e(f"v_lshrrev_b32 v{t}, 20, v{t}")
        e(f"v_mul_u32_u24 v{t+1}, 324, v{t}")
        e(f"v_sub_u32 v{t+1}, v{E}, v{t+1}")
        e(f"v_mul_u32_u24 v{t+2}, 3641, v{t+1}")
        e(f"v_lshrrev_b32 v{t+2}, 16, v{t+2}")
        e(f"v_mul_u32_u24 v{t+3}, 18, v{t+2}")
        e(f"v_sub_u32 v{t+3}, v{t+1}, v{t+3}")
        e(f"v_lshrrev_b32 v{t+4}, 2, v{t+3}")
        e(f"v_lshlrev_b32 v{t+4}, 4, v{t+4}")
        e(f"v_lshl_add_u32 v{t+4}, v{t}, 2, v{t+4}")
        e(f"v_and_b32 v{t+3}, 3, v{t+3}")
        e(f"v_add_u32 v{t+4}, v{t+4}, v{t+3}")
        e(f"v_mul_u32_u24 v{t+4}, {WB_PITCH}, v{t+4}")
        e(f"v_mul_u32_u24 v{t}, 18, v{t}")
        e(f"v_add_u32 v{t}, v{t}, v{t+2}")
        e(f"v_lshl_add_u32 v{t+4}, v{t}, 1, v{t+4}")
        if i == 2:
            e(f"v_cmp_gt_u32 vcc, 1296, v{E}")
            e(f"v_mov_b32 v{t}, {DUMP - WB0}")
            e("s_nop 1")
            e(f"v_cndmask_b32 v{t+4}, v{t}, v{t+4}, vcc")
        if WB0:
            e(f"v_add_u32 v{t+4}, {WB0}, v{t+4}")
        e(f"ds_write_b16 v{t+4}, v{vD+i}")


def softmax_pm(e, P, E1, E2, OUT, t, sL):
    mx, mn = t, t + 1
    e(f"v_max3_f32 v{mx}, v{P}, v{P+1}, v{P+2}")
    e(f"v_min3_f32 v{mn}, v{P}, v{P+1}, v{P+2}")
    for i in range(3, 17, 2):
        e(f"v_max3_f32 v{mx}, v{mx}, v{P+i}, v{P+i+1}")
        e(f"v_min3_f32 v{mn}, v{mn}, v{P+i}, v{P+i+1}")
    e(f"v_max_f32 v{mx}, v{mx}, v{P+17}")
    e(f"v_min_f32 v{mn}, v{mn}, v{P+17}")
    cp, cm = t + 2, t + 4
    e(f"v_mul_f32 v{cp}, s{sL}, v{mx}")
    e(f"v_mul_f32 v{cm}, s{sL}, v{mn}")
    for i in range(0, 18, 2):
        e(f"v_pk_fma_f32 {vr(E1+i,2)}, {vr(P+i,2)}, {sr(sL,2)}, {vr(cp,2)} op_sel_hi:[1,1,0] neg_lo:[0,0,1] neg_hi:[0,0,1]")
        e(f"v_pk_fma_f32 {vr(E2+i,2)}, {vr(P+i,2)}, {sr(sL,2)}, {vr(cm,2)} op_sel_hi:[1,1,0] neg_lo:[1,0,0] neg_hi:[1,0,0]")
    for i in range(18):
        e(f"v_exp_f32 v{E1+i}, v{E1+i}")
        e(f"v_exp_f32 v{E2+i}, v{E2+i}")
    s1, s2 = t + 2, t + 4
    e(f"v_pk_add_f32 {vr(s1,2)}, {vr(E1,2)}, {vr(E1+2,2)}")
    e(f"v_pk_add_f32 {vr(s2,2)}, {vr(E2,2)}, {vr(E2+2,2)}")
    for i in range(4, 18, 2):
        e(f"v_pk_add_f32 {vr(s1,2)}, {vr(s1,2)}, {vr(E1+i,2)}")
        e(f"v_pk_add_f32 {vr(s2,2)}, {vr(s2,2)}, {vr(E2+i,2)}")
    e(f"v_add_f32 v{s1}, v{s1}, v{s1+1}")
    e(f"v_add_f32 v{s2}, v{s2}, v{s2+1}")
    e(f"v_rcp_f32 v{s1}, v{s1}")
    e(f"v_rcp_f32 v{s2}, v{s2}")
    e("s_nop 0")
    for i in range(0, 18, 2):
        e(f"v_pk_mul_f32 {vr(E1+i,2)}, {vr(E1+i,2)}, {vr(s1,2)} op_sel_hi:[1,0]")
        e(f"v_pk_mul_f32 {vr(E2+i,2)}, {vr(E2+i,2)}, {vr(s2,2)} op_sel_hi:[1,0]")
    for i in range(0, 18, 2):
        e(f"v_cvt_pk_bf16_f32 v{OUT+i//2}, v{E1+i}, v{E1+i+1}")
        e(f"v_cvt_pk_bf16_f32 v{OUT+9+i//2}, v{E2+i}, v{E2+i+1}")


def chunk_decode(e, sTile, vq, vS, vC):
    e(f"s_lshl_b32 s{sTile+1}, s{sTile}, 2")
    e(f"v_add_u32 v{vC}, s{sTile+1}, v{vq}")
    e(f"v_min_u32 v{vC}, 26, v{vC}")
    e(f"v_mul_u32_u24 v{vS}, 57, v{vC}")
    e(f"v_lshrrev_b32 v{vS}, 9, v{vS}")
    e(f"v_mul_u32_u24 v{vS+1}, 9, v{vS}")
    e(f"v_sub_u32 v{vC}, v{vC}, v{vS+1}")


WSLOT = 16384
XR0 = 4 * WSLOT
XSLOT = 18432
K1_WB0 = XR0 + 3 * XSLOT
K1_ONES = K1_WB0 + WB_BYTES
K1_DUMP2 = K1_ONES + 16
K1_LDS = K1_DUMP2 + 16
TA_PITCH = 304
PHI0 = 40960
PHI_PITCH = 336
TB_PITCH = 496
OB0 = 73728


def chunk_of(T, g):
    p = 4 * T + g
    pad = p > 26
    p = min(p, 26)
    return p // 9, p % 9, pad


def lit(fn, T):
    return sum((fn(*chunk_of(T, g)) & 0xff) << (8 * g) for g in range(4))


LITW = [lit(lambda s, c, p: 18 * ((s + 1) % 3) + c, T) for T in range(7)]
LITA = [lit(lambda s, c, p: 36 if (s == 2 or p) else 18 * s + c, T) for T in range(7)]
LITQ = [lit(lambda s, c, p: c if (s == 2 and not p) else 255, T) for T in range(7)]
LITB = [lit(lambda s, c, p: 5 if p else 20 * ((s + 1) % 3) + (c if c < 5 else c + 1), T) for T in range(7)]


def wb_issue_loads2(e, sPhi, sB, vTid, vE, vD, tmp, nth):
    n = (1296 + nth - 1) // nth
    for i in range(n):
        e(f"v_add_u32 v{vE+i}, {nth*i}, v{vTid}")
        e(f"v_lshlrev_b32 v{tmp}, 1, v{vE+i}")
        if (i + 1) * nth > 1296:
            e(f"v_cmp_gt_u32 vcc, 1296, v{vE+i}")
            e(f"v_mov_b32 v{tmp+1}, 0x{OOB:x}")
            e("s_nop 1")
            e(f"v_cndmask_b32 v{tmp}, v{tmp+1}, v{tmp}, vcc")
        e(f"buffer_load_ushort v{vD+i}, v{tmp}, {sr(sPhi,4)}, s{sB} offen")
    return n


def wb_scatter2(e, WB0, DUMPA, vE, vD, t, nth):
    n = (1296 + nth - 1) // nth
    for i in range(n):
        E = vE + i
        e(f"v_mul_u32_u24 v{t}, 3237, v{E}")
        e(f"v_lshrrev_b32 v{t}, 20, v{t}")
        e(f"v_mul_u32_u24 v{t+1}, 324, v{t}")
        e(f"v_sub_u32 v{t+1}, v{E}, v{t+1}")
        e(f"v_mul_u32_u24 v{t+2}, 3641, v{t+1}")
        e(f"v_lshrrev_b32 v{t+2}, 16, v{t+2}")
        e(f"v_mul_u32_u24 v{t+3}, 18, v{t+2}")
        e(f"v_sub_u32 v{t+3}, v{t+1}, v{t+3}")
        e(f"v_lshrrev_b32 v{t+4}, 2, v{t+3}")
        e(f"v_lshlrev_b32 v{t+4}, 4, v{t+4}")
        e(f"v_lshl_add_u32 v{t+4}, v{t}, 2, v{t+4}")
        e(f"v_and_b32 v{t+3}, 3, v{t+3}")
        e(f"v_add_u32 v{t+4}, v{t+4}, v{t+3}")
        e(f"v_mul_u32_u24 v{t+4}, {WB_PITCH}, v{t+4}")
        e(f"v_mul_u32_u24 v{t}, 18, v{t}")
        e(f"v_add_u32 v{t}, v{t}, v{t+2}")
        e(f"v_lshl_add_u32 v{t+4}, v{t}, 1, v{t+4}")
        if (i + 1) * nth > 1296:
            e(f"v_cmp_gt_u32 vcc, 1296, v{E}")
            e(f"v_mov_b32 v{t}, {DUMPA - WB0}")
            e("s_nop 1")
            e(f"v_cndmask_b32 v{t+4}, v{t}, v{t+4}, vcc")
        if WB0:
            e(f"v_add_u32 v{t+4}, {WB0}, v{t+4}")
        e(f"ds_write_b16 v{t+4}, v{vD+i}")


def interleave(e, mf, other, start=1, per=1):
    oi = 0
    for i, m in enumerate(mf):
        e(m)
        if i >= start - 1:
            for _ in range(per):
                if oi < len(other):
                    e(other[oi]); oi += 1
    while oi < len(other):
        e(other[oi]); oi += 1


def mf(d, a, b, c=None):
    cs = vr(d, 4) if c is None else c
    return f"v_mfma_f32_16x16x32_bf16 {vr(d,4)}, {vr(a,4)}, {vr(b,4)}, {cs}"


XBYC = os.environ.get('XBYC', '1') != '0'
WBYC = os.environ.get('WBYC', '0') != '0'


def gen_k1(e):
    e.reset()
    e.s(3)
    e.label("k1_kernel")
    Lend = "k1_end"
    e("s_cmp_ge_u32 s2, 256")
    e(f"s_cbranch_scc1 {Lend}")
    stamp_init(e); stamp(e)
    sPA = e.s(4)
    sPB = e.s(4)
    sPP = e.s(4)
    sPW = e.s(2)
    sPO = e.s(2)
    e(f"s_load_dwordx4 {sr(sPA,4)}, s[0:1], 0")
    e(f"s_load_dwordx4 {sr(sPB,4)}, s[0:1], 32")
    e(f"s_load_dwordx4 {sr(sPP,4)}, s[0:1], 16")
    e(f"s_load_dwordx2 {sr(sPW,2)}, s[0:1], 72")
    e(f"s_load_dwordx2 {sr(sPO,2)}, s[0:1], 48")
    sJ, sI, sBr, sRb, sHg, sW, sMi, sNi = [e.s() for _ in range(8)]
    sT = e.s(4)
    e(f"s_and_b32 s{sJ}, s2, 7")
    e(f"s_lshr_b32 s{sI}, s2, 3")
    e(f"s_lshr_b32 s{sBr}, s{sJ}, 2")
    e(f"s_lshr_b32 s{sT}, s{sJ}, 1")
    e(f"s_and_b32 s{sT}, s{sT}, 1")
    e(f"s_lshl_b32 s{sT}, s{sT}, 3")
    e(f"s_lshr_b32 s{sRb}, s{sI}, 2")
    e(f"s_add_u32 s{sRb}, s{sRb}, s{sT}")
    e(f"s_and_b32 s{sT}, s{sJ}, 1")
    e(f"s_lshl_b32 s{sT}, s{sT}, 2")
    e(f"s_and_b32 s{sHg}, s{sI}, 3")
    e(f"s_add_u32 s{sHg}, s{sHg}, s{sT}")
    vTid = e.v()
    vL, vL15, vG, vR4, vC4 = [e.v() for _ in range(5)]
    vt = e.v(8, 2)
    e(f"v_lshrrev_b32 v{vt}, 6, v0")
    e(f"v_and_b32 v{vL}, 63, v0")
    e(f"v_readfirstlane_b32 s{sW}, v{vt}")
    e(f"v_and_b32 v{vL15}, 15, v0")
    e(f"v_lshrrev_b32 v{vG}, 4, v{vL}")
    e(f"v_bfe_u32 v{vR4}, v0, 2, 2")
    e(f"v_and_b32 v{vC4}, 3, v0")
    e(f"s_and_b32 s{sMi}, s{sW}, 1")
    e(f"s_bfe_u32 s{sNi}, s{sW}, 0x10001")
    sX = e.s(4)
    sWq = e.s(4)
    sWs = e.s(4)
    sPhi = e.s(4)
    sRow0 = e.s()
    sTl = e.s(2)
    sIt = e.s()
    sDl = e.s()
    sSl = e.s()
    sWlim, sXh, sLx, sHf = e.s(), e.s(), e.s(), e.s()
    e(f"s_lshl_b32 s{sRow0}, s{sRb}, 7")

    def make_srds():
        e("s_waitcnt lgkmcnt(0)")
        e(f"s_cmp_eq_u32 s{sBr}, 0")
        for i in range(4):
            e(f"s_cselect_b32 s{sPA+i}, s{sPA+i}, s{sPB+i}")
        nl = os.environ.get('K1NOLOAD', '0') != '0'
        srd(e, sX, sPA, 0 if nl else X_BYTES)
        srd(e, sWq, sPA + 2, 0 if nl else WQKV_BYTES)
        srd(e, sWs, sPW, WS_BYTES)
        srd(e, sPhi, sPP, WPHI_BYTES)
    vbase = e.vn
    ACC = e.v(124, 4)
    FW = e.v(56, 4)
    FX = e.v(40, 4)
    vRA = e.v(11)
    vtop = e.vn
    vPF = e.v(2)
    vXc = e.v(2)
    vWc = e.v()
    stn0 = getattr(e, "stn", 0)

    def loader():
        if os.environ.get('LPRIO', '0') != '0':
            e(f"s_setprio {os.environ.get('LPRIO')}")
        sLw = sMi
        sWoff, sM0, sXo = sNi, sSl, sDl
        e(f"s_sub_u32 s{sLw}, s{sW}, 4")
        vD = vbase
        vXo = vbase + 2
        vWE = vbase + 4
        vWD = vbase + 10
        tmp = vbase + 16
        vT2 = vbase + 24
        e(f"v_and_b32 v{vt}, 7, v{vL}")
        e(f"v_xor_b32 v{vt}, v{vt}, v{vG}")
        e(f"v_lshrrev_b32 v{vt+1}, 3, v{vL}")
        e(f"v_mul_u32_u24 v{vt+1}, 1152, v{vt+1}")
        e(f"v_lshl_add_u32 v{vXo}, v{vt}, 4, v{vt+1}")
        e(f"v_xor_b32 v{vXo+1}, 64, v{vXo}")
        e(f"s_and_b32 s{sT}, s{sLw}, 1")
        e(f"s_lshl_b32 s{sT}, s{sT}, 3")
        e(f"s_mul_i32 s{sT+1}, s{sHg}, 144")
        for hf in range(2):
            p, r, c, sg = vt, vt + 1, vt + 2, vt + 3
            e(f"s_sub_u32 s{sT+2}, {64*hf}, s{sT}")
            e(f"v_add_u32 v{p}, s{sT+2}, v{vL}")
            e(f"v_and_b32 v{vt+4}, 0xff, v{p}")
            e(f"v_mul_u32_u24 v{r}, 2185, v{vt+4}")
            e(f"v_lshrrev_b32 v{r}, 16, v{r}")
            e(f"v_mul_u32_u24 v{c}, 30, v{r}")
            e(f"v_sub_u32 v{c}, v{vt+4}, v{c}")
            e(f"v_mul_u32_u24 v{sg}, 57, v{c}")
            e(f"v_lshrrev_b32 v{sg}, 9, v{sg}")
            e(f"v_mul_u32_u24 v{vt+4}, 9, v{sg}")
            e(f"v_sub_u32 v{vt+4}, v{c}, v{vt+4}")
            e(f"v_mul_u32_u24 v{r}, 3456, v{r}")
            e(f"v_mul_u32_u24 v{sg}, 1152, v{sg}")
            e(f"v_add3_u32 v{r}, v{r}, v{sg}, s{sT+1}")
            e(f"v_lshl_add_u32 v{r}, v{vt+4}, 4, v{r}")
            e(f"v_cmp_gt_u32 vcc, 120, v{p}")
            e(f"v_cmp_gt_u32 s[{sT+2}:{sT+3}], 27, v{c}")
            e(f"v_mov_b32 v{vt+5}, 0x{OOB:x}")
            e(f"s_and_b64 vcc, vcc, s[{sT+2}:{sT+3}]")
            e("s_nop 1")
            e(f"v_cndmask_b32 v{vD+hf}, v{vt+5}, v{r}, vcc")
        sBlk = sT + 2
        sXs_ = sT + 3
        e(f"s_lshr_b32 s{sT}, s{sI}, 2")
        e(f"s_and_b32 s{sT+1}, s{sI}, 3")
        e(f"s_lshl_b32 s{sT+1}, s{sT+1}, 1")
        e(f"s_add_u32 s{sBlk}, s{sT}, s{sT+1}")
        e(f"s_sub_u32 s{sT}, s{sBlk}, 9")
        e(f"s_cmp_ge_u32 s{sBlk}, 9")
        e(f"s_cselect_b32 s{sBlk}, s{sT}, s{sBlk}")
        e(f"s_mul_i32 s{sWoff}, s{sBlk}, {64*3456}")
        e(f"s_mul_i32 s{sT}, s{sLw}, {2*13824}")
        e(f"s_add_u32 s{sWoff}, s{sWoff}, s{sT}")
        e(f"s_add_u32 s{sWlim}, s{sT}, {576*3456}")
        e(f"s_lshl_b32 s{sM0}, s{sLw}, 12")
        e(f"s_lshl_b32 s{sT}, s{sLw}, 4")
        e(f"s_add_u32 s{sT}, s{sT}, s{sRow0}")
        e(f"s_mul_i32 s{sXo}, s{sT}, 1152")
        e(f"s_sub_u32 s{sT}, s{sRow0}, 16")
        e(f"s_max_i32 s{sT}, s{sT}, 0")
        e(f"s_mul_i32 s{sXh}, s{sT}, 1152")
        e(f"s_lshl_b32 s{sLx}, s{sLw}, 11")
        e(f"s_add_u32 s{sLx}, s{sLx}, 2048")
        e(f"s_mov_b32 s{sXs_}, {XR0}")
        e(f"s_mov_b32 s{sIt}, 0")
        e(f"s_cmp_eq_u32 s{sLw}, 0")
        e(f"s_cselect_b32 s{sHf}, s{sBr}, 0")
        make_srds()

        def issue_x(hh, lim):
            e(f"s_lshl_b32 s{sTl}, s{sBlk}, 7")
            e(f"s_cmp_lt_u32 s{sIt}, {lim}")
            e(f"s_cselect_b32 s{sTl}, s{sTl}, 0x{OOB:x}")
            e(f"s_add_u32 s{sTl+1}, s{sXs_}, s{sLx}")
            for i in range(2):
                e(f"s_add_u32 m0, s{sTl+1}, {hh*8192 + i*1024}")
                e(f"s_add_u32 s{sT}, s{sTl}, s{sXo}")
                if hh or i:
                    e(f"s_add_u32 s{sT}, s{sT}, {(hh*64 + i*8)*1152}")
                e(f"buffer_load_dwordx4 v{vXo+i}, {sr(sX,4)}, s{sT} offen lds")
            lab = e.newlab("k1h")
            e(f"s_cmp_eq_u32 s{sHf}, 0")
            e(f"s_cbranch_scc1 {lab}")
            e(f"s_add_u32 m0, s{sXs_}, {hh*1024}")
            e(f"s_add_u32 s{sT}, s{sTl}, s{sXh}")
            if hh:
                e(f"s_add_u32 s{sT}, s{sT}, {8*1152}")
            e(f"buffer_load_dwordx4 v{vXo+hh}, {sr(sX,4)}, s{sT} offen lds")
            e.label(lab)
            if hh:
                e(f"s_add_u32 s{sBlk}, s{sBlk}, 1")
                e(f"s_cmp_eq_u32 s{sBlk}, 9")
                e(f"s_cselect_b32 s{sBlk}, 0, s{sBlk}")
                e(f"s_add_u32 s{sXs_}, s{sXs_}, {XSLOT}")
                e(f"s_cmp_eq_u32 s{sXs_}, {XR0 + 3*XSLOT}")
                e(f"s_cselect_b32 s{sXs_}, {XR0}, s{sXs_}")

        def issue(par):
            e(f"s_cmp_lt_u32 s{sIt}, 18")
            e(f"s_cselect_b32 s{sTl+1}, s{sWoff}, 0x{OOB:x}")
            for j in range(2):
                for hf in range(2):
                    if WBYC and j == 1 and hf == 1:
                        continue
                    e(f"s_add_u32 m0, s{sM0}, {j*2048 + hf*1024}")
                    e(f"s_add_u32 s{sTl}, s{sTl+1}, {j*13824}")
                    e(f"buffer_load_dwordx4 v{vD+hf}, {sr(sWq,4)}, s{sTl} offen lds")
            if not XBYC:
                issue_x(par ^ 1, 17)
            e(f"s_add_u32 s{sWoff}, s{sWoff}, {32*3456}")
            e(f"s_sub_u32 s{sTl}, s{sWoff}, {576*3456}")
            e(f"s_cmp_ge_u32 s{sWoff}, s{sWlim}")
            e(f"s_cselect_b32 s{sWoff}, s{sTl}, s{sWoff}")
            e(f"s_add_u32 s{sM0}, s{sM0}, {WSLOT}")
            e(f"s_and_b32 s{sM0}, s{sM0}, 0xffff")
            e(f"s_add_u32 s{sIt}, s{sIt}, 1")

        if not XBYC:
            issue_x(0, 17)
        NG = (3 if WBYC else 4) if XBYC else 6
        e("s_branch k1_l_i0")
        e.label("k1_l_loop")
        e(f"s_cmp_eq_u32 s{sIt}, 2")
        e("s_cbranch_scc1 k1_l_first")
        e(f"s_waitcnt vmcnt({2*NG})")
        e("s_barrier")
        e.label("k1_l_i0")
        issue(0)
        e(f"s_cmp_lt_u32 s{sIt}, 4")
        e("s_cbranch_scc1 k1_l_i1")
        e(f"s_waitcnt vmcnt({2*NG})")
        e("s_barrier")
        e.label("k1_l_i1")
        issue(1)
        e(f"s_cmp_eq_u32 s{sIt}, 4")
        e("s_cbranch_scc1 k1_l_scat")
        e.label("k1_l_cont")
        e(f"s_cmp_lt_u32 s{sIt}, 22")
        e("s_cbranch_scc1 k1_l_loop")
        e.stn = stn0 + 2 if STAMP else 0
        stamp(e)
        e("s_waitcnt vmcnt(0) lgkmcnt(0)")
        e("s_barrier")
        stamp(e)
        if os.environ.get('LPRIO', '0') != '0':
            e("s_setprio 0")
        e(f"s_cmp_eq_u32 s{sBr}, 0")
        e("s_cbranch_scc1 k1_A_epi")
        e("s_branch k1_B_epi")
        e.label("k1_l_first")
        e.stn = stn0
        stamp(e)
        e(f"s_cmp_lg_u32 s{sBr}, 0")
        e("s_cbranch_scc1 k1_l_first2")
        e(f"v_subrev_u32 v{vT2}, 256, v0")
        e(f"s_mul_i32 s{sT}, s{sHg}, {4*324*2}")
        wb_issue_loads2(e, sPhi, sT, vT2, vWE, vWD, vt, 256)
        lds_zero(e, K1_WB0, WB_BYTES, vT2, tmp, 256)
        e(f"v_mov_b32 v{tmp}, 0x3f803f80")
        e(f"v_mov_b32 v{tmp+1}, 0x3f803f80")
        e(f"v_mov_b32 v{tmp+2}, {K1_ONES}")
        e(f"ds_write_b64 v{tmp+2}, {vr(tmp,2)}")
        e(f"s_waitcnt vmcnt({NG+6}) lgkmcnt(0)")
        e("s_barrier")
        stamp(e)
        e("s_branch k1_l_i0")
        e.label("k1_l_first2")
        e(f"s_waitcnt vmcnt({NG})")
        e("s_barrier")
        e.stn = stn0 + 1 if STAMP else 0
        stamp(e)
        e("s_branch k1_l_i0")
        e.label("k1_l_scat")
        e(f"s_cmp_lg_u32 s{sBr}, 0")
        e("s_cbranch_scc1 k1_l_cont")
        e(f"s_waitcnt vmcnt({2*NG})")
        wb_scatter2(e, K1_WB0, K1_DUMP2, vWE, vWD, tmp, 256)
        e("s_branch k1_l_cont")

    def lit_sel(dst, L, t, isB):
        if isB:
            e(f"s_cmp_eq_u32 s{sMi}, 0")
            e(f"s_cselect_b32 s{dst}, 0x{L[t]:x}, 0x{L[(t+3)%7]:x}") if False else (
                e(f"s_mov_b32 s{dst}, 0x{L[t]:x}"), e(f"s_mov_b32 s{dst+1}, 0x{L[(t+3)%7]:x}"),
                e(f"s_cselect_b32 s{dst}, s{dst}, s{dst+1}"))
        else:
            e(f"s_mov_b32 s{dst}, 0x{L[t]:x}")

    def compute(isB):
        tag = "B" if isB else "A"
        nrt = 5 if isB else 4
        stamp(e)
        sBlk, sXo = sSl, sDl
        if XBYC:
            e(f"v_and_b32 v{vt}, 7, v{vL}")
            e(f"v_xor_b32 v{vt}, v{vt}, v{vG}")
            e(f"v_lshrrev_b32 v{vt+1}, 3, v{vL}")
            e(f"v_mul_u32_u24 v{vt+1}, 1152, v{vt+1}")
            e(f"v_lshl_add_u32 v{vXc}, v{vt}, 4, v{vt+1}")
            e(f"v_xor_b32 v{vXc+1}, 64, v{vXc}")
            e(f"s_lshr_b32 s{sT}, s{sI}, 2")
            e(f"s_and_b32 s{sT+1}, s{sI}, 3")
            e(f"s_lshl_b32 s{sT+1}, s{sT+1}, 1")
            e(f"s_add_u32 s{sBlk}, s{sT}, s{sT+1}")
            e(f"s_sub_u32 s{sT}, s{sBlk}, 9")
            e(f"s_cmp_ge_u32 s{sBlk}, 9")
            e(f"s_cselect_b32 s{sBlk}, s{sT}, s{sBlk}")
            e(f"s_lshl_b32 s{sBlk}, s{sBlk}, 7")
            e(f"s_lshl_b32 s{sT}, s{sW}, 4")
            e(f"s_add_u32 s{sT}, s{sT}, s{sRow0}")
            e(f"s_mul_i32 s{sXo}, s{sT}, 1152")
            e(f"s_sub_u32 s{sT}, s{sRow0}, 16")
            e(f"s_max_i32 s{sT}, s{sT}, 0")
            e(f"s_mul_i32 s{sXh}, s{sT}, 1152")
            e(f"s_cmp_eq_u32 s{sW}, 0")
            e(f"s_cselect_b32 s{sXh}, s{sXh}, 0x{OOB:x}")
            e(f"s_lshl_b32 s{sLx}, s{sW}, 11")
            e(f"s_add_u32 s{sLx}, s{sLx}, {XR0 + 2048}")

        sWo_c = sIt
        if WBYC:
            e(f"s_and_b32 s{sT}, s{sW}, 1")
            e(f"s_lshl_b32 s{sT}, s{sT}, 3")
            e(f"s_mul_i32 s{sT+1}, s{sHg}, 144")
            p, r, c, sg = vt, vt + 1, vt + 2, vt + 3
            e(f"s_sub_u32 s{sT+2}, 64, s{sT}")
            e(f"v_add_u32 v{p}, s{sT+2}, v{vL}")
            e(f"v_mul_u32_u24 v{r}, 2185, v{p}")
            e(f"v_lshrrev_b32 v{r}, 16, v{r}")
            e(f"v_mul_u32_u24 v{c}, 30, v{r}")
            e(f"v_sub_u32 v{c}, v{p}, v{c}")
            e(f"v_mul_u32_u24 v{sg}, 57, v{c}")
            e(f"v_lshrrev_b32 v{sg}, 9, v{sg}")
            e(f"v_mul_u32_u24 v{vt+4}, 9, v{sg}")
            e(f"v_sub_u32 v{vt+4}, v{c}, v{vt+4}")
            e(f"v_mul_u32_u24 v{r}, 3456, v{r}")
            e(f"v_mul_u32_u24 v{sg}, 1152, v{sg}")
            e(f"v_add3_u32 v{r}, v{r}, v{sg}, s{sT+1}")
            e(f"v_lshl_add_u32 v{r}, v{vt+4}, 4, v{r}")
            e(f"v_cmp_gt_u32 vcc, 120, v{p}")
            e(f"v_cmp_gt_u32 s[{sT+2}:{sT+3}], 27, v{c}")
            e(f"v_mov_b32 v{vt+5}, 0x{OOB:x}")
            e(f"s_and_b64 vcc, vcc, s[{sT+2}:{sT+3}]")
            e("s_nop 1")
            e(f"v_cndmask_b32 v{vWc}, v{vt+5}, v{r}, vcc")
            e(f"s_mul_i32 s{sWo_c}, s{sBlk}, {64*3456//128}")
            e(f"s_lshl_b32 s{sT}, s{sW}, 1")
            e(f"s_add_u32 s{sT}, s{sT}, 1")
            e(f"s_mul_i32 s{sT}, s{sT}, 13824")
            e(f"s_add_u32 s{sWo_c}, s{sWo_c}, s{sT}")
            e(f"s_add_u32 s{sWlim}, s{sT}, {576*3456}")
            e(f"s_lshl_b32 s{sHf}, s{sW}, 12")
            e(f"s_add_u32 s{sHf}, s{sHf}, 3072")
        order = []

        def wiss(g):
            if not WBYC or g >= 18:
                return []
            order.append(("W", g))
            return [f"s_add_u32 m0, s{sHf}, {(g % 4) * WSLOT}", "s_nop 0",
                    f"buffer_load_dwordx4 v{vWc}, {sr(sWq,4)}, s{sWo_c} offen lds",
                    f"s_add_u32 s{sWo_c}, s{sWo_c}, {32*3456}", f"s_sub_u32 s{sT}, s{sWo_c}, {576*3456}",
                    f"s_cmp_ge_u32 s{sWo_c}, s{sWlim}", f"s_cselect_b32 s{sWo_c}, s{sT}, s{sWo_c}"]

        def nwait(j):
            last = -1
            for i, (k, idx) in enumerate(order):
                if (k == "W" and idx <= j + 1) or (k == "X" and idx <= j + 2):
                    last = i
            return len(order) - 1 - last

        def xiss(h):
            if not XBYC or h >= 18:
                return []
            hh = h & 1
            slot = ((h >> 1) % 3) * XSLOT
            order.extend([("X", h), ("X", h)])
            L = []
            for i in range(2):
                L.append(f"s_add_u32 m0, s{sLx}, {slot + hh*8192 + i*1024}")
                L.append(f"s_add_u32 s{sT}, s{sBlk}, s{sXo}")
                if hh or i:
                    L.append(f"s_add_u32 s{sT}, s{sT}, {(hh*64 + i*8)*1152}")
                L.append(f"buffer_load_dwordx4 v{vXc+i}, {sr(sX,4)}, s{sT} offen lds")
            if isB:
                lab = e.newlab("k1c")
                L.append(f"s_cmp_lg_u32 s{sW}, 0")
                L.append(f"s_cbranch_scc1 {lab}")
                L.append(f"s_mov_b32 m0, {XR0 + slot + hh*1024}")
                L.append(f"s_add_u32 s{sT}, s{sBlk}, s{sXh}")
                if hh:
                    L.append(f"s_add_u32 s{sT}, s{sT}, {8*1152}")
                L.append(f"buffer_load_dwordx4 v{vXc+hh}, {sr(sX,4)}, s{sT} offen lds")
                L.append(lab + ":")
            if hh:
                L.append(f"s_add_u32 s{sBlk}, s{sBlk}, 128")
                L.append(f"s_cmp_eq_u32 s{sBlk}, 1152")
                L.append(f"s_cselect_b32 s{sBlk}, 0, s{sBlk}")
            return L
        for x in wiss(0) + xiss(0) + xiss(1) + wiss(1) + xiss(2):
            e(x)
        base = vt + 6
        e(f"v_lshlrev_b32 v{base}, 12, v{vG}")
        e(f"v_and_b32 v{vt}, 1, v{vG}")
        e(f"v_lshl_add_u32 v{base}, v{vt}, 7, v{base}")
        e(f"v_mul_u32_u24 v{vt}, 480, v{vR4}")
        e(f"s_mul_i32 s{sT+2}, s{sNi}, 72")
        e(f"v_add3_u32 v{base}, v{base}, v{vt}, s{sT+2}")
        e(f"v_lshlrev_b32 v{vt+1}, 3, v{vC4}")
        for t in range(7):
            lit_sel(sT, LITW, t, isB)
            e(f"v_bfe_u32 v{vt}, s{sT}, v{vt+1}, 8")
            e(f"v_lshl_add_u32 v{vRA+t}, v{vt}, 3, v{base}")
        e(f"v_lshrrev_b32 v{vt}, 1, v{vL15}")
        e(f"v_xor_b32 v{vt}, v{vt}, v{vG}")
        e(f"v_lshlrev_b32 v{vt+1}, 7, v{vL15}")
        e(f"v_lshl_add_u32 v{vt}, v{vt}, 4, v{vt+1}")
        e(f"v_add_u32 v{vRA+9}, {XR0}, v{vt}")
        e(f"v_xor_b32 v{vRA+10}, 64, v{vRA+9}")
        e(f"s_lshl_b32 s{sT}, s{sMi}, 13")
        e(f"s_add_u32 s{sT}, s{sT}, 2048")
        e(f"v_add_u32 v{vRA+7}, s{sT}, v{vRA+9}")
        e(f"v_add_u32 v{vRA+8}, s{sT}, v{vRA+10}")

        def reads(st):
            fb = st & 1
            xo = ((st >> 1) % 3) * XSLOT
            wo = (st % 4) * WSLOT
            L = []
            for rt in range(4):
                L.append(f"ds_read_b128 {vr(FX + fb*20 + rt*4, 4)}, v{vRA+7+fb} offset:{xo + rt*2048}")
            if isB:
                L.append(f"ds_read_b128 {vr(FX + fb*20 + 16, 4)}, v{vRA+9+fb} offset:{xo}")
            for t in range(7):
                for h in range(2):
                    L.append(f"ds_read_b64_tr_b16 {vr(FW + fb*28 + t*4 + h*2, 2)}, v{vRA+t} offset:{wo + h*2048}")
            return L

        if XBYC:
            e(f"s_waitcnt vmcnt({nwait(-1)})")
        e("s_barrier")
        stamp(e)
        for r in reads(0) + wiss(2) + xiss(3) + wiss(3) + xiss(4):
            e(r)
        for st in range(18):
            fb = st & 1
            if XBYC:
                e(f"s_waitcnt vmcnt({nwait(st)}) lgkmcnt(0)")
            else:
                e("s_waitcnt lgkmcnt(0)")
            e("s_barrier")
            M = []
            for t in range(7):
                for rt in range(4):
                    M.append(mf(ACC + (t * 4 + rt) * 4, FW + fb * 28 + t * 4, FX + fb * 20 + rt * 4, "0" if st == 0 else None))
                if isB and t < 3:
                    M.append(mf(ACC + 112 + t * 4, FW + fb * 28 + t * 4, FX + fb * 20 + 16, "0" if st == 0 else None))
            oth = reads(st + 1) if st < 17 else []
            xi = wiss(st + 4) + xiss(st + 5)
            oi = 0
            for i, m in enumerate(M):
                if os.environ.get('K1NOMFMA', '0') == '0':
                    e(m)
                if oi < len(oth):
                    e(oth[oi]); oi += 1
                elif xi:
                    for x in xi:
                        e(x)
                    xi = []
            assert oi == len(oth) and not xi
        stamp(e)
        e("s_waitcnt lgkmcnt(0)")
        e("s_barrier")
        stamp(e)

    def prefetch_wo():
        e(f"s_cmp_lt_u32 s{sI}, 16")
        e(f"s_cselect_b32 s{sPB}, s{sPP+2}, s{sPO}")
        e(f"s_cselect_b32 s{sPB+1}, s{sPP+3}, s{sPO+1}")
        e(f"s_and_b32 s{sTl+1}, s{sI}, 15")
        e(f"s_mul_i32 s{sTl+1}, s{sTl+1}, 324")
        e(f"s_mul_i32 s{sTl}, s{sW}, 41")
        e(f"s_add_u32 s{sTl+1}, s{sTl+1}, s{sTl}")
        e(f"v_min_u32 v{vt}, 40, v{vL}")
        e(f"v_add_u32 v{vt}, s{sTl+1}, v{vt}")
        e(f"v_lshlrev_b32 v{vt}, 7, v{vt}")
        srd(e, sX, sPB, WO_BYTES)
        e(f"buffer_load_dword v{vPF}, v{vt}, {sr(sX,4)}, 0 offen")

    e(f"s_cmp_lt_u32 s{sW}, 4")
    e("s_cbranch_scc1 k1_comp")
    loader()
    e.label("k1_comp")
    e.stn = stn0
    if os.environ.get('CODEPF', '1') != '0':
        e(f"s_and_b32 s{sT}, s{sI}, 7")
        e(f"s_cmp_lg_u32 s{sT}, 0")
        e("s_cbranch_scc1 k1_nopf")
        e(f"s_getpc_b64 {sr(sX,2)}")
        e.label("k1_pc")
        e(f"s_sub_u32 s{sX}, s{sX}, k1_pc - k1_kernel")
        e(f"s_subb_u32 s{sX+1}, s{sX+1}, 0")
        e(f"s_and_b32 s{sX+1}, s{sX+1}, 0xffff")
        e(f"s_mov_b32 s{sX+2}, code_end - k1_kernel")
        e(f"s_mov_b32 s{sX+3}, 0x00020000")
        e(f"v_lshlrev_b32 v{vt}, 7, v0")
        e(f"buffer_load_dword v{vPF}, v{vt}, {sr(sX,4)}, 0 offen")
        e(f"s_mov_b32 s{sT}, 32768")
        e(f"buffer_load_dword v{vPF}, v{vt}, {sr(sX,4)}, s{sT} offen")
        e.label("k1_nopf")
    make_srds()
    e(f"s_cmp_eq_u32 s{sBr}, 1")
    e("s_cbranch_scc1 k1_B")
    compute(False)
    PK = FW
    for u in range(28):
        a = ACC + u * 4
        e(f"v_cvt_pk_bf16_f32 v{PK+2*u}, v{a}, v{a+1}")
        e(f"v_cvt_pk_bf16_f32 v{PK+2*u+1}, v{a+2}, v{a+3}")
    vRowL = vt + 6
    vG8 = vt + 7
    e(f"s_lshl_b32 s{sT+2}, s{sMi}, 6")
    e(f"v_add_u32 v{vt}, s{sT+2}, v{vL15}")
    e(f"v_mul_u32_u24 v{vRowL}, {TA_PITCH}, v{vt}")
    e(f"s_mul_i32 s{sT+3}, s{sNi}, 72")
    e(f"v_add_u32 v{vRowL}, s{sT+3}, v{vRowL}")
    e(f"v_lshlrev_b32 v{vG8}, 3, v{vG}")
    for t in range(5):
        e(f"s_mov_b32 s{sT}, 0x{LITA[t]:x}")
        e(f"v_bfe_u32 v{vt}, s{sT}, v{vG8}, 8")
        e(f"v_lshl_add_u32 v{vt}, v{vt}, 3, v{vRowL}")
        if t == 4:
            e(f"v_cmp_lt_u32 vcc, 1, v{vG}")
            e(f"v_subrev_u32 v{vt+1}, s{sT+3}, v{vt}")
            e("s_nop 0")
            e(f"v_cndmask_b32 v{vt}, v{vt}, v{vt+1}, vcc")
        for rt in range(4):
            e(f"ds_write_b64 v{vt}, {vr(PK + (t*4+rt)*2, 2)} offset:{rt*16*TA_PITCH}")
    e(f"s_lshl_b32 s{sT}, s{sRb}, 3")
    e(f"s_lshl_b32 s{sT+1}, s{sMi}, 2")
    e(f"s_add_u32 s{sT}, s{sT}, s{sT+1}")
    e(f"s_mul_i32 s{sT}, s{sT}, 72")
    e(f"s_mul_i32 s{sT+1}, s{sHg}, 9")
    e(f"s_add_u32 s{sT}, s{sT}, s{sT+1}")
    e(f"s_lshl_b32 s{sT}, s{sT}, 8")
    e(f"s_add_u32 s{sT}, s{sT}, {WS_Q}")
    e(f"s_mul_i32 s{sT+2}, s{sNi}, 9")
    for t in range(4, 7):
        e(f"s_mov_b32 s{sT+1}, 0x{LITQ[t]:x}")
        e(f"v_bfe_u32 v{vt}, s{sT+1}, v{vG8}, 8")
        e(f"v_cmp_ne_u32 vcc, 255, v{vt}")
        e(f"v_add_u32 v{vt}, s{sT+2}, v{vt}")
        e(f"v_lshrrev_b32 v{vt+1}, 1, v{vt}")
        e(f"v_and_b32 v{vt}, 1, v{vt}")
        e(f"v_lshlrev_b32 v{vt+1}, 8, v{vt+1}")
        e(f"v_lshl_add_u32 v{vt+1}, v{vt}, 3, v{vt+1}")
        e(f"v_lshl_add_u32 v{vt+1}, v{vL15}, 4, v{vt+1}")
        e(f"v_mov_b32 v{vt+2}, 0x{OOB:x}")
        e(f"v_cndmask_b32 v{vt+3+(t-4)}, v{vt+2}, v{vt+1}, vcc")
    for rt in range(4):
        e(f"s_add_u32 s{sT+1}, s{sT}, {rt*18432}")
        for t in range(4, 7):
            e(f"buffer_store_dwordx2 {vr(PK + (t*4+rt)*2, 2)}, v{vt+3+(t-4)}, {sr(sWs,4)}, s{sT+1} offen")
    e.label("k1_A_epi")
    prefetch_wo()
    e(f"s_cmp_lg_u32 s{sRb}, 0")
    e("s_cbranch_scc1 k1_A_nodump")
    e(f"s_cmp_lg_u32 s{sHg}, 0")
    e("s_cbranch_scc1 k1_A_nodump")
    e(f"v_lshlrev_b32 v{vt+4}, 3, v0")
    e(f"v_mov_b32 v{vt+2}, 0")
    e(f"v_mov_b32 v{vt+3}, 0")
    e(f"s_mov_b32 s{sTl}, {WS_FL}")
    e(f"buffer_store_dwordx2 {vr(vt+2,2)}, v{vt+4}, {sr(sWs,4)}, s{sTl} offen")
    e.label("k1_A_nodump")
    e("s_waitcnt lgkmcnt(0)")
    e("s_barrier")
    stamp(e)
    XR = ACC + 64
    BK = FX
    AW = ACC
    P = FX + 12
    e(f"s_lshl_b32 s{sT}, s{sW}, 4")
    e(f"v_add_u32 v{vt}, s{sT}, v{vL15}")
    e(f"v_mul_u32_u24 v{vt+1}, {TA_PITCH}, v{vt}")
    e(f"v_lshl_add_u32 v{vt+1}, v{vG}, 4, v{vt+1}")
    for st in range(3):
        e(f"ds_read_b128 {vr(BK+st*4,4)}, v{vt+1} offset:{st*64}")
    e(f"v_mul_u32_u24 v{vt+2}, {WB_PITCH}, v{vL15}")
    e(f"v_lshl_add_u32 v{vt+2}, v{vG}, 4, v{vt+2}")
    e(f"v_add_u32 v{vt+3}, {K1_WB0}, v{vt+2}")
    for cf in range(5):
        for st in range(3):
            e(f"ds_read_b128 {vr(AW+(cf*3+st)*4,4)}, v{vt+3} offset:{cf*16*WB_PITCH + st*64}")
    sL = e.s(2)
    e(f"s_mov_b32 s{sL}, 0x{LOG2E:x}")
    e(f"s_mov_b32 s{sL+1}, 0x{LOG2E:x}")
    for cf in range(5):
        e(f"s_waitcnt lgkmcnt({12 - 3*cf})")
        for st in range(3):
            mfma(e, P + cf * 4, AW + (cf * 3 + st) * 4, BK + st * 4, "0" if st == 0 else None)
    e(f"s_lshl_b32 s{sTl}, s{sRb}, 3")
    e(f"s_add_u32 s{sTl}, s{sTl}, s{sW}")
    e(f"s_cmp_lg_u32 s{sTl}, 7")
    e("s_cbranch_scc1 k1_A_nofd")
    e(f"v_lshlrev_b32 v{vt+4}, 4, v{vL}")
    e(f"s_mul_i32 s{sTl}, s{sHg}, 15360")
    e(f"s_add_u32 s{sTl}, s{sTl}, {WS_WB}")
    for f in range(15):
        if f and f % 4 == 0:
            e(f"s_add_u32 s{sTl}, s{sTl}, 4096")
        e(f"buffer_store_dwordx4 {vr(AW+f*4,4)}, v{vt+4}, {sr(sWs,4)}, s{sTl} offen offset:{(f%4)*1024}")
    e.label("k1_A_nofd")
    e("s_nop 7")
    E1 = XR
    E2 = XR + 18
    PH = XR + 36
    softmax_pm(e, P, E1, E2, PH, XR + 56 - 4 + 4, sL) if False else softmax_pm(e, P, E1, E2, PH, FW, sL)
    e(f"v_mul_u32_u24 v{vt+1}, {PHI_PITCH}, v{vt}")
    e(f"v_mul_u32_u24 v{vt+2}, 80, v{vG}")
    e(f"v_add_u32 v{vt+1}, v{vt+1}, v{vt+2}")
    for i in range(4):
        e(f"ds_write_b128 v{vt+1}, {vr(PH+i*4,4)} offset:{PHI0 + i*16}")
    e(f"ds_write_b64 v{vt+1}, {vr(PH+16,2)} offset:{PHI0 + 64}")
    sHh, sXx = sT + 2, sT + 3
    e(f"s_lshr_b32 s{sHh}, s{sW}, 1")
    e(f"s_and_b32 s{sXx}, s{sW}, 1")
    e(f"v_lshl_add_u32 v{vt}, v{vG}, 3, v{vR4}")
    e(f"v_mul_u32_u24 v{vt+1}, {PHI_PITCH}, v{vt}")
    e(f"v_lshl_add_u32 v{vt+1}, v{vC4}, 3, v{vt+1}")
    e(f"s_mul_i32 s{sT}, s{sHh}, 80")
    e(f"s_add_u32 s{sT}, s{sT}, {PHI0}")
    e(f"v_add_u32 v{vt+1}, s{sT}, v{vt+1}")
    e(f"v_mul_u32_u24 v{vt+2}, {TA_PITCH}, v{vt}")
    e(f"s_lshr_b32 s{sT}, s{sHh}, 1")
    e(f"s_mul_i32 s{sT}, s{sT}, 72")
    e(f"s_add_u32 s{sT}, s{sT}, 144")
    e(f"s_and_b32 s{sT+1}, s{sHh}, 1")
    e(f"s_mul_i32 s{sT+1}, s{sT+1}, 40")
    e(f"s_cmp_eq_u32 s{sXx}, 0")
    e(f"s_cselect_b32 s{sT+1}, s{sT+1}, 32")
    e(f"s_add_u32 s{sT}, s{sT}, s{sT+1}")
    e(f"v_lshl_add_u32 v{vt+3}, v{vC4}, 3, v{vt+2}")
    e(f"v_add_u32 v{vt+3}, s{sT}, v{vt+3}")
    sMask = e.s(2)
    e(f"v_cmp_lt_u32 {sr(sMask,2)}, 0, v{vC4}")
    e(f"s_cmp_eq_u32 s{sXx}, 0")
    e(f"s_cselect_b64 {sr(sMask,2)}, 0, {sr(sMask,2)}")
    e(f"v_mov_b32 v{vt+4}, {K1_ONES}")
    BA = FW + 8
    for ks in range(4):
        for h in range(2):
            off = (ks * 32 + h * 4)
            e(f"v_add_u32 v{BA+ks*2+h}, {off*TA_PITCH}, v{vt+3}")
            e(f"v_cndmask_b32 v{BA+ks*2+h}, v{BA+ks*2+h}, v{vt+4}, {sr(sMask,2)}")
    e("s_waitcnt lgkmcnt(0)")
    e("s_barrier")
    stamp(e)
    AF = ACC
    BF = ACC + 48
    KV = FX
    for ks in range(4):
        for h in range(2):
            off = (ks * 32 + h * 4)
            e(f"ds_read_b64_tr_b16 {vr(BF+ks*4+h*2,2)}, v{BA+ks*2+h}")
            for ft in range(3):
                e(f"ds_read_b64_tr_b16 {vr(AF+(ks*3+ft)*4+h*2,2)}, v{vt+1} offset:{off*PHI_PITCH + ft*32}")
    e(f"s_and_b32 s{sT+1}, s{sHh}, 1")
    e(f"s_lshl_b32 s{sT}, s{sT+1}, 1")
    e(f"v_add_u32 v{vt}, s{sT}, v{vL15}")
    e(f"v_subrev_u32 v{vt+1}, s{sT}, v{vL15}")
    e(f"s_xor_b32 s{sT+1}, s{sT+1}, 1")
    e(f"s_lshl_b32 s{sT+1}, s{sT+1}, 4")
    e(f"v_cmp_gt_u32 vcc, 2, v{vt+1}")
    e(f"v_add_u32 v{vt+1}, s{sT+1}, v{vt+1}")
    e(f"v_mov_b32 v{vt+2}, 0x40000")
    e("s_nop 0")
    e(f"v_cndmask_b32 v{vt+1}, v{vt+2}, v{vt+1}, vcc")
    e(f"v_cmp_eq_u32 vcc, 4, v{vL15}")
    e("s_nop 1")
    e(f"v_cndmask_b32 v{vt+1}, v{vt+1}, 18, vcc")
    e(f"s_cmp_eq_u32 s{sXx}, 0")
    e(f"s_cselect_b64 vcc, -1, 0")
    e("s_nop 1")
    e(f"v_cndmask_b32 v{vt}, v{vt+1}, v{vt}, vcc")
    e(f"v_mul_u32_u24 v{vt}, 72, v{vt}")
    e(f"v_lshl_add_u32 v{vt}, v{vG}, 3, v{vt}")
    e(f"s_lshl_b32 s{sT}, s{sRb}, 5")
    e(f"s_lshl_b32 s{sT+1}, s{sHg}, 2")
    e(f"s_add_u32 s{sT}, s{sT}, s{sT+1}")
    e(f"s_add_u32 s{sT}, s{sT}, s{sHh}")
    e(f"s_mul_i32 s{sT}, s{sT}, 1368")
    e(f"s_add_u32 s{sT}, s{sT}, {WS_P}")
    e(f"v_cmp_eq_u32 vcc, 0, v{vG}")
    e(f"v_mov_b32 v{vt+2}, 0x{OOB:x}")
    e("s_nop 1")
    e(f"v_cndmask_b32 v{vt+1}, v{vt+2}, v{vt}, vcc")
    for ks in range(4):
        e(f"s_waitcnt lgkmcnt({min(15, 24 - 8*ks)})" if ks < 3 else "s_waitcnt lgkmcnt(0)")
        for ft in range(3):
            mfma(e, KV + ft * 4, AF + (ks * 3 + ft) * 4, BF + ks * 4, "0" if ks == 0 else None)
    e("s_nop 7")
    e("s_nop 1")
    for ft in range(3):
        e(f"v_cvt_pk_bf16_f32 v{KV+12+2*ft}, v{KV+4*ft}, v{KV+4*ft+1}")
        e(f"v_cvt_pk_bf16_f32 v{KV+13+2*ft}, v{KV+4*ft+2}, v{KV+4*ft+3}")
    e(f"buffer_store_dwordx2 {vr(KV+12,2)}, v{vt}, {sr(sWs,4)}, s{sT} offen")
    e(f"buffer_store_dwordx2 {vr(KV+14,2)}, v{vt}, {sr(sWs,4)}, s{sT} offen offset:32")
    e(f"buffer_store_dwordx2 {vr(KV+16,2)}, v{vt+1}, {sr(sWs,4)}, s{sT} offen offset:64")
    stamp_dump(e, sWs, 0, vt, sT)
    e("s_endpgm")
    e.label("k1_B")
    e.stn = stn0
    compute(True)
    PK = FW
    for u in range(31):
        a = ACC + u * 4
        e(f"v_cvt_pk_bf16_f32 v{PK+2*u}, v{a}, v{a+1}")
        e(f"v_cvt_pk_bf16_f32 v{PK+2*u+1}, v{a+2}, v{a+3}")
    vRowL = vt + 6
    vG8 = vt + 7
    e(f"v_mul_u32_u24 v{vRowL}, {TB_PITCH}, v{vL15}")
    e(f"s_mul_i32 s{sT+3}, s{sNi}, 80")
    e(f"v_add_u32 v{vRowL}, s{sT+3}, v{vRowL}")
    e(f"v_lshlrev_b32 v{vG8}, 3, v{vG}")
    sMo = sT + 2
    e(f"s_lshl_b32 s{sMo}, s{sMi}, 6")
    e(f"s_add_u32 s{sMo}, s{sMo}, 16")
    e(f"s_mul_i32 s{sMo}, s{sMo}, {TB_PITCH}")
    for t in range(7):
        lit_sel(sT, LITB, t, True)
        e(f"v_bfe_u32 v{vt}, s{sT}, v{vG8}, 8")
        e(f"v_lshl_add_u32 v{vt}, v{vt}, 3, v{vRowL}")
        e(f"v_add_u32 v{vt+1}, s{sMo}, v{vt}")
        for rt in range(4):
            e(f"ds_write_b64 v{vt+1}, {vr(PK + (t*4+rt)*2, 2)} offset:{rt*16*TB_PITCH}")
        if t < 3:
            e(f"ds_write_b64 v{vt}, {vr(PK + (28+t)*2, 2)}")
    e.label("k1_B_epi")
    prefetch_wo()
    base = ACC
    Q = base
    KK = base + 10
    VV = base + 90
    LG = base + 170
    assert LG + 8 <= vtop
    O = KK
    AL = KK + 20
    AH = KK + 28
    vM, vR, vS = vt + 4, vt + 5, vt + 6
    e(f"s_and_b32 s{sT}, s{sW}, 3")
    e(f"s_lshr_b32 s{sT+1}, s{sW}, 2")
    e(f"s_lshl_b32 s{sT+1}, s{sT+1}, 6")
    e(f"v_add_u32 v{vS}, s{sT+1}, v{vL}")
    e(f"v_add_u32 v{vt}, 2, v{vS}")
    e(f"v_mul_u32_u24 v{vt}, {TB_PITCH}, v{vt}")
    e(f"s_lshr_b32 s{sT+2}, s{sT}, 1")
    e(f"s_mul_i32 s{sT+2}, s{sT+2}, 80")
    e(f"s_and_b32 s{sT+3}, s{sT}, 1")
    e(f"s_mul_i32 s{sTl}, s{sT+3}, 48")
    e(f"s_add_u32 s{sTl}, s{sTl}, s{sT+2}")
    e(f"v_add_u32 v{vM}, s{sTl}, v{vt}")
    e(f"s_lshl_b32 s{sTl}, s{sT+3}, 2")
    e(f"s_add_u32 s{sTl}, s{sTl}, s{sT+2}")
    e(f"s_add_u32 s{sTl}, s{sTl}, 32")
    e(f"v_add_u32 v{vR}, s{sTl}, v{vt}")
    vO = vt + 7
    e(f"v_mul_u32_u24 v{vO}, 144, v{vS}")
    e(f"s_mul_i32 s{sTl}, s{sT}, 36")
    e(f"s_add_u32 s{sTl}, s{sTl}, {OB0}")
    e(f"v_add_u32 v{vO}, s{sTl}, v{vO}")
    e(f"v_add_u32 v{vS}, s{sRow0}, v{vS}")
    sMk = e.s(16, 2)
    for w in range(1, 8):
        e(f"v_cmp_le_u32 {sr(sMk+2*w,2)}, {2*w}, v{vS}")
    e("s_waitcnt lgkmcnt(0)")
    e("s_barrier")
    stamp(e)

    def rdseg(dst, typ, w):
        off = (14 - 2 * w) * TB_PITCH + typ * 160
        e(f"ds_read_b128 {vr(dst,4)}, v{vM} offset:{off}")
        e(f"ds_read_b128 {vr(dst+4,4)}, v{vM} offset:{off+16}")
        e(f"ds_read_b32 v{dst+8}, v{vR} offset:{off}")

    rdseg(Q, 0, 0)
    for w in range(8):
        rdseg(KK + w * 10, 1, w)
    for w in range(8):
        e(f"v_mov_b32 v{LG+w}, 0")
    e("s_waitcnt lgkmcnt(12)")
    for w in range(4):
        rdseg(VV + w * 10, 2, w)
    for p in range(9):
        for w in range(4):
            e(f"v_dot2c_f32_bf16 v{LG+w}, v{Q+p}, v{KK+w*10+p}")
    e("s_waitcnt lgkmcnt(12)")
    for w in range(4, 8):
        rdseg(VV + w * 10, 2, w)
    for p in range(9):
        for w in range(4, 8):
            e(f"v_dot2c_f32_bf16 v{LG+w}, v{Q+p}, v{KK+w*10+p}")
    e(f"v_mov_b32 v{vt}, 0xf149f2ca")
    e("s_nop 2")
    for w in range(1, 8):
        e(f"v_cndmask_b32 v{LG+w}, v{vt}, v{LG+w}, {sr(sMk+2*w,2)}")
    e(f"v_max3_f32 v{vt}, v{LG}, v{LG+1}, v{LG+2}")
    e(f"v_max3_f32 v{vt}, v{vt}, v{LG+3}, v{LG+4}")
    e(f"v_max3_f32 v{vt}, v{vt}, v{LG+5}, v{LG+6}")
    e(f"v_max_f32 v{vt}, v{vt}, v{LG+7}")
    import struct, math
    cval = struct.unpack("<I", struct.pack("<f", (18 ** -0.5) * math.log2(math.e)))[0]
    e(f"s_mov_b32 s{sT+2}, 0x{cval:x}")
    e(f"v_mul_f32 v{vt}, s{sT+2}, v{vt}")
    for w in range(8):
        e(f"v_fma_f32 v{LG+w}, v{LG+w}, s{sT+2}, -v{vt}")
    for w in range(8):
        e(f"v_exp_f32 v{LG+w}, v{LG+w}")
    e("s_nop 0")
    e(f"v_add_f32 v{vt}, v{LG}, v{LG+1}")
    for w in range(2, 8):
        e(f"v_add_f32 v{vt}, v{vt}, v{LG+w}")
    e(f"v_rcp_f32 v{vt}, v{vt}")
    for i in range(18):
        e(f"v_mov_b32 v{O+i}, 0")
    for w in range(8):
        e(f"v_mul_f32 v{LG+w}, v{LG+w}, v{vt}")
    for w in range(8):
        e(f"v_cvt_pk_bf16_f32 v{AL+w}, v{LG+w}, 0")
        e(f"v_cvt_pk_bf16_f32 v{AH+w}, 0, v{LG+w}")
    e("s_waitcnt lgkmcnt(0)")
    for w in range(8):
        for p in range(9):
            e(f"v_dot2c_f32_bf16 v{O+2*p}, v{AL+w}, v{VV+w*10+p}")
            e(f"v_dot2c_f32_bf16 v{O+2*p+1}, v{AH+w}, v{VV+w*10+p}")
    e("s_nop 2")
    OP = Q
    for p in range(9):
        e(f"v_cvt_pk_bf16_f32 v{OP+p}, v{O+2*p}, v{O+2*p+1}")
    e(f"s_lshl_b32 s{sTl}, s{sT+3}, 2")
    e(f"v_add_u32 v{vt}, s{sTl}, v{vO}")
    for i in range(4):
        e(f"ds_write_b64 v{vt}, {vr(OP+2*i,2)} offset:{8*i}")
    e(f"s_xor_b32 s{sT+3}, s{sT+3}, 1")
    e(f"s_lshl_b32 s{sT+3}, s{sT+3}, 5")
    e(f"v_add_u32 v{vt+1}, s{sT+3}, v{vO}")
    e(f"ds_write_b32 v{vt+1}, v{OP+8}")
    e(f"s_lshl_b32 s{sT}, s{sW}, 4")
    e(f"v_add_u32 v{vt}, s{sT}, v{vL15}")
    e(f"v_mul_u32_u24 v{vt}, 144, v{vt}")
    e(f"v_lshl_add_u32 v{vt}, v{vG}, 4, v{vt}")
    e(f"v_add_u32 v{vt}, {OB0}, v{vt}")
    e(f"v_lshlrev_b32 v{vt+1}, 4, v{vL}")
    e(f"v_cmp_eq_u32 vcc, 0, v{vG}")
    e(f"v_mov_b32 v{vt+2}, 0x{OOB:x}")
    e(f"s_lshl_b32 s{sT}, s{sRb}, 3")
    e(f"s_add_u32 s{sT}, s{sT}, s{sW}")
    e(f"v_cndmask_b32 v{vt+2}, v{vt+2}, v{vt+1}, vcc")
    e(f"s_mul_i32 s{sT}, s{sT}, 72")
    e(f"s_mul_i32 s{sT+1}, s{sHg}, 9")
    e(f"s_add_u32 s{sT}, s{sT}, s{sT+1}")
    e(f"s_lshl_b32 s{sT}, s{sT}, 8")
    e(f"s_add_u32 s{sT}, s{sT}, {WS_OB}")
    e("s_waitcnt lgkmcnt(0)")
    e("s_barrier")
    CO = KK
    for i in range(3):
        e(f"ds_read_b128 {vr(CO+4*i,4)}, v{vt} offset:{64*i}")
    for i in range(3):
        e(f"s_waitcnt lgkmcnt({2-i})")
        e(f"buffer_store_dwordx4 {vr(CO+4*i,4)}, v{vt+1 if i < 2 else vt+2}, {sr(sWs,4)}, s{sT} offen offset:{1024*i}")
    stamp_dump(e, sWs, 0, vt, sT)
    e("s_endpgm")
    e.label(Lend)
    e("s_endpgm")
    return e.vmax, e.smax


GEMM_LDS = 576 * 128


def gemm_pre(e, NW, sRbk, sNb, sW, vL, vL15, vG, vR4, vC4, vt, sT):
    g = {}
    sRt, sRot = e.s(), e.s()
    e(f"s_mul_i32 s{sRt}, s{sRbk}, {NW}")
    e(f"s_add_u32 s{sRt}, s{sRt}, s{sW}")
    e(f"s_lshl_b32 s{sRot}, s{sRbk}, 1")
    e(f"s_add_u32 s{sRot}, s{sRot}, s{sNb}")
    e(f"s_mul_i32 s{sT}, s{sRot}, 7282")
    e(f"s_lshr_b32 s{sT}, s{sT}, 16")
    e(f"s_mul_i32 s{sT}, s{sT}, 9")
    e(f"s_sub_u32 s{sRot}, s{sRot}, s{sT}")
    vX = e.v()
    e(f"v_lshlrev_b32 v{vX}, 4, v{vL}")
    vD = e.v(2)
    e(f"v_and_b32 v{vt}, 1, v{vG}")
    e(f"v_lshlrev_b32 v{vt}, 1, v{vt}")
    e(f"v_and_b32 v{vt+1}, 7, v{vL}")
    e(f"v_xor_b32 v{vt}, v{vt}, v{vt+1}")
    e(f"v_lshrrev_b32 v{vt+1}, 3, v{vL}")
    e(f"v_mul_u32_u24 v{vt+1}, 1152, v{vt+1}")
    e(f"v_lshl_add_u32 v{vD}, v{vt}, 4, v{vt+1}")
    e(f"v_xor_b32 v{vD+1}, 64, v{vD}")
    g.update(sRt=sRt, sRot=sRot, vX=vX, vD=vD)
    return g


W2OFF = GEMM_LDS
STG0 = 2 * GEMM_LDS
K23_LDS = STG0 + 8 * 2048


def out_stage(e, ACC, PKd, sW, sRt, sOcol, sOut, vL, vL15, vG, vt, sT):
    for t in range(4):
        a = ACC + t * 4
        d = PKd + t * 2
        e(f"v_cvt_pk_bf16_f32 v{d}, v{a}, v{a+1}")
        e(f"v_cvt_pk_bf16_f32 v{d+1}, v{a+2}, v{a+3}")
    e(f"s_lshl_b32 s{sT}, s{sW}, 11")
    e(f"s_add_u32 s{sT}, s{sT}, {STG0}")
    e(f"v_lshrrev_b32 v{vt}, 1, v{vG}")
    e(f"v_and_b32 v{vt+1}, 7, v{vL15}")
    e(f"v_xor_b32 v{vt}, v{vt}, v{vt+1}")
    e(f"v_lshlrev_b32 v{vt}, 4, v{vt}")
    e(f"v_lshl_add_u32 v{vt}, v{vL15}, 7, v{vt}")
    e(f"v_and_b32 v{vt+1}, 1, v{vG}")
    e(f"v_lshl_add_u32 v{vt}, v{vt+1}, 3, v{vt}")
    e(f"v_add_u32 v{vt}, s{sT}, v{vt}")
    for t in range(4):
        if t:
            e(f"v_xor_b32 v{vt+1}, {t*32}, v{vt}")
        e(f"ds_write_b64 v{vt+1 if t else vt}, {vr(PKd+t*2,2)}")
    e(f"v_lshrrev_b32 v{vt+2}, 3, v{vL}")
    e(f"v_and_b32 v{vt+3}, 7, v{vL}")
    e(f"v_xor_b32 v{vt+4}, v{vt+3}, v{vt+2}")
    e(f"v_lshlrev_b32 v{vt+4}, 4, v{vt+4}")
    e(f"v_lshl_add_u32 v{vt+4}, v{vt+2}, 7, v{vt+4}")
    e(f"v_add_u32 v{vt+4}, s{sT}, v{vt+4}")
    e(f"s_lshl_b32 s{sT+1}, s{sRt}, 4")
    e(f"v_add_u32 v{vt+2}, s{sT+1}, v{vt+2}")
    e(f"v_mul_u32_u24 v{vt+2}, 2304, v{vt+2}")
    e(f"v_lshl_add_u32 v{vt+2}, v{vt+3}, 4, v{vt+2}")
    e(f"s_add_u32 s{sT+1}, s{sOcol}, {8*2304}")
    e("s_waitcnt lgkmcnt(0)")
    e(f"ds_read_b128 {vr(PKd+8,4)}, v{vt+4}")
    e(f"ds_read_b128 {vr(PKd+12,4)}, v{vt+4} offset:1024")
    e("s_waitcnt lgkmcnt(1)")
    e(f"buffer_store_dwordx4 {vr(PKd+8,4)}, v{vt+2}, {sr(sOut,4)}, s{sOcol} offen")
    e("s_waitcnt lgkmcnt(0)")
    e(f"buffer_store_dwordx4 {vr(PKd+12,4)}, v{vt+2}, {sr(sOut,4)}, s{sT+1} offen")


def rd_addr(e, vRA, base, vG, vR4, vC4, vt):
    e(f"v_lshl_add_u32 v{vt}, v{vG}, 3, v{vR4}")
    e(f"v_lshlrev_b32 v{vt}, 7, v{vt}")
    e(f"v_lshl_add_u32 v{vt}, v{vC4}, 3, v{vt}")
    e(f"v_lshrrev_b32 v{vt+1}, 1, v{vR4}")
    e(f"v_and_b32 v{vt+2}, 1, v{vG}")
    e(f"v_lshl_add_u32 v{vt+1}, v{vt+2}, 1, v{vt+1}")
    e(f"v_lshl_add_u32 v{vRA}, v{vt+1}, 5, v{vt}")
    if base:
        e(f"v_add_u32 v{vRA}, {base}, v{vRA}")
    for t in range(1, 4):
        e(f"v_xor_b32 v{vRA+t}, {t<<5}, v{vRA}")


def grp_src(e, sG, sRot, sCol, sT):
    e(f"s_lshr_b32 s{sT}, s{sG}, 2")
    e(f"s_add_u32 s{sT}, s{sT}, s{sRot}")
    e(f"s_sub_u32 s{sT+1}, s{sT}, 9")
    e(f"s_cmp_ge_u32 s{sT}, 9")
    e(f"s_cselect_b32 s{sT}, s{sT+1}, s{sT}")
    e(f"s_lshl_b32 s{sT}, s{sT}, 2")
    e(f"s_and_b32 s{sT+1}, s{sG}, 3")
    e(f"s_add_u32 s{sT}, s{sT}, s{sT+1}")
    e(f"s_mul_i32 s{sT}, s{sT}, 18432")
    e(f"s_add_u32 s{sT}, s{sT}, s{sCol}")


def gemm_body(e, g, NW, sCol, sXoff, sOcol, sW, sXs, sWo, sOut, vL, vL15, vG, vR4, vC4, vt, sT, w2issue):
    sRt, sRot, vX, vD = g["sRt"], g["sRot"], g["vX"], g["vD"]
    nct = 4
    nph = (36 + NW - 1) // NW
    kslist = []
    ksdone = 0
    for ph in range(nph):
        ksnew = min(36, (ph + 1) * NW) // 2
        kslist.append(list(range(ksdone, ksnew)))
        ksdone = ksnew
    mxk = max(len(k) for k in kslist)
    cnt = [2 + len(k) for k in kslist] + [0, 0, 0, 0]
    XR = e.v(72, 4)
    ACC = e.v(4 * nct, 4)
    F = e.v(mxk * nct * 4, 4)
    vRA = e.v(4)
    sM0, sG, sXb, sXk, sXc = e.s(), e.s(), e.s(), e.s(), e.s()
    e(f"s_lshl_b32 s{sM0}, s{sW}, 11")
    e(f"s_mov_b32 s{sG}, s{sW}")
    e(f"s_mul_i32 s{sXb}, s{sRt}, 18432")
    e(f"s_add_u32 s{sXb}, s{sXb}, s{sXoff}")
    e(f"s_lshl_b32 s{sXk}, s{sRot}, 11")

    def issue(ph):
        if ph >= nph:
            return
        for ks in kslist[ph]:
            if ks % 2 == 0:
                e(f"s_add_u32 s{sXc}, s{sXb}, s{sXk}")
            e(f"buffer_load_dwordx4 {vr(XR+ks*4,4)}, v{vX}, {sr(sXs,4)}, s{sXc} offen offset:{(ks%2)*1024}")
            if ks % 2 == 1:
                e(f"s_add_u32 s{sXk}, s{sXk}, 2048")
                e(f"s_cmp_eq_u32 s{sXk}, 18432")
                e(f"s_cselect_b32 s{sXk}, 0, s{sXk}")
        grp_src(e, sG, sRot, sCol, sT)
        if (ph + 1) * NW > 36:
            e(f"s_cmp_lt_u32 s{sG}, 36")
            e(f"s_cselect_b32 s{sT}, s{sT}, 0x{OOB:x}")
            e(f"s_cselect_b32 s{sT+1}, s{sM0}, {STG0 - ph*NW*2048}")
        else:
            e(f"s_mov_b32 s{sT+1}, s{sM0}")
        e(f"s_add_u32 m0, s{sT+1}, {ph*NW*2048}")
        e(f"s_add_u32 s{sG}, s{sG}, {NW}")
        e(f"buffer_load_dwordx4 v{vD}, {sr(sWo,4)}, s{sT} offen lds")
        e(f"s_add_u32 m0, s{sT+1}, {ph*NW*2048 + 1024}")
        e(f"s_add_u32 s{sT}, s{sT}, {8*1152}")
        e(f"buffer_load_dwordx4 v{vD+1}, {sr(sWo,4)}, s{sT} offen lds")

    DEPTH = int(os.environ.get('GDEPTH', '2'))
    for ph in range(DEPTH):
        issue(ph)
    stamp(e)
    rd_addr(e, vRA, 0, vG, vR4, vC4, vt)
    for i in range(4 * nct):
        e(f"v_mov_b32 v{ACC+i}, 0")
    rebased = False
    for ph in range(nph):
        rem = sum(cnt[ph + 1: min(nph, ph + DEPTH)])
        e(f"s_waitcnt vmcnt({rem})")
        e("s_barrier")
        if ph in (0, nph - 1): stamp(e)
        kss = kslist[ph]
        for i, ks in enumerate(kss):
            if ks >= 12 and not rebased:
                for t in range(4):
                    e(f"v_add_u32 v{vRA+t}, {12*4096}, v{vRA+t}")
                rebased = True
            o = (ks - 12 if ks >= 12 else ks) * 4096
            for t in range(nct):
                for h in range(2):
                    e(f"ds_read_b64_tr_b16 {vr(F+(i*nct+t)*4+h*2,2)}, v{vRA+t} offset:{o + h*512}")
        issue(ph + DEPTH)
        if ph == nph - 1:
            w2issue()
        tot = len(kss) * nct * 2
        for i, ks in enumerate(kss):
            for t in range(nct):
                left = tot - 2 * (i * nct + t + 1)
                if t % 2 == 0:
                    e(f"s_waitcnt lgkmcnt({min(15, left - 2)})")
                mfma(e, ACC + t * 4, F + (i * nct + t) * 4, XR + ks * 4)
    e("s_nop 7")
    out_stage(e, ACC, F, sW, sRt, sOcol, sOut, vL, vL15, vG, vt, sT)


def common_ids(e):
    vTid = e.v()
    vL, vL15, vG, vR4, vC4 = [e.v() for _ in range(5)]
    vt = e.v(8, 2)
    sW = e.s()
    e(f"v_lshrrev_b32 v{vt}, 6, v0")
    e(f"v_and_b32 v{vL}, 63, v0")
    e(f"v_readfirstlane_b32 s{sW}, v{vt}")
    e(f"v_and_b32 v{vL15}, 15, v0")
    e(f"v_lshrrev_b32 v{vG}, 4, v{vL}")
    e(f"v_bfe_u32 v{vR4}, v0, 2, 2")
    e(f"v_and_b32 v{vC4}, 3, v0")
    return vL, vL15, vG, vR4, vC4, vt, sW


def div9(e, sQ, sR, sU):
    e(f"s_mul_i32 s{sQ}, s{sU}, 7282")
    e(f"s_lshr_b32 s{sQ}, s{sQ}, 16")
    e(f"s_mul_i32 s{sR}, s{sQ}, 9")
    e(f"s_sub_u32 s{sR}, s{sU}, s{sR}")


K2_GRID = 256
P2_NW = 6


K2_KV0 = W2OFF + 27 * 2048
K2_Z0 = K2_KV0 + 6400
K2_ZEND = K2_Z0 + 1536
K2_DUMP = K2_ZEND
K2_O0 = K2_ZEND + 64


XRED = int(os.environ.get('XRED', '8'))
W2E = int(os.environ.get('W2E', '0'))


def gen_k2(e):
    e.reset()
    e.s(3)
    e.label("k2_kernel")
    e(f"s_cmp_ge_u32 s2, {K2_GRID}")
    e("s_cbranch_scc1 k2_end")
    stamp_init(e); stamp(e)
    sPA = e.s(2)
    sPB = e.s(4)
    sPW = e.s(2)
    e(f"s_load_dwordx2 {sr(sPA,2)}, s[0:1], 24")
    e(f"s_load_dwordx4 {sr(sPB,4)}, s[0:1], 48")
    e(f"s_load_dwordx2 {sr(sPW,2)}, s[0:1], 72")
    sT = e.s(4)
    sJ, sI = e.s(), e.s()
    e(f"s_and_b32 s{sJ}, s2, 7")
    e(f"s_lshr_b32 s{sI}, s2, 3")
    vL, vL15, vG, vR4, vC4, vt, sW = common_ids(e)
    sXs, sWo, sOut, sW2 = e.s(4), e.s(4), e.s(4), e.s(4)
    sHg, sRb = sJ, sI
    sU, sRbk2, sNb2 = e.s(), e.s(), e.s()
    e(f"s_mul_i32 s{sU}, s{sJ}, 28")
    e(f"s_add_u32 s{sU}, s{sU}, s{sI}")
    e(f"s_cmp_lt_u32 s{sI}, 28")
    e(f"s_cselect_b32 s{sU}, s{sU}, 255")
    e(f"s_mul_i32 s{sRbk2}, s{sU}, 6554")
    e(f"s_lshr_b32 s{sRbk2}, s{sRbk2}, 16")
    e(f"s_mul_i32 s{sNb2}, s{sRbk2}, 10")
    e(f"s_sub_u32 s{sNb2}, s{sU}, s{sNb2}")
    g2 = gemm_pre(e, P2_NW, sRbk2, sNb2, sW, vL, vL15, vG, vR4, vC4, vt, sT)
    vX, vD = g2["vX"], g2["vD"]
    vL16 = vX
    sCol2, sXoff2, sOcol2 = e.s(), e.s(), e.s()
    e(f"s_lshl_b32 s{sCol2}, s{sNb2}, 7")
    e(f"s_mov_b32 s{sXoff2}, {WS_OA}")
    e(f"s_movk_i32 s{sT}, {1152 + 1024}")
    e(f"s_cmp_eq_u32 s{sNb2}, 9")
    e(f"s_cselect_b32 s{sOcol2}, s{sT}, s{sCol2}")
    e(f"s_cselect_b32 s{sCol2}, 1024, s{sCol2}")
    e(f"s_cselect_b32 s{sXoff2}, {WS_OB}, s{sXoff2}")
    sW3, sRt1, sRot1, sCol1, sOcol1 = e.s(), e.s(), e.s(), e.s(), e.s()
    e(f"s_and_b32 s{sW3}, s{sW}, 3")
    e(f"s_lshr_b32 s{sT}, s{sI}, 3")
    e(f"s_lshl_b32 s{sT+1}, s{sJ}, 2")
    e(f"s_add_u32 s{sT}, s{sT}, s{sT+1}")
    e(f"s_and_b32 s{sT+1}, s{sI}, 7")
    e(f"s_lshl_b32 s{sRt1}, s{sT}, 2")
    e(f"s_add_u32 s{sRt1}, s{sRt1}, s{sW3}")
    e(f"s_lshl_b32 s{sRot1}, s{sT}, 1")
    e(f"s_add_u32 s{sRot1}, s{sRot1}, s{sT+1}")
    e(f"s_mul_i32 s{sT}, s{sRot1}, 7282")
    e(f"s_lshr_b32 s{sT}, s{sT}, 16")
    e(f"s_mul_i32 s{sT}, s{sT}, 9")
    e(f"s_sub_u32 s{sRot1}, s{sRot1}, s{sT}")
    e(f"s_lshl_b32 s{sCol1}, s{sT+1}, 7")
    e(f"s_add_u32 s{sOcol1}, s{sCol1}, 1152")
    sOF, sPb, sPk, sG = e.s(), e.s(), e.s(), e.s()
    e(f"s_lshl_b32 s{sOF}, s{sRb}, 2")
    e(f"s_add_u32 s{sOF}, s{sOF}, s{sW3}")
    e(f"s_mul_i32 s{sOF}, s{sOF}, 72")
    e(f"s_mul_i32 s{sT}, s{sHg}, 9")
    e(f"s_add_u32 s{sOF}, s{sOF}, s{sT}")
    e(f"s_lshl_b32 s{sOF}, s{sOF}, 8")
    vU = e.v(2)
    e(f"v_and_b32 v{vt+1}, 255, v0")
    e(f"v_lshlrev_b32 v{vU}, 4, v{vt+1}")
    e(f"v_add_u32 v{vU+1}, {256*16}, v{vU}")
    e(f"v_cmp_gt_u32 vcc, 86, v{vt+1}")
    e(f"v_mov_b32 v{vt}, 0x{OOB:x}")
    e(f"s_mul_i32 s{sPb}, s{sHg}, {4*1368}")
    e(f"v_cndmask_b32 v{vU+1}, v{vt}, v{vU+1}, vcc")
    e(f"s_add_u32 s{sPb}, s{sPb}, {WS_P}")
    e(f"s_and_b32 s{sPk}, s{sRb}, 15")
    e(f"s_mul_i32 s{sPk}, s{sPk}, {32*1368}")
    vKA = e.v(4)
    vmark, smark = e.vn, e.sn
    PR = e.v(128, 4)
    R2 = e.v(92, 4)
    BQ, AW, P = R2, R2 + 12, R2 + 72
    XR1, ACC1, vRA1 = R2, R2 + 72, R2 + 88
    e("s_waitcnt lgkmcnt(0)")
    srd(e, sXs, sPW, WS_BYTES)
    srd(e, sWo, sPB, WO_BYTES)
    srd(e, sOut, sPB + 2, OUT_BYTES)
    e(f"s_cmp_eq_u32 s{sNb2}, 9")
    e(f"s_cselect_b32 s{sPA}, s{sPB}, s{sPA}")
    e(f"s_cselect_b32 s{sPA+1}, s{sPB+1}, s{sPA+1}")
    srd(e, sW2, sPA, WO_BYTES)
    def pload(dst, vaddr):
        e(f"s_add_u32 s{sT+1}, s{sPb}, s{sPk}")
        e(f"buffer_load_dwordx4 {vr(dst,4)}, v{vaddr}, {sr(sXs,4)}, s{sT+1} offen")
        e(f"s_add_u32 s{sPk}, s{sPk}, {32*1368}")
        e(f"s_cmp_eq_u32 s{sPk}, {16*32*1368}")
        e(f"s_cselect_b32 s{sPk}, 0, s{sPk}")
    stamp(e)
    stn1 = getattr(e, "stn", 0)

    sSel = e.s(2)
    e(f"s_mov_b32 s{sSel}, 0x00003f80")
    e(f"s_mov_b32 s{sSel+1}, 0x3f800000")

    def kvaddr(h):
      for hh in range(2):
        u = vt
        e(f"v_and_b32 v{u}, 255, v0")
        e(f"v_lshlrev_b32 v{u}, 1, v{u}")
        if 512*h + hh:
            e(f"v_add_u32 v{u}, {512*h + hh}, v{u}")
        e(f"v_mul_u32_u24 v{vt+1}, 6133, v{u}")
        e(f"v_lshrrev_b32 v{vt+1}, 20, v{vt+1}")
        e(f"v_mul_u32_u24 v{vt+2}, 171, v{vt+1}")
        e(f"v_sub_u32 v{vt+2}, v{u}, v{vt+2}")
        e(f"v_mul_u32_u24 v{vt+3}, 7282, v{vt+2}")
        e(f"v_lshrrev_b32 v{vt+3}, 16, v{vt+3}")
        e(f"v_mul_u32_u24 v{vt+4}, 9, v{vt+3}")
        e(f"v_sub_u32 v{vt+4}, v{vt+2}, v{vt+4}")
        e(f"v_mul_u32_u24 v{vt+1}, 20, v{vt+1}")
        e(f"v_add_u32 v{vt+1}, v{vt+1}, v{vt+3}")
        e(f"v_mul_u32_u24 v{vt+1}, 80, v{vt+1}")
        e(f"v_lshl_add_u32 v{vKA+2*h+hh}, v{vt+4}, 3, v{vt+1}")
        if h == 1:
            e(f"v_cmp_gt_u32 vcc, 684, v{u}")
            e(f"v_mov_b32 v{vt+2}, {K2_DUMP - K2_KV0}")
            e("s_nop 1")
            e(f"v_cndmask_b32 v{vKA+2*h+hh}, v{vt+2}, v{vKA+2*h+hh}, vcc")
        e(f"v_add_u32 v{vKA+2*h+hh}, {K2_KV0}, v{vKA+2*h+hh}")

    def reduce(h):
        a = PR + h * 64
        acc = [PR + (1 - h) * 64 + i for i in range(8)]
        for x in acc:
            e(f"v_mov_b32 v{x}, 0")
        for rb in range(16):
            for d in range(4):
                e(f"v_dot2c_f32_bf16 v{acc[2*d]}, s{sSel}, v{a+rb*4+d}")
                e(f"v_dot2c_f32_bf16 v{acc[2*d+1]}, s{sSel+1}, v{a+rb*4+d}")
        e("s_nop 2")
        for d in range(4):
            e(f"v_cvt_pk_bf16_f32 v{a+d}, v{acc[2*d]}, v{acc[2*d+1]}")
        e(f"ds_write_b64 v{vKA+2*h}, {vr(a,2)}")
        e(f"ds_write_b64 v{vKA+2*h+1}, {vr(a+2,2)}")

    e(f"s_cmp_ge_u32 s{sW}, 4")
    e("s_cbranch_scc1 k2_X")
    e(f"s_add_u32 s{sT}, s{sOF}, {WS_Q}")
    e(f"v_lshlrev_b32 v{vt}, 4, v{vL15}")
    for st in range(3):
        e(f"buffer_load_dwordx4 {vr(BQ+st*4,4)}, v{vL16 if st < 2 else vt}, {sr(sXs,4)}, s{sT} offen offset:{st*1024}")
    e(f"s_mul_i32 s{sT}, s{sHg}, 15360")
    e(f"s_add_u32 s{sT}, s{sT}, {WS_WB}")
    for f in range(15):
        if f and f % 4 == 0:
            e(f"s_add_u32 s{sT}, s{sT}, 4096")
        e(f"buffer_load_dwordx4 {vr(AW+f*4,4)}, v{vL16}, {sr(sXs,4)}, s{sT} offen offset:{(f%4)*1024}")
    e(f"s_cmp_ge_u32 s{sW}, 2")
    e("s_cbranch_scc1 k2_A23")
    for rb in range(16):
        pload(PR + 64 + rb * 4, vU + 1)
    kvaddr(1)
    e("s_waitcnt vmcnt(16)")
    e.label("k2_A23")
    sL = e.s(2)
    e(f"s_mov_b32 s{sL}, 0x{LOG2E:x}")
    e(f"s_mov_b32 s{sL+1}, 0x{LOG2E:x}")
    e(f"s_cmp_lt_u32 s{sW}, 2")
    e("s_cbranch_scc1 k2_A01")
    e("s_waitcnt vmcnt(0)")
    e.label("k2_A01")
    for cf in range(5):
        for st in range(3):
            mfma(e, P + cf * 4, AW + (cf * 3 + st) * 4, BQ + st * 4, "0" if st == 0 else None)
    e("s_nop 7")
    E1 = AW
    E2 = AW + 18
    PH = AW + 36
    softmax_pm(e, P, E1, E2, PH, vt, sL)
    e(f"v_mov_b32 v{PH+18}, 0")
    e(f"v_mov_b32 v{PH+19}, 0")
    e(f"v_lshrrev_b32 v{vt}, 2, v{vL15}")
    e(f"v_cmp_eq_u32 vcc, v{vt}, v{vG}")
    e(f"v_mul_u32_u24 v{vt+1}, 20, v{vt}")
    e(f"v_and_b32 v{vt+2}, 3, v{vL15}")
    e(f"v_add_u32 v{vt+1}, v{vt+1}, v{vt+2}")
    e(f"v_mul_u32_u24 v{vt+1}, 80, v{vt+1}")
    e(f"v_add_u32 v{vt+1}, {K2_KV0}, v{vt+1}")
    e(f"v_mov_b32 v{vt+2}, {K2_Z0}")
    e(f"v_cndmask_b32 v{vt+1}, v{vt+2}, v{vt+1}, vcc")
    e(f"s_lshl_b32 s{sT}, s{sW}, 4")
    e(f"v_add_u32 v{vt+2}, s{sT}, v{vL15}")
    e(f"v_mul_u32_u24 v{vt+2}, 144, v{vt+2}")
    e(f"v_add_u32 v{vt+2}, {K2_O0}, v{vt+2}")
    e(f"v_mul_u32_u24 v{vt+3}, 36, v{vG}")
    e(f"v_add_u32 v{vt+3}, v{vt+3}, v{vt+2}")
    e(f"v_lshl_add_u32 v{vt+2}, v{vG}, 4, v{vt+2}")
    e(f"v_cmp_eq_u32 vcc, 0, v{vG}")
    e(f"v_mov_b32 v{vt+4}, 0x{OOB:x}")
    e(f"s_add_u32 s{sOF}, s{sOF}, {WS_OA}")
    e(f"v_cndmask_b32 v{vt+4}, v{vt+4}, v{vL16}, vcc")
    stamp(e)
    e(f"s_cmp_ge_u32 s{sW}, 2")
    e("s_cbranch_scc1 k2_Anr")
    e("s_waitcnt vmcnt(0)")
    reduce(1)
    e("s_waitcnt lgkmcnt(0)")
    e.label("k2_Anr")
    e("s_barrier")
    stamp(e)
    AK = PR
    for ch in range(5):
        for st in range(5):
            e(f"ds_read_b128 {vr(AK+(ch*5+st)*4,4)}, v{vt+1} offset:{ch*320 + st*16}")
    N = P
    for ch in range(5):
        e(f"s_waitcnt lgkmcnt({min(15, 20 - 5*ch)})")
        for st in range(5):
            mfma(e, N + ch * 4, AK + (ch * 5 + st) * 4, PH + st * 4, "0" if st == 0 else None)
    e("s_nop 7")
    e("s_nop 3")
    e(f"v_add_f32 v{vt}, 0x358637bd, v{N+18}")
    e(f"v_rcp_f32 v{vt}, v{vt}")
    e("s_nop 0")
    for i in range(0, 18, 2):
        e(f"v_pk_mul_f32 {vr(N+i,2)}, {vr(N+i,2)}, {vr(vt,2)} op_sel_hi:[1,0]")
    OP = AW
    for i in range(9):
        e(f"v_cvt_pk_bf16_f32 v{OP+i}, v{N+2*i}, v{N+2*i+1}")
    for i in range(4):
        e(f"ds_write2_b32 v{vt+3}, v{OP+2*i}, v{OP+2*i+1} offset0:{2*i} offset1:{2*i+1}")
    e(f"ds_write_b32 v{vt+3}, v{OP+8} offset:32")
    e("s_waitcnt lgkmcnt(0)")
    CO = AW + 12
    for i in range(3):
        e(f"ds_read_b128 {vr(CO+4*i,4)}, v{vt+2} offset:{64*i}")
    for i in range(3):
        e(f"s_waitcnt lgkmcnt({2-i})")
        e(f"buffer_store_dwordx4 {vr(CO+4*i,4)}, v{vL16 if i < 2 else vt+4}, {sr(sXs,4)}, s{sOF} offen offset:{1024*i} sc1")
    e(f"v_cmp_eq_u32 vcc, 0, v{vL}")
    e(f"v_mov_b32 v{vt+5}, 0x{OOB:x}")
    e(f"v_mov_b32 v{vt+6}, 1")
    e(f"s_lshl_b32 s{sOF}, s{sRb}, 7")
    e(f"s_lshl_b32 s{sT+1}, s{sHg}, 4")
    e(f"s_add_u32 s{sOF}, s{sOF}, s{sT+1}")
    e(f"s_lshl_b32 s{sT+1}, s{sW}, 2")
    e(f"s_add_u32 s{sOF}, s{sOF}, s{sT+1}")
    e(f"s_add_u32 s{sOF}, s{sOF}, {WS_FL}")
    e(f"v_cndmask_b32 v{vt+5}, v{vt+5}, 0, vcc")
    e("s_waitcnt vmcnt(0)")
    e(f"buffer_store_dword v{vt+6}, v{vt+5}, {sr(sXs,4)}, s{sOF} offen sc1")
    e("s_barrier")
    stamp(e)
    e(f"s_cmp_lg_u32 s{sW}, 0")
    e("s_cbranch_scc1 k2_Aw2")
    e(f"s_cmp_ge_u32 s{sU}, 220")
    e("s_cbranch_scc1 k2_P2")
    e(f"s_cmp_eq_u32 s{sNb2}, 9")
    e("s_cbranch_scc1 k2_P2")
    e(f"s_mul_i32 s{sT}, s{sRbk2}, 96")
    e(f"s_add_u32 s{sT+1}, s{sT}, 95")
    e(f"s_min_u32 s{sT+1}, s{sT+1}, 2047")
    e(f"s_lshr_b32 s{sT}, s{sT}, 6")
    e(f"s_lshr_b32 s{sT+1}, s{sT+1}, 6")
    e(f"s_lshl_b32 s{sT}, s{sT}, 7")
    e(f"s_lshl_b32 s{sT+1}, s{sT+1}, 7")
    e(f"v_and_b32 v{vt}, 31, v{vL}")
    e(f"v_lshlrev_b32 v{vt}, 2, v{vt}")
    e(f"v_cmp_gt_u32 vcc, 32, v{vL}")
    e(f"v_mov_b32 v{vt+1}, s{sT}")
    e(f"v_mov_b32 v{vt+2}, s{sT+1}")
    e(f"v_cndmask_b32 v{vt+1}, v{vt+2}, v{vt+1}, vcc")
    e(f"v_add_u32 v{vt}, v{vt}, v{vt+1}")
    e(f"s_mov_b32 s{sT}, {WS_FL}")
    e(f"s_mov_b32 s{sG}, 0")
    e.label("k2_poll")
    e(f"s_sleep {os.environ.get('PSLEEP', '4')}")
    e(f"buffer_load_dword v{vt+1}, v{vt}, {sr(sXs,4)}, s{sT} offen sc1")
    e("s_waitcnt vmcnt(0)")
    e(f"v_cmp_ne_u32 vcc, 1, v{vt+1}")
    e(f"s_add_u32 s{sG}, s{sG}, 1")
    e(f"s_cmp_ge_u32 s{sG}, 100000")
    e("s_cbranch_scc1 k2_P2")
    e("s_cbranch_vccnz k2_poll")
    e("s_branch k2_P2")
    e.label("k2_Aw2")
    e(f"s_cmp_ge_u32 s{sU}, 220")
    e("s_cbranch_scc1 k2_P2")
    e(f"s_add_u32 s{sG}, s{sW}, {26 if W2E else -1}")
    e.label("k2_w2l")
    grp_src(e, sG, g2["sRot"], sCol2, sT)
    e(f"s_lshl_b32 s{sT+1}, s{sG}, 11")
    e(f"s_add_u32 m0, s{sT+1}, {W2OFF}")
    e(f"s_add_u32 s{sG}, s{sG}, 3")
    e(f"buffer_load_dwordx4 v{vD}, {sr(sW2,4)}, s{sT} offen lds")
    e(f"s_add_u32 m0, s{sT+1}, {W2OFF + 1024}")
    e(f"s_add_u32 s{sT}, s{sT}, {8*1152}")
    e(f"buffer_load_dwordx4 v{vD+1}, {sr(sW2,4)}, s{sT} offen lds")
    e(f"s_cmp_lt_u32 s{sG}, 36")
    e("s_cbranch_scc1 k2_w2l")
    e("s_branch k2_P2")
    e.label("k2_X")
    e.stn = stn1
    for rb in range(16):
        pload(PR + rb * 4, vU)
    e(f"v_and_b32 v{vt}, 255, v0")
    for i in range(4):
        e(f"v_mov_b32 v{R2+20+i}, 0")
    e(f"v_min_u32 v{vt+1}, 79, v{vt}")
    e(f"v_mul_u32_u24 v{vt+1}, 80, v{vt+1}")
    e(f"v_add_u32 v{vt+1}, {K2_KV0 + 72}, v{vt+1}")
    e(f"ds_write_b64 v{vt+1}, {vr(R2+20,2)}")
    e(f"v_min_u32 v{vt+1}, 95, v{vt}")
    e(f"v_lshlrev_b32 v{vt+1}, 4, v{vt+1}")
    e(f"v_add_u32 v{vt+1}, {K2_Z0}, v{vt+1}")
    e(f"ds_write_b128 v{vt+1}, {vr(R2+20,4)}")
    kvaddr(0)
    sXb, sXk, sXc = e.s(), e.s(), e.s()
    e(f"s_mul_i32 s{sXb}, s{sRt1}, 18432")
    e(f"s_add_u32 s{sXb}, s{sXb}, {WS_OB}")
    e(f"s_lshl_b32 s{sXk}, s{sRot1}, 11")
    e(f"s_mov_b32 s{sG}, s{sW3}")
    for r in range(9):
        grp_src(e, sG, sRot1, sCol1, sT)
        e(f"s_lshl_b32 s{sT+1}, s{sG}, 11")
        e(f"s_mov_b32 m0, s{sT+1}")
        e(f"s_add_u32 s{sG}, s{sG}, 4")
        e(f"buffer_load_dwordx4 v{vD}, {sr(sWo,4)}, s{sT} offen lds")
        e(f"s_add_u32 m0, s{sT+1}, 1024")
        e(f"s_add_u32 s{sT}, s{sT}, {8*1152}")
        e(f"buffer_load_dwordx4 v{vD+1}, {sr(sWo,4)}, s{sT} offen lds")
        if r == XRED:
            stamp(e)
            e(f"s_waitcnt vmcnt({2*(XRED+1)})")
            reduce(0)
            e("s_waitcnt lgkmcnt(0)")
            e("s_barrier")
            stamp(e)
    for ks in range(18):
        if ks % 2 == 0:
            e(f"s_add_u32 s{sXc}, s{sXb}, s{sXk}")
        e(f"buffer_load_dwordx4 {vr(XR1+ks*4,4)}, v{vX}, {sr(sXs,4)}, s{sXc} offen offset:{(ks%2)*1024}")
        if ks % 2 == 1:
            e(f"s_add_u32 s{sXk}, s{sXk}, 2048")
            e(f"s_cmp_eq_u32 s{sXk}, 18432")
            e(f"s_cselect_b32 s{sXk}, 0, s{sXk}")
    e(f"s_mov_b32 s{sG}, s{sW3}")
    for r in range(7 if W2E else 0):
        grp_src(e, sG, g2["sRot"], sCol2, sT)
        e(f"s_lshl_b32 s{sT+1}, s{sG}, 11")
        e(f"s_add_u32 s{sT+1}, s{sT+1}, {W2OFF}")
        e(f"s_cmp_lt_u32 s{sU}, 220")
        e(f"s_cselect_b32 s{sT}, s{sT}, 0x{OOB:x}")
        if r == 6:
            e(f"s_cmp_lt_u32 s{sG}, 27")
            e(f"s_cselect_b32 s{sT}, s{sT}, 0x{OOB:x}")
            e(f"s_cselect_b32 s{sT+1}, s{sT+1}, {STG0}")
        e(f"s_mov_b32 m0, s{sT+1}")
        e(f"s_add_u32 s{sG}, s{sG}, 4")
        e(f"buffer_load_dwordx4 v{vD}, {sr(sW2,4)}, s{sT} offen lds")
        e(f"s_add_u32 m0, s{sT+1}, 1024")
        e(f"s_add_u32 s{sT}, s{sT}, {8*1152}")
        e(f"buffer_load_dwordx4 v{vD+1}, {sr(sW2,4)}, s{sT} offen lds")
    rd_addr(e, vRA1, 0, vG, vR4, vC4, vt)
    e(f"s_waitcnt vmcnt({32 if W2E else 18})")
    e("s_barrier")
    stamp(e)

    def kloop(XR, ACC, F, vRA, xextra):
        def rdk(ks):
            L = []
            if ks == 12:
                for t in range(4):
                    L.append(f"v_add_u32 v{vRA+t}, {12*4096}, v{vRA+t}")
            o = (ks - 12 if ks >= 12 else ks) * 4096
            for t in range(4):
                for h in range(2):
                    L.append(f"ds_read_b64_tr_b16 {vr(F+((ks%3)*4+t)*4+h*2,2)}, v{vRA+t} offset:{o + h*512}")
            return L
        for x in rdk(0) + rdk(1):
            e(x)
        for ks in range(18):
            nl = 8 if ks < 17 else 0
            e(f"s_waitcnt vmcnt({17-ks+xextra}) lgkmcnt({nl})")
            R = rdk(ks + 2) if ks + 2 < 18 else []
            per = (len(R) + 3) // 4
            for t in range(4):
                mfma(e, ACC + t * 4, F + ((ks % 3) * 4 + t) * 4, XR + ks * 4, "0" if ks == 0 else None)
                for x in R[t*per:(t+1)*per]:
                    e(x)
        e("s_nop 7")
    kloop(XR1, ACC1, PR, vRA1, 14 if W2E else 0)
    out_stage(e, ACC1, PR, sW, sRt1, sOcol1, sOut, vL, vL15, vG, vt, sT)
    e.label("k2_P2")
    e.vn = vmark
    stamp(e)
    e(f"s_cmp_ge_u32 s{sU}, 220")
    e("s_cbranch_scc1 k2_fin")
    XR = e.v(72, 4)
    ACC = e.v(16, 4)
    F = e.v(48, 4)
    vRA = e.v(4)
    e("s_waitcnt vmcnt(0)")
    rd_addr(e, vRA, W2OFF, vG, vR4, vC4, vt)
    e(f"s_mul_i32 s{sXb}, s{g2['sRt']}, 18432")
    e(f"s_add_u32 s{sXb}, s{sXb}, s{sXoff2}")
    e(f"s_lshl_b32 s{sXk}, s{g2['sRot']}, 11")
    e("s_barrier")
    stamp(e)
    e(f"s_cmp_ge_u32 s{sW}, {P2_NW}")
    e("s_cbranch_scc1 k2_fin")
    for ks in range(18):
        if ks % 2 == 0:
            e(f"s_add_u32 s{sXc}, s{sXb}, s{sXk}")
        e(f"buffer_load_dwordx4 {vr(XR+ks*4,4)}, v{vX}, {sr(sXs,4)}, s{sXc} offen offset:{(ks%2)*1024} sc1")
        if ks % 2 == 1:
            e(f"s_add_u32 s{sXk}, s{sXk}, 2048")
            e(f"s_cmp_eq_u32 s{sXk}, 18432")
            e(f"s_cselect_b32 s{sXk}, 0, s{sXk}")
    kloop(XR, ACC, F, vRA, 0)
    out_stage(e, ACC, F, sW, g2["sRt"], sOcol2, sOut, vL, vL15, vG, vt, sT)
    e.label("k2_fin")
    stamp_dump(e, sXs, 1, vt, sT)
    e.label("k2_end")
    e("s_endpgm")
    return e.vmax, e.smax


def main():
    global STAMP
    if "--stamp" in sys.argv:
        STAMP = True
        sys.argv.remove("--stamp")
    e = Em()
    hdr = open(f"cdna_kernels/{NAME}.s.ref").read().split("\n")
    head = [l for l in hdr if l.startswith(";") and "@launch" not in l and "Override" not in l and "grid=ceil" not in l]
    out = head[:]
    out.append(f"; @launch kernel=k1_kernel grid=(256,1,1) block=(512,1,1) lds={K1_LDS}")
    out.append(f"; @launch kernel=k2_kernel grid=({K2_GRID},1,1) block=(512,1,1) lds={K23_LDS}")
    out.append('.amdgcn_target "amdgcn-amd-amdhsa--gfx950"')
    out.append(".text")
    res = {}
    for nm, fn in (("k1", gen_k1), ("k2", gen_k2)):
        e.L.append(f".globl {nm}_kernel")
        e.L.append(".p2align 8")
        e.L.append(f".type {nm}_kernel,@function")
        res[nm] = fn(e)
    out += e.L
    out.append("code_end:")
    out.append("  s_endpgm")
    out.append('.section .rodata,"a"')
    for nm, (vm, sm) in res.items():
        vm4 = (vm + 3) // 4 * 4
        out.append(".p2align 6")
        out.append(f".amdhsa_kernel {nm}_kernel")
        out.append(f"  .amdhsa_next_free_vgpr {vm}")
        out.append(f"  .amdhsa_next_free_sgpr {sm}")
        out.append(f"  .amdhsa_accum_offset {vm4}")
        out.append("  .amdhsa_group_segment_fixed_size 0")
        out.append("  .amdhsa_kernarg_size 80")
        out.append("  .amdhsa_user_sgpr_count 2")
        out.append("  .amdhsa_user_sgpr_kernarg_segment_ptr 1")
        out.append("  .amdhsa_system_sgpr_workgroup_id_x 1")
        out.append(".end_amdhsa_kernel")
    path = sys.argv[1] if len(sys.argv) > 1 else f"cdna_kernels/{NAME}.s"
    open(path, "w").write("\n".join(out) + "\n")
    print(res)


if __name__ == "__main__":
    main()
```
